```python
import torch

def _softmax(x, axis=-1):
    return torch.softmax(x, dim=axis)
def _gelu(x):
    return torch.nn.functional.gelu(x, approximate="tanh")
def _silu(x):
    return torch.nn.functional.silu(x)
def _sigmoid(x):
    return torch.sigmoid(x)
def _layernorm(x, axis=-1, eps=1e-5):
    m = x.mean(dim=axis, keepdim=True)
    v = x.var(dim=axis, keepdim=True, unbiased=False)
    return (x - m) / torch.sqrt(v + eps)
def _scatter_add(tgt, idx, src, axis=0):
    return tgt.clone().index_add_(axis, idx, src)
def _segment_sum(src, seg, n):
    out = torch.zeros((n,) + src.shape[1:], dtype=src.dtype)
    return out.index_add_(0, seg, src)
def _pad(x, pw):
    flat = tuple(v for pair in reversed(pw) for v in pair)
    return torch.nn.functional.pad(x, flat)

kernel_name = 'concat_heads__sliding_local_dilated__compressed_kv_cla__prompt'

def setup_inputs():

    _w = (lambda a: (lambda t: t.to(torch.bfloat16) if t.is_floating_point() else t)(torch.as_tensor(a)))
    def _A_setup():
        B, S, D = 1, 2048, 512
        return {
            "x": _w((lambda *s: torch.randn(*s, dtype=torch.bfloat16) * 0.4)(B, S, D)),
            "wqkv": _w((lambda *s: torch.randn(*s, dtype=torch.bfloat16) * 0.4)(D, 3 * D)),
            "wo": _w((lambda *s: torch.randn(*s, dtype=torch.bfloat16) * 0.05)(D, D)),
        }
    _A_in = _A_setup()

    def _B_setup():
        B, H, Sq, Sk, D, M = 1, 32, 2048, 2048, 128, 512
        Dc = 4 * D
        return {
            "x": _w((lambda *s: torch.randn(*s, dtype=torch.bfloat16) * 0.2)(B, Sq, M)),
            "c_kv": _w((lambda *s: torch.randn(*s, dtype=torch.bfloat16) * 1.6)(B, Sk, Dc)),
            "w_q": _w((lambda *s: torch.randn(*s, dtype=torch.bfloat16) * 3.2)(M, H, D) * (M ** -0.5)),
            "w_uk": _w((lambda *s: torch.randn(*s, dtype=torch.bfloat16) * 3.2)(Dc, H, D) * (Dc ** -0.5)),
            "w_uv": _w((lambda *s: torch.randn(*s, dtype=torch.bfloat16) * 1.6)(Dc, H, D) * (Dc ** -0.5)),
            "w_o": _w((lambda *s: torch.randn(*s, dtype=torch.bfloat16) * 1.6)(H, D, M) * ((H * D) ** -0.5)),
        }
    _B_in = _B_setup()

    return {
        "A_x": _A_in["x"],
        "A_wqkv": _A_in["wqkv"],
        "A_wo": _A_in["wo"],
        "B_x": _B_in["x"],
        "B_c_kv": _B_in["c_kv"],
        "B_w_q": _B_in["w_q"],
        "B_w_uk": _B_in["w_uk"],
        "B_w_uv": _B_in["w_uv"],
        "B_w_o": _B_in["w_o"],
    }

def reference(A_x, A_wqkv, A_wo, B_x, B_c_kv, B_w_q, B_w_uk, B_w_uv, B_w_o):
    def _A_ref(x, wqkv, wo):
        B, S, D = x.shape
        H = 32; Dh = D // H
        W, dil = 8, 2
        qkv = (lambda x, *d: x.permute(*d))((x @ wqkv).reshape(B, S, 3, H, Dh), 2, 0, 3, 1, 4)
        q, k, v = qkv[0], qkv[1], qkv[2]
        scale = Dh ** -0.5
        pos = torch.arange(S)
        off = torch.arange(W) * dil
        idx = pos[:, None] - off[None, :]
        mask = idx >= 0
        idx_c = torch.where(mask, idx, 0).reshape(-1)
        kg = k[:, :, idx_c, :].reshape(B, H, S, W, Dh)
        vg = v[:, :, idx_c, :].reshape(B, H, S, W, Dh)
        logits = torch.einsum("bhsd,bhswd->bhsw", q, kg) * scale
        logits = torch.where(mask[None, None, :, :], logits, -1e9)
        attn = _softmax(logits, axis=-1)
        o = torch.einsum("bhsw,bhswd->bhsd", attn, vg)
        return (lambda x, *d: x.permute(*d))(o, 0, 2, 1, 3).reshape(B, S, D) @ wo

    def _B_ref(x, c_kv, w_q, w_uk, w_uv, w_o):
        B, Sq, M = x.shape[0], x.shape[1], x.shape[2]
        Sk = c_kv.shape[1]
        H, D = w_q.shape[1], w_q.shape[2]
        q = torch.einsum("bqm,mhd->bhqd", x, w_q)
        k = torch.einsum("bkc,chd->bhkd", c_kv, w_uk)
        v = torch.einsum("bkc,chd->bhkd", c_kv, w_uv)
        scores = torch.einsum("bhqd,bhkd->bhqk", q, k) * (D ** -0.5)
        off = Sk - Sq
        qi = torch.arange(Sq)[:, None]
        kj = torch.arange(Sk)[None, :]
        cmask = kj <= (qi + off)
        scores = torch.where(cmask[None, None], scores, -1e9)
        p = _softmax(scores, axis=-1)
        ctx = torch.einsum("bhqk,bhkd->bhqd", p, v)
        return torch.einsum("bhqd,hdm->bqm", ctx, w_o)

    a = _A_ref(A_x, A_wqkv, A_wo)
    b = _B_ref(B_x, B_c_kv, B_w_q, B_w_uk, B_w_uv, B_w_o)
    return torch.concatenate([a, b], axis=-1)
```

```python
import math
WS_Q = 0
WS_KV = 16 << 20
WS_C = 48 << 20
WS_END = 64 << 20
OOB = 0x40000000
NEG_BIG = 0xf149f2ca
def f2u(x):
    import struct
    return struct.unpack('<I', struct.pack('<f', x))[0]

def vr(b, n=4): return f"v[{b}:{b+n-1}]" if n > 1 else f"v{b}"
def ar(b, n=4): return f"a[{b}:{b+n-1}]" if n > 1 else f"a{b}"
def sr(b, n=4): return f"s[{b}:{b+n-1}]" if n > 1 else f"s{b}"

class Out:
    def __init__(self): self.l = []
    def __call__(self, s):
        for x in s.split('\n'):
            x = x.strip()
            if not x: continue
            if x.endswith(':') or x.startswith('.') or x.startswith(';'): self.l.append(x)
            else: self.l.append('    ' + x)
    def ext(self, lst):
        for x in lst: self(x)
    def text(self): return '\n'.join(self.l) + '\n'

class Gaps:
    def __init__(self, mf):
        self.mf = mf; self.g = {i: [] for i in range(-1, len(mf))}
    def put(self, i, *ins):
        if i >= len(self.mf): i = len(self.mf) - 1
        self.g[i] += list(ins)
    def put_front(self, i, *ins):
        self.g[i] = list(ins) + self.g[i]
    def emit(self, o):
        o.ext(self.g[-1])
        for i, m in enumerate(self.mf):
            o(m); o.ext(self.g[i])

def mfma(d, a, b, c): return f"v_mfma_f32_16x16x32_bf16 {d}, {a}, {b}, {c}"

def srd(o, base, ptr, nrec, add=None):
    if add is None:
        o(f"s_mov_b32 s{base}, s{ptr}\ns_mov_b32 s{base+1}, s{ptr+1}")
    else:
        o(f"s_add_u32 s{base}, s{ptr}, {add}\ns_addc_u32 s{base+1}, s{ptr+1}, 0")
    o(f"s_mov_b32 s{base+2}, {nrec}\ns_mov_b32 s{base+3}, 0x20000")

def kd(name, vgpr, acc, sgpr=102):
    return f""".section .rodata,"a"
.p2align 6
.amdhsa_kernel {name}
  .amdhsa_next_free_vgpr {vgpr}
  .amdhsa_next_free_sgpr {sgpr}
  .amdhsa_accum_offset {acc}
  .amdhsa_group_segment_fixed_size 0
  .amdhsa_kernarg_size 96
  .amdhsa_user_sgpr_count 2
  .amdhsa_user_sgpr_kernarg_segment_ptr 1
  .amdhsa_system_sgpr_workgroup_id_x 1
.end_amdhsa_kernel
.text
"""

def head(name):
    return f""".globl {name}
.p2align 8
.type {name},@function
{name}:
"""

class VmQ:
    def __init__(self): self.q = []
    def add(self, tag, n=1): self.q += [tag] * n
    def wait(self, tag):
        idx = max(i for i, t in enumerate(self.q) if t == tag)
        return len(self.q) - 1 - idx

INSTR = False
def stamp(o, i):
    if globals()["INSTR"]: o(f"s_memrealtime s[{90+2*i}:{91+2*i}]")
def stamp_init(o):
    if globals()["INSTR"]: o("s_load_dwordx2 s[88:89], s[0:1], 88\ns_memrealtime s[90:91]\ns_memtime s[98:99]\ns_mov_b32 s92, 0\ns_mov_b32 s94, 0\ns_mov_b32 s83, s2\nv_lshrrev_b32 v255, 6, v0\ns_nop 0\nv_readfirstlane_b32 s82, v255")
def stamp_end(o, kidx):
    if not globals()["INSTR"]: return
    o(f"""s_waitcnt vmcnt(0) lgkmcnt(0)
    s_memrealtime s[96:97]
    s_memtime s[100:101]
    s_add_u32 s84, s88, {(128 << 20) + kidx * 65536}
    s_addc_u32 s85, s89, 0
    s_mov_b32 s86, 65536
    s_mov_b32 s87, 0x20000
    s_waitcnt lgkmcnt(0)
    s_sub_u32 s100, s100, s98
    v_mov_b32 v248, s90
    v_mov_b32 v249, s92
    v_mov_b32 v250, s94
    v_mov_b32 v251, s96
    v_mov_b32 v252, s100
    s_lshl_b32 s83, s83, 8
    s_lshl_b32 s82, s82, 5
    s_add_u32 s83, s83, s82
    v_mov_b32 v253, s83
    s_mov_b64 exec, 1
    buffer_store_dwordx4 v[248:251], v253, s[84:87], 0 offen
    buffer_store_dword v252, v253, s[84:87], 0 offen offset:16""")
```

```python
from common import *
import common

QSCALE = f2u(math.log2(math.e) / math.sqrt(128.0))
V_WD = 8
V_TR = 16
V_ST = 18
V_AD = 22; V_AR = 23
V_PK = 24
V_ACC = [40, 72]
V_W = [104, 168]
S_WAVE = 32; S_PANEL = 33; S_XCD = 34
S_WOFF = 40; S_M0 = 41; S_ST = 42; S_STOFF = 43; S_STBASE = 44; S_SC = 45; S_WBASE = 46
def X(tb, ks): return ar((tb * 16 + ks) * 4)

def tr_reads(dst, dtp, imm):
    r = []
    for ks in range(16):
        for e in range(2):
            r.append(f"ds_read_b64_tr_b16 {vr(dst + ks*4 + e*2, 2)}, v{V_TR+dtp} offset:{imm + ks*2048 + e*256}")
    return r

def epilogue(typ, acc):
    res = []
    for f in range(4):
        if typ == 'V':
            dtp, p = f >> 1, f & 1
            lo = acc + dtp * 16 + (2 * p) * 4; hi = lo + 4
        else:
            lo = acc + f * 4; hi = acc + 16 + f * 4
        va = []
        if typ == 'Q':
            for r in list(range(lo, lo + 4)) + list(range(hi, hi + 4)):
                va.append(f"v_mul_f32 v{r}, s{S_SC}, v{r}")
        pk = V_PK + f * 4
        va += [f"v_cvt_pk_bf16_f32 v{pk}, v{lo}, v{lo+1}", f"v_cvt_pk_bf16_f32 v{pk+1}, v{lo+2}, v{lo+3}",
               f"v_cvt_pk_bf16_f32 v{pk+2}, v{hi}, v{hi+1}", f"v_cvt_pk_bf16_f32 v{pk+3}, v{hi+2}, v{hi+3}"]
        st = f"buffer_store_dwordx4 {vr(pk)}, v{V_ST+f}, s[16:19], s{S_STOFF} offen"
        res.append((va, st))
    return res

def stoff(typ):
    hs = 19 if typ == 'Q' else 20
    ls = 11 if typ == 'V' else 10
    return [f"s_lshr_b32 s36, s{S_ST}, 2", f"s_lshl_b32 s36, s36, {hs}", f"s_and_b32 s37, s{S_ST}, 3",
            f"s_lshl_b32 s37, s37, {ls}", f"s_add_u32 s36, s36, s37", f"s_add_u32 s{S_STOFF}, s36, s{S_STBASE}"]

def w_dma():
    r = []
    for j in range(8):
        r.append(f"buffer_load_dwordx4 v{V_WD+j}, s[12:15], s{S_WOFF} offen offset:{(j&3)*1024} lds")
    return r

def half(typ, H):
    dtp = H & 1; par = H >> 1
    W = V_W[dtp]; acc = V_ACC[par] + dtp * 16
    mf = []
    for tb in range(4):
        for ks in range(16):
            d = vr(acc + tb * 4); c = '0' if ks == 0 else d
            if typ == 'V': mf.append(mfma(d, X(tb, ks), vr(W + ks * 4), c))
            else: mf.append(mfma(d, vr(W + ks * 4), X(tb, ks), c))
    g = Gaps(mf)
    if H == 0: rd = tr_reads(V_W[1], 1, 0)
    elif H == 1: rd = tr_reads(V_W[0], 0, 32768)
    elif H == 2: rd = tr_reads(V_W[1], 1, 32768)
    else: rd = tr_reads(V_W[0], 0, 0)
    if H in (1, 3):
        g.put(-1, "s_waitcnt vmcnt(24) lgkmcnt(0)", "s_barrier")
    else:
        g.put(-1, "s_waitcnt lgkmcnt(0)")
    if H == 3:
        g.put(0, f"v_xor_b32 v{V_TR}, 0x10000, v{V_TR}", f"v_xor_b32 v{V_TR+1}, 0x10000, v{V_TR+1}")
    free = []
    k = 0
    for gp in range(1, 64):
        if gp % 3 != 0 and k < 32:
            g.put(gp, rd[k]); k += 1
        else: free.append(gp)
    if H in (0, 2):
        ep = epilogue(typ, V_ACC[1 - par])
        so = stoff(typ)
        for i, x in enumerate(so): g.put_front(1 + i, x)
        if par == 0:
            g.put_front(7, f"s_cmp_lt_i32 s{S_ST}, 0"); g.put_front(8, f"s_cselect_b32 s{S_STOFF}, s47, s{S_STOFF}")
        g.put_front(9, f"s_add_u32 s{S_ST}, s{S_ST}, 1")
        seq = []
        for va, st in ep: seq += [('v', x) for x in va] + [('s', st)]
        gp = 10
        for kind, x in seq:
            if kind == 's':
                while gp not in free or g.g[gp]: gp += 1
                g.put(gp, x); gp += 1
            else:
                cap = 2 if gp in free else 1
                nv = sum(1 for y in g.g[gp] if y.startswith('v_'))
                if nv >= cap: gp += 1
                g.put(gp, x)
        assert gp < 64, gp
    else:
        d = w_dma()
        fr = [x for x in free if x >= 3]
        add = 32768 if H == 3 else 0
        g.put_front(1, f"s_add_u32 m0, s{S_M0}, {add}")
        for j in range(8):
            if j == 4: g.put_front(fr[j] - 1, f"s_add_u32 m0, s{S_M0}, {add + 4096}")
            g.put(fr[j], d[j])
        last = fr[7]
        g.put_front(last + 1, f"s_add_u32 s{S_WBASE}, s{S_WBASE}, 64")
        g.put_front(last + 2, f"s_cmp_lt_u32 s{S_ST}, 11" if H == 1 else f"s_cmp_lt_u32 s{S_ST}, 11")
        g.put_front(last + 3, f"s_cselect_b32 s{S_WOFF}, s{S_WBASE}, s47")
        if H == 3:
            g.put_front(last + 4, f"s_xor_b32 s{S_M0}, s{S_M0}, 0x10000")
            g.put_front(last + 5, f"s_cmp_lt_u32 s{S_ST}, 15")
    return g

def proj(o, typ):
    L = f"K1{typ}"
    o(f"{L}:")
    act = 20 if typ == 'Q' else 22
    wp = {'Q': 24, 'K': 26, 'V': 28}[typ]
    srd(o, 8, act, 2 << 20); srd(o, 12, wp, 4 << 20); srd(o, 16, 30, WS_END)
    o(f"s_mov_b32 s47, {OOB}")
    o(f"s_mov_b32 s{S_SC}, {QSCALE}")
    o(f"""v_and_b32 v1, 63, v0
    v_lshrrev_b32 v2, 2, v1
    v_lshrrev_b32 v3, 5, v1
    v_lshlrev_b32 v3, 1, v3
    v_and_b32 v4, 3, v1
    v_xor_b32 v3, v3, v4
    v_lshlrev_b32 v3, 4, v3""")
    o(f"s_lshl_b32 s36, s{S_WAVE}, 20\nv_lshl_add_u32 v5, v2, 13, v3\nv_add_u32 v5, s36, v5")
    for j in range(8):
        o(f"v_add_u32 v{V_WD+j}, {j*131072 - (j&3)*1024 + 0}, v5" if j else f"v_mov_b32 v{V_WD}, v5")
    o(f"s_lshl_b32 s{S_WBASE}, s{S_XCD}, 10\ns_mov_b32 s{S_WOFF}, s{S_WBASE}\ns_lshl_b32 s{S_M0}, s{S_WAVE}, 13")
    q = VmQ()
    def wd(slot, tag):
        d = w_dma()
        o(f"s_add_u32 m0, s{S_M0}, {slot*32768}\ns_nop 0"); o.ext(d[:4])
        o(f"s_add_u32 m0, s{S_M0}, {slot*32768+4096}\ns_nop 0"); o.ext(d[4:])
        o(f"s_add_u32 s{S_WBASE}, s{S_WBASE}, 64\ns_mov_b32 s{S_WOFF}, s{S_WBASE}")
        q.add(tag, 8)
    wd(0, 'D0')
    o(f"v_lshl_add_u32 v{V_AD}, v2, 10, v3")
    o(f"s_lshl_b32 s38, s{S_PANEL}, 18\ns_lshl_b32 s39, s{S_WAVE}, 16\ns_add_u32 s38, s38, s39")
    o(f"s_mul_i32 s39, s{S_WAVE}, 24576\ns_add_u32 s39, s39, 65536")
    def ad(gi):
        tb, k0 = gi >> 1, 8 * (gi & 1)
        for k in range(8):
            o(f"s_add_u32 m0, s39, {(gi % 3) * 8192 + k * 1024}")
            o(f"s_add_u32 s36, s38, {tb * 16384 + (k0 + k) * 64}")
            o(f"buffer_load_dwordx4 v{V_AD}, s[8:11], s36 offen lds")
        q.add(f'G{gi}', 8)
    ad(0); ad(1); ad(2)
    wd(1, 'D1')
    o(f"""v_and_b32 v4, 15, v1
    v_lshrrev_b32 v5, 4, v1
    v_lshrrev_b32 v6, 3, v4
    v_lshlrev_b32 v6, 1, v6
    v_xor_b32 v6, v6, v5
    v_lshl_add_u32 v6, v4, 2, v6
    v_lshlrev_b32 v6, 4, v6
    v_add_u32 v{V_AR}, s39, v6""")
    o(f"""v_bfe_u32 v6, v1, 2, 2
    v_lshl_add_u32 v6, v5, 3, v6
    v_lshlrev_b32 v6, 6, v6
    v_and_b32 v7, 3, v1
    v_lshl_add_u32 v6, v7, 3, v6
    v_and_b32 v7, 1, v5
    v_lshl_add_u32 v{V_TR}, v7, 5, v6
    v_xor_b32 v{V_TR+1}, 32, v{V_TR}""")
    o("v_lshlrev_b32 v6, 4, v1")
    if typ == 'K': parts = [(tb >> 1) * 16384 + (tb & 1) * 4096 for tb in range(4)]
    elif typ == 'V': parts = [8192 + (f & 1) * 16384 + (f >> 1) * 1024 for f in range(4)]
    else: parts = [tb * 4096 for tb in range(4)]
    for f in range(4): o(f"v_add_u32 v{V_ST+f}, {parts[f]}, v6")
    if typ == 'Q':
        o(f"s_lshl_b32 s36, s{S_XCD}, 21\ns_lshl_b32 s37, s{S_PANEL}, 16\ns_add_u32 s36, s36, s37\ns_lshl_b32 s37, s{S_WAVE}, 14\ns_add_u32 s{S_STBASE}, s36, s37")
    else:
        o(f"s_lshl_b32 s36, s{S_XCD}, 22\ns_lshl_b32 s37, s{S_PANEL}, 17\ns_add_u32 s36, s36, s37\ns_lshl_b32 s37, s{S_WAVE}, 15\ns_add_u32 s36, s36, s37\ns_add_u32 s{S_STBASE}, s36, {WS_KV}")
    o(f"s_mov_b32 s{S_ST}, -1")
    for r in range(32): o(f"v_mov_b32 v{V_ACC[1]+r}, 0")
    for gi in range(8):
        o(f"s_waitcnt vmcnt({q.wait(f'G{gi}')})")
        tb, k0 = gi >> 1, 8 * (gi & 1)
        for k in range(8):
            o(f"ds_read_b128 {X(tb, k0+k)}, v{V_AR} offset:{(gi % 3) * 8192 + k * 1024}")
        if gi + 3 < 8:
            o("s_waitcnt lgkmcnt(0)"); ad(gi + 3)
    o("s_waitcnt lgkmcnt(0)\ns_barrier")
    stamp(o, 1)
    wd(2, 'D2'); wd(3, 'D3')
    o.ext(tr_reads(V_W[0], 0, 0))
    o(f".p2align 3\n{L}_loop:")
    for H in range(4): half(typ, H).emit(o)
    o(f"s_cbranch_scc1 {L}_loop")
    stamp(o, 2)
    o.ext(stoff(typ)); o("s_nop 4")
    for va, st in epilogue(typ, V_ACC[1]):
        o.ext(va); o(st)
    o("s_waitcnt lgkmcnt(0)")
    stamp_end(o, 0)
    o("s_endpgm")

def k1(o, name, a_part=None):
    o(head(name))
    o(f"""s_cmp_ge_u32 s2, 256
    s_cbranch_scc1 K1_end""")
    stamp_init(o)
    o(f"""
    s_load_dwordx2 s[20:21], s[0:1], 24
    s_load_dwordx2 s[22:23], s[0:1], 32
    s_load_dwordx2 s[24:25], s[0:1], 40
    s_load_dwordx2 s[26:27], s[0:1], 48
    s_load_dwordx2 s[28:29], s[0:1], 56
    s_load_dwordx2 s[30:31], s[0:1], 88
    s_load_dwordx2 s[48:49], s[0:1], 0
    s_load_dwordx2 s[50:51], s[0:1], 8
    s_load_dwordx2 s[52:53], s[0:1], 16
    s_load_dwordx2 s[54:55], s[0:1], 72
    v_lshrrev_b32 v1, 6, v0
    s_and_b32 s{S_XCD}, s2, 7
    v_readfirstlane_b32 s{S_WAVE}, v1
    s_lshr_b32 s35, s2, 3
    s_and_b32 s{S_PANEL}, s35, 7
    s_lshr_b32 s35, s35, 3
    s_waitcnt lgkmcnt(0)
    s_cmp_eq_u32 s35, 1
    s_cbranch_scc1 K1V
    s_cmp_eq_u32 s35, 2
    s_cbranch_scc1 K1Q
    s_cmp_eq_u32 s35, 3
    s_cbranch_scc1 K1A""")
    for t in 'KVQ': proj(o, t)
    o("K1A:")
    if a_part: a_part(o)
    o("K1_end:\ns_endpgm")
    o(kd(name, 512, 256))
```

```python
from common import *
A_, B_, C_, D_ = 0, 1, 2, 3
def Q(b, s): return ar((b * 4 + s) * 4)
def K(t, s): return ar(64 + (t * 4 + s) * 4)
def V(dt): return ar(96 + dt * 4)
def Lr(b): return 128 + b * 4
ONES = ar(144)
def S(b, t): return 16 + b * 8 + t * 4
V_E = 48
def P(b): return 64 + b * 4
def CI(b, t): return 80 + b * 8 + t * 4
V_M = 112
V_T = 116
def O(b, dt): return 128 + b * 32 + dt * 4
V_L16 = 1; V_DMA = 2; V_VA = 3; V_KA = 4
S_W = 20; S_N = 21; S_US = 22; S_UL = 23; S_USM = 24; S_ULM = 25; S_VS = 26; S_PREV = 27; S_SOFF = 28; S_W4K = 29
S_BM = 30
S_T = 32; S_CL = 34; S_CS = 35; S_FL = 36
S_THR = 40; S_PP = 41

def exps(b, e0): return [f"v_exp_f32 v{e0+i}, v{S(b,0)+i}" for i in range(8)]
def cvts(b, e0): return [f"v_cvt_pk_bf16_f32 v{P(b)+i}, v{e0+2*i}, v{e0+2*i+1}" for i in range(4)]
def qk(b):
    r = []
    for t in range(2):
        for s in range(4):
            r.append(mfma(vr(S(b, t)), K(t, s), Q(b, s), vr(CI(b, t)) if s == 0 else vr(S(b, t))))
    return r
def pv(b):
    return [mfma(vr(O(b, dt)), V(dt), vr(P(b)), vr(O(b, dt))) for dt in range(8)] + [mfma(ar(Lr(b)), ONES, vr(P(b)), ar(Lr(b)))]
def vreads(): return [f"ds_read_b128 {V(dt)}, v{V_VA} offset:{8192 + dt*1024}" for dt in range(8)]
def kreads(): return [f"ds_read_b128 {K(i>>2, i&3)}, v{V_KA} offset:{i*1024}" for i in range(8)]
def dmas(): return [f"buffer_load_dwordx4 v{V_DMA}, s[8:11], s{S_SOFF} offen offset:{j*1024} lds" for j in range(4)]
uid = [0]
def barblk(vm=12):
    uid[0] += 1
    l = f"K2_nb{uid[0]}"
    return [f"s_bitcmp1_b64 s[{S_BM}:{S_BM+1}], s{S_N}", f"s_cbranch_scc0 {l}", f"s_waitcnt vmcnt({vm})", "s_barrier", f"{l}:"]
def upd():
    return [f"s_add_u32 s{S_SOFF}, s{S_SOFF}, 16384",
            f"s_mov_b32 s{S_PP}, s{S_PREV}",
            f"s_mov_b32 s{S_PREV}, s{S_VS}",
            f"s_add_u32 s{S_VS}, s{S_VS}, 16384",
            f"s_and_b32 s{S_VS}, s{S_VS}, 0x1ffff",
            f"s_add_u32 s{S_N}, s{S_N}, 1"]
def kaddr():
    return [f"s_add_u32 s{S_T}, s{S_VS}, 32768", f"s_and_b32 s{S_T}, s{S_T}, 0x1ffff", f"v_add_u32 v{V_KA}, s{S_T}, v{V_L16}"]
SETM0 = f"s_add_u32 m0, s{S_PP}, s{S_W4K}"
VADDR = f"v_add_u32 v{V_VA}, s{S_VS}, v{V_L16}"

def period(o, typ):
    E0, E1 = V_E, V_E + 8
    ka = kaddr(); up = upd(); dm = dmas()
    if typ == 'D':
        g = Gaps(qk(A_) + qk(C_) + qk(B_) + qk(D_))
        g.put(-1, "s_waitcnt lgkmcnt(0)")
        for i, x in enumerate(vreads()): g.put(i, x)
        for i, x in enumerate(exps(B_, E0) + exps(D_, E1)): g.put(8 + i, x)
        for i, x in enumerate(cvts(B_, E0) + cvts(D_, E1)): g.put(24 + i // 2, x)
        g.put_front(8, ka[0]); g.put_front(9, ka[1]); g.put_front(27, SETM0)
        for i, x in enumerate(dm): g.put(28 + i, x)
        g.put(28, ka[2])
        g.emit(o)
        g = Gaps(pv(A_) + pv(C_) + pv(B_) + pv(D_))
        g.put(-1, "s_waitcnt lgkmcnt(0)", *barblk())
        for i, x in enumerate(kreads()): g.put(i, x)
        for i, x in enumerate(exps(A_, E0) + exps(C_, E1)): g.put(8 + i, x)
        for i, x in enumerate(cvts(A_, E0) + cvts(C_, E1)): g.put(24 + i // 2, x)
        for i, x in enumerate(up): g.put_front(8 + i, x)
        g.put(28, VADDR)
        g.put(29, f"s_cmp_lt_i32 s{S_N}, s{S_USM}")
        g.put(35, "s_cbranch_scc1 K2_D", "s_branch K2_disp")
        g.emit(o)
        return
    g = Gaps(qk(A_) + qk(B_) if typ != 'F' else [])
    if typ != 'F':
        g.put(-1, "s_waitcnt lgkmcnt(6)")
        g.put(1, "s_waitcnt lgkmcnt(4)"); g.put(3, "s_waitcnt lgkmcnt(2)"); g.put(5, "s_waitcnt lgkmcnt(0)")
        for i, x in enumerate(exps(B_, E0)): g.put(i, x)
        for i, x in enumerate(vreads()): g.put(8 + i, x)
        for i, x in enumerate(cvts(B_, E0)): g.put(9 + i, x)
        g.put_front(0, ka[0]); g.put_front(2, ka[1]); g.put_front(4, SETM0); g.put(13, ka[2])
        if typ == 'T':
            for i, x in enumerate(exps(D_, E1)): g.put(8 + i, x)
            g.put(15, "s_nop 0", *cvts(D_, E1))
    else:
        g.put(-1, "s_waitcnt lgkmcnt(0)", *vreads()); g.put(-1, *exps(B_, E0)); g.put(-1, "s_nop 0", *cvts(B_, E0))
    g.emit(o)
    blks = [A_, C_, B_, D_] if typ == 'T' else [A_, B_]
    mf = []
    for b in blks: mf += pv(b)
    g = Gaps(mf)
    g.put(-1, "s_waitcnt lgkmcnt(6)")
    g.put(1, "s_waitcnt lgkmcnt(4)"); g.put(3, "s_waitcnt lgkmcnt(2)"); g.put(5, "s_waitcnt lgkmcnt(0)")
    if typ != 'F':
        for i, x in enumerate(dm): g.put(2 * i, x)
        for i, x in enumerate(exps(A_, E0)): g.put(i, x)
        g.put(8, *barblk())
        for i, x in enumerate(kreads()): g.put(9 + i, x)
        for i, x in enumerate(cvts(A_, E0)): g.put(9 + i, x)
        for i, x in enumerate(up): g.put_front(9 + i, x)
        g.put(15, VADDR)
        if typ == 'S':
            g.put_front(16, f"s_cmp_lt_i32 s{S_N}, s{S_ULM}")
            g.put(17, "s_cbranch_scc1 K2_S", "s_branch K2_disp")
    else:
        g.put(8, *barblk(0))
    g.emit(o)

def epilogue(o, blks, s_c, s_fl):
    o("s_nop 7")
    for b in blks:
        o(f"v_accvgpr_read_b32 v{V_T+b}, a{Lr(b)}")
    for b in blks:
        o(f"v_cmp_nle_f32 vcc, v{V_T+b}, v{V_T+4}")
        o(f"v_rcp_f32 v{V_T+b}, v{V_T+b}")
        o(f"s_or_b64 s[{s_fl}:{s_fl+1}], s[{s_fl}:{s_fl+1}], vcc")
    for k, b in enumerate(blks):
        if k == 1: o(f"s_add_u32 s{s_c}, s{s_c}, 131072")
        for s in range(4):
            base = O(b, 2 * s)
            for r in range(8): o(f"v_mul_f32 v{base+r}, v{V_T+b}, v{base+r}")
            for r in range(4): o(f"v_cvt_pk_bf16_f32 v{base+r}, v{base+2*r}, v{base+2*r+1}")
            o(f"buffer_store_dwordx4 {vr(base)}, v{V_L16}, s[16:19], s{s_c} offen offset:{s*1024}")

def maskblk(o, b0):
    for r in range(4):
        o(f"v_min_f32 v{CI(b0,0)+r}, v{CI(b0,0)+r}, v{V_M+r}")
        o(f"v_mov_b32 v{CI(b0,1)+r}, {NEG_BIG:#x}")
        o(f"v_min_f32 v{CI(b0+1,1)+r}, v{CI(b0+1,1)+r}, v{V_M+r}")

def k2(o, name):
    o(head(name))
    o("s_cmp_ge_u32 s2, 256\ns_cbranch_scc1 K2_end")
    stamp_init(o)
    o(f"""s_load_dwordx2 s[4:5], s[0:1], 88
    v_lshrrev_b32 v5, 6, v0
    v_and_b32 v6, 63, v0
    v_readfirstlane_b32 s{S_W}, v5
    v_lshlrev_b32 v{V_L16}, 4, v6
    v_lshlrev_b32 v{V_DMA}, 4, v0
    v_and_b32 v7, 0xc00, v{V_DMA}
    v_lshlrev_b32 v7, 2, v7
    v_add_u32 v{V_DMA}, v7, v{V_L16}
    s_and_b32 s3, s2, 7
    s_lshr_b32 s6, s2, 3
    s_and_b32 s7, s6, 3
    s_lshl2_add_u32 s3, s3, s7
    s_lshr_b32 s6, s6, 2
    s_lshl_b32 s6, s6, 2
    s_add_u32 s{S_US}, s6, s{S_W}
    s_sub_u32 s7, 64, s6
    s_add_u32 s{S_UL}, s7, s{S_W}
    s_sub_u32 s{S_UL}, s{S_UL}, 4
    s_sub_u32 s{S_USM}, s{S_US}, 1
    s_sub_u32 s{S_ULM}, s{S_UL}, 1
    s_lshl_b32 s{S_W4K}, s{S_W}, 12
    s_sub_u32 s{S_T}, s7, 3
    s_bfm_b64 s[{S_BM}:{S_BM+1}], s{S_T}, 0
    s_and_b32 s{S_BM}, s{S_BM}, 0x55555555
    s_and_b32 s{S_BM+1}, s{S_BM+1}, 0x55555555
    s_lshl_b32 s10, s7, 14
    s_lshl_b32 s{S_T}, s3, 20
    s_add_u32 s{S_T}, s{S_T}, {WS_KV}
    s_lshl_b32 s{S_T+1}, s3, 19
    s_waitcnt lgkmcnt(0)
    s_add_u32 s8, s4, s{S_T}
    s_addc_u32 s9, s5, 0
    s_mov_b32 s11, 0x20000""")
    srd(o, 12, 4, 1 << 19, add=f"s{S_T+1}")
    srd(o, 16, 4, 16 << 20, add=WS_C)
    o(f"s_mov_b32 s{S_SOFF}, 0\ns_mov_b32 m0, s{S_W4K}\ns_lshl_b32 s{S_T}, s{S_UL}, 13")
    o.ext(dmas())
    for k, (b0, su) in enumerate(((A_, S_UL), (C_, S_US))):
        if k: o(f"s_lshl_b32 s{S_T}, s{su}, 13")
        o(f"s_add_u32 s{S_T+1}, s{S_T}, 4096")
        for hb in range(2):
            for s in range(4):
                o(f"buffer_load_dwordx4 {Q(b0+hb, s)}, v{V_L16}, s[12:15], s{S_T+hb} offen offset:{s*1024}")
    for u in range(1, 6):
        o(f"s_add_u32 s{S_SOFF}, s{S_SOFF}, 16384\ns_add_u32 m0, s{S_W4K}, {u*16384}\ns_nop 0")
        o.ext(dmas())
    o(f"s_add_u32 s{S_SOFF}, s{S_SOFF}, 16384")
    o(f"""s_lshl_b32 s{S_T}, s3, 12
    s_lshl_b32 s{S_CL}, s{S_UL}, 18
    s_add_u32 s{S_CL}, s{S_CL}, s{S_T}
    s_lshl_b32 s{S_CS}, s{S_US}, 18
    s_add_u32 s{S_CS}, s{S_CS}, s{S_T}
    s_mov_b64 s[{S_FL}:{S_FL+1}], 0
    s_mov_b64 s[{S_FL+2}:{S_FL+3}], 0
    s_mov_b32 s{S_N}, 0
    s_mov_b32 s{S_VS}, 0
    s_mov_b32 s{S_PREV}, {7*16384}
    s_mov_b32 s{S_PP}, {6*16384}
    v_mov_b32 v{V_VA}, v{V_L16}
    v_mov_b32 v{V_KA}, v{V_L16}
    v_mov_b32 v{V_T+4}, {f2u(2.0**32):#x}""")
    o(f"v_and_b32 v7, 15, v6\nv_lshrrev_b32 v8, 4, v6\nv_lshlrev_b32 v8, 2, v8\nv_mov_b32 v9, 0x7f7fffff\nv_mov_b32 v10, {NEG_BIG:#x}")
    for r in range(4):
        o(f"v_add_u32 v11, {r}, v8\nv_cmp_gt_u32 vcc, v11, v7\ns_nop 1\nv_cndmask_b32 v{V_M+r}, v9, v10, vcc")
    for r in range(128): o(f"v_mov_b32 v{128+r}, 0")
    for r in range(32): o(f"v_mov_b32 v{80+r}, 0")
    o("v_mov_b32 v9, 0x3f803f80")
    for r in range(16): o(f"v_accvgpr_write_b32 a{128+r}, 0")
    for r in range(4): o(f"v_accvgpr_write_b32 a{144+r}, v9")
    o(f"s_cmp_lg_u32 s{S_US}, 0\ns_cbranch_scc1 K2_nm0")
    maskblk(o, C_)
    o("K2_nm0:")
    o("s_waitcnt vmcnt(16)\ns_barrier")
    stamp(o, 1)
    o.ext(kreads())
    o(f"v_add_u32 v{V_KA}, 16384, v{V_L16}")
    o("s_waitcnt lgkmcnt(0)")
    for b in (A_, C_, B_, D_): o.ext(qk(b))
    o.ext(kreads())
    o("s_nop 0")
    for b in (A_, C_, B_, D_):
        s0 = S(b, 0); t = V_T + b; u = V_E + b
        o(f"""v_max3_f32 v{t}, v{s0}, v{s0+1}, v{s0+2}
        v_max3_f32 v{t}, v{t}, v{s0+3}, v{s0+4}
        v_max3_f32 v{t}, v{t}, v{s0+5}, v{s0+6}
        v_max_f32 v{t}, v{t}, v{s0+7}
        v_mov_b32 v{u}, v{t}""")
    o("s_nop 1")
    for b in range(4): o(f"v_permlane32_swap_b32 v{V_T+b}, v{V_E+b}")
    for b in range(4): o(f"v_max_f32 v{V_T+b}, v{V_T+b}, v{V_E+b}\nv_mov_b32 v{V_E+b}, v{V_T+b}")
    o("s_nop 1")
    for b in range(4): o(f"v_permlane16_swap_b32 v{V_T+b}, v{V_E+b}")
    for b in range(4): o(f"v_max_f32 v{V_T+b}, v{V_T+b}, v{V_E+b}")
    for b in (A_, C_, B_, D_):
        for r in range(8): o(f"v_sub_f32 v{S(b,0)+r}, v{S(b,0)+r}, v{V_T+b}")
    o.ext(exps(A_, V_E) + exps(C_, V_E + 8))
    for b in range(4):
        for r in range(8): o(f"v_sub_f32 v{CI(b,0)+r}, v{CI(b,0)+r}, v{V_T+b}")
    o.ext(cvts(A_, V_E) + cvts(C_, V_E + 8))
    o(f"""K2_disp:
    s_add_u32 s{S_T}, s{S_N}, 1
    s_cmp_lg_u32 s{S_T}, s{S_US}
    s_cbranch_scc1 K2_d1""")
    maskblk(o, C_)
    o(f"K2_d1:\ns_cmp_lg_u32 s{S_T}, s{S_UL}\ns_cbranch_scc1 K2_d2")
    maskblk(o, A_)
    o(f"""K2_d2:
    s_cmp_eq_u32 s{S_N}, s{S_US}
    s_cbranch_scc1 K2_T
    s_cmp_eq_u32 s{S_N}, s{S_UL}
    s_cbranch_scc1 K2_F
    s_cmp_gt_u32 s{S_N}, s{S_US}
    s_cbranch_scc1 K2_S
    .p2align 3
    K2_D:""")
    period(o, 'D')
    o(".p2align 3\nK2_S:"); period(o, 'S')
    o("K2_T:"); period(o, 'T')
    epilogue(o, [C_, D_], S_CS, S_FL + 2)
    o("s_branch K2_disp")
    o("K2_F:"); period(o, 'F')
    stamp(o, 2)
    epilogue(o, [A_, B_], S_CL, S_FL)
    stamp_end(o, 1)
    o("K2_end:\ns_endpgm")
    o(kd(name, 512, 256))
```

```python
from common import *
V_CO = 4
V_WO = 8
V_TR = 12
def WF(buf, T): return 32 + buf * 16 + T * 4
def ACC(T, tb): return 64 + (T * 4 + tb) * 4
def CX(set_, tb): return 128 + set_ * 16 + tb * 4
S_W = 20; S_CA = 21; S_WA = 22; S_CB = 23; S_WB = 24; S_IT = 25; S_M0 = 26; S_T = 27

def loads(st, sc, sw, kk8):
    r = [f"s_add_u32 s{S_T}, s{sc}, {(kk8 >> 2) * 4096}", f"s_add_u32 s{S_T+1}, s{sw}, {kk8 * 32768}", f"s_add_u32 m0, s{S_M0}, {st * 4096}"]
    for tb in range(4):
        r.append(f"buffer_load_dwordx4 {vr(CX(st, tb))}, v{V_CO+tb}, s[8:11], s{S_T} offen offset:{(kk8 & 3) * 1024}")
    for j in range(4):
        r.append(f"buffer_load_dwordx4 v{V_WO+j}, s[12:15], s{S_T+1} offen offset:{j*1024} lds")
    return r
def trs(buf, st):
    r = []
    for T in range(4):
        for e in range(2):
            r.append(f"ds_read_b64_tr_b16 {vr(WF(buf, T) + 2 * e, 2)}, v{V_TR+T} offset:{st * 4096 + e * 2048}")
    return r

def k3(o, name):
    o(head(name))
    o("s_cmp_ge_u32 s2, 256\ns_cbranch_scc1 K3_end")
    stamp_init(o)
    o(f"""s_load_dwordx2 s[4:5], s[0:1], 88
    s_load_dwordx2 s[6:7], s[0:1], 64
    s_load_dwordx2 s[30:31], s[0:1], 72
    v_lshrrev_b32 v2, 6, v0
    v_and_b32 v1, 63, v0
    v_readfirstlane_b32 s{S_W}, v2
    s_and_b32 s3, s2, 7
    s_lshr_b32 s32, s2, 3
    s_and_b32 s33, s32, 3
    s_lshl2_add_u32 s3, s3, s33
    s_lshr_b32 s32, s32, 2
    v_lshlrev_b32 v{V_CO}, 4, v1
    v_add_u32 v{V_CO+1}, 0x20000, v{V_CO}
    v_add_u32 v{V_CO+2}, 0x40000, v{V_CO}
    v_add_u32 v{V_CO+3}, 0x60000, v{V_CO}
    v_lshrrev_b32 v2, 3, v1
    v_and_b32 v3, 6, v2
    v_and_b32 v16, 7, v1
    v_xor_b32 v3, v3, v16
    v_lshlrev_b32 v3, 4, v3
    v_lshl_add_u32 v{V_WO}, v2, 10, v3
    v_add_u32 v{V_WO+1}, {8192-1024}, v{V_WO}
    v_add_u32 v{V_WO+2}, {2*(8192-1024)}, v{V_WO}
    v_add_u32 v{V_WO+3}, {3*(8192-1024)}, v{V_WO}
    s_lshl_b32 s{S_CA}, s3, 19
    s_lshl_b32 s{S_M0}, s{S_W}, 15
    s_add_u32 s{S_CA}, s{S_CA}, s{S_M0}
    s_lshl_b32 s{S_WA}, s{S_W}, 20
    s_lshl_b32 s33, s32, 7
    s_add_u32 s{S_WA}, s{S_WA}, s33
    s_waitcnt lgkmcnt(0)""")
    srd(o, 8, 4, 16 << 20, add=WS_C); srd(o, 12, 6, 4 << 20); srd(o, 16, 30, 4 << 20)
    for kk in range(7): o.ext(loads(kk, S_CA, S_WA, kk))
    o(f"""v_lshrrev_b32 v2, 2, v1
    v_bfe_u32 v3, v2, 1, 2
    v_lshlrev_b32 v3, 5, v3
    v_lshl_add_u32 v3, v2, 7, v3
    v_and_b32 v16, 3, v1
    v_lshl_add_u32 v3, v16, 3, v3
    v_add_u32 v{V_TR}, s{S_M0}, v3
    v_xor_b32 v{V_TR+1}, 32, v{V_TR}
    v_xor_b32 v{V_TR+2}, 64, v{V_TR}
    v_xor_b32 v{V_TR+3}, 96, v{V_TR}
    s_add_u32 s{S_CB}, s{S_CA}, 8192
    s_add_u32 s{S_WB}, s{S_WA}, {8*32768}
    s_mov_b32 s{S_IT}, 0""")
    for r in range(64): o(f"v_mov_b32 v{64+r}, 0")
    o("s_waitcnt vmcnt(48)")
    stamp(o, 1)
    o.ext(trs(0, 0))
    o(".p2align 3\nK3_loop:")
    for k in range(8):
        buf = k & 1
        mf = [mfma(vr(ACC(T, tb)), vr(WF(buf, T)), vr(CX(k, tb)), vr(ACC(T, tb))) for T in range(4) for tb in range(4)]
        g = Gaps(mf)
        ld = loads((k + 7) % 8, S_CA, S_WA, 7) if k == 0 else loads((k + 7) % 8, S_CB, S_WB, k - 1)
        g.put(-1, "s_waitcnt lgkmcnt(0)", *ld)
        g.put(-1, "s_waitcnt vmcnt(48)")
        for i, x in enumerate(trs(1 - buf, (k + 1) % 8)): g.put(i, x)
        if k == 7:
            g.put(8, f"s_mov_b32 s{S_CA}, s{S_CB}", f"s_mov_b32 s{S_WA}, s{S_WB}")
            g.put(9, f"s_add_u32 s{S_CB}, s{S_CB}, 8192", f"s_add_u32 s{S_WB}, s{S_WB}, {8*32768}")
            g.put(10, f"s_add_u32 s{S_IT}, s{S_IT}, 1", f"s_cmp_lt_u32 s{S_IT}, 3")
            g.put(11, f"s_cselect_b32 s{S_CB}, s{S_CB}, {OOB}", f"s_cselect_b32 s{S_WB}, s{S_WB}, {OOB}")
            g.put(12, f"s_cmp_lt_u32 s{S_IT}, 4")
            g.put(15, "s_cbranch_scc1 K3_loop")
        g.emit(o)
    stamp(o, 2)
    o(f"v_lshlrev_b32 v2, 4, v1\nv_add_u32 v2, s{S_M0}, v2\ns_waitcnt vmcnt(0) lgkmcnt(0)\ns_nop 2")
    for tb in range(4):
        for T in range(4):
            o(f"ds_write_b128 v2, {vr(ACC(T, tb))} offset:{(tb * 4 + T) * 1024}")
    o(f"""v_lshrrev_b32 v3, 3, v1
    v_bfe_u32 v16, v1, 1, 2
    v_lshlrev_b32 v16, 10, v16
    v_and_b32 v17, 1, v1
    v_lshl_add_u32 v16, v17, 9, v16
    v_lshl_add_u32 v16, v3, 4, v16
    s_lshl_b32 s33, s{S_W}, 12
    v_add_u32 v16, s33, v16
    v_add_u32 v17, 0x10000, v16
    v_and_b32 v18, 7, v1
    v_lshlrev_b32 v18, 4, v18
    v_lshl_add_u32 v18, v3, 11, v18
    s_lshl_b32 s33, s3, 17
    s_lshl_b32 s34, s{S_W}, 15
    s_add_u32 s33, s33, s34
    s_lshl_b32 s34, s32, 7
    s_add_u32 s33, s33, s34
    s_add_u32 s33, s33, 1024
    s_add_u32 s34, s33, 16384
    s_waitcnt lgkmcnt(0)
    s_barrier""")
    for half in range(2):
        for ww in range(4):
            for gg in range(2):
                d = 128 + half * 32 + ww * 8 + gg * 4
                o(f"ds_read_b128 {vr(d)}, v{16 + (ww >> 1)} offset:{(ww & 1) * 32768 + gg * 256 + half * 128}")
    for half in range(2):
        b = 128 + half * 32
        o(f"s_waitcnt lgkmcnt({8 if half == 0 else 0})")
        for r in range(8): o(f"v_add_f32 v{b+r}, v{b+r}, v{b+8+r}\nv_add_f32 v{b+16+r}, v{b+16+r}, v{b+24+r}")
        for r in range(8): o(f"v_add_f32 v{b+r}, v{b+r}, v{b+16+r}")
        for r in range(4): o(f"v_cvt_pk_bf16_f32 v{b+r}, v{b+2*r}, v{b+2*r+1}")
        o(f"buffer_store_dwordx4 {vr(b)}, v18, s[16:19], s{33+half} offen")
    stamp_end(o, 2)
    o("K3_end:\ns_endpgm")
    o(kd(name, 256, 256))
```

```python
from common import *
S_WAVE = 32; S_PANEL = 33; S_XCD = 34
V_QV = 8
V_OV = 12
V_TQ = 16
V_TO = 20
V_L16 = 24; V_AD = 25; V_AR = 26; V_OUT = 27; V_ONE = 28
def WF(buf, T): return 32 + buf * 16 + T * 4
ACC = 64
def KB(h, tb): return 112 + h * 6 + tb * 2
def VB(h, tb): return 136 + h * 6 + tb * 2
def QB(h, t): return 160 + h * 4 + t * 2
V_MP = 176; V_MC = 180; V_MP1 = 184
V_S = 188
def X(tb, ks): return ar((tb * 16 + ks) * 4)
S_RING = 36; S_WC = 37; S_T = 38; S_C = 39; S_AB = 40
CSC = f2u(0.25 * math.log2(math.e))

def a_part(o):
    srd(o, 8, 48, 2 << 20); srd(o, 12, 50, 1536 * 1024); srd(o, 16, 52, 512 * 1024); srd(o, 20, 54, 4 << 20)
    o(f"""s_lshl_b32 s41, s{S_PANEL}, 3
    s_add_u32 s41, s41, s{S_XCD}
    s_lshl_b32 s{S_RING}, s{S_WAVE}, 15
    s_add_u32 s{S_RING}, s{S_RING}, 32768
    s_lshl_b32 s{S_WC}, s{S_WAVE}, 8
    s_mov_b32 s{S_C}, {CSC}
    v_and_b32 v1, 63, v0
    v_lshlrev_b32 v{V_L16}, 4, v1
    v_lshrrev_b32 v2, 3, v1
    v_and_b32 v3, 7, v1
    v_and_b32 v4, 2, v2
    v_xor_b32 v4, v4, v3
    v_lshlrev_b32 v4, 4, v4
    v_mul_u32_u24 v5, 3072, v2
    v_add_u32 v{V_QV}, v5, v4
    v_xor_b32 v4, 64, v4
    v_add_u32 v5, v5, v4
    v_add_u32 v{V_QV+1}, {8*3072-1024}, v5
    v_add_u32 v{V_QV+2}, {16*3072-2048}, v{V_QV}
    v_add_u32 v{V_QV+3}, {24*3072-3072}, v5
    v_and_b32 v4, 6, v2
    v_xor_b32 v4, v4, v3
    v_lshlrev_b32 v4, 4, v4
    v_lshl_add_u32 v{V_OV}, v2, 10, v4
    v_add_u32 v{V_OV+1}, {8192-1024}, v{V_OV}
    v_add_u32 v{V_OV+2}, {2*(8192-1024)}, v{V_OV}
    v_add_u32 v{V_OV+3}, {3*(8192-1024)}, v{V_OV}""")
    o(f"""v_lshrrev_b32 v2, 2, v1
    v_lshrrev_b32 v3, 5, v1
    v_lshlrev_b32 v3, 1, v3
    v_and_b32 v4, 3, v1
    v_xor_b32 v3, v3, v4
    v_lshlrev_b32 v3, 4, v3
    v_lshl_add_u32 v{V_AD}, v2, 10, v3
    s_lshl_b32 s{S_AB}, s41, 15
    s_sub_u32 s42, s{S_AB}, 16384
    s_cmp_eq_u32 s41, 0
    s_cselect_b32 s42, {OOB}, s42
    s_cmp_lt_u32 s{S_WAVE}, 2
    s_cselect_b32 s42, s42, s{S_AB}
    s_and_b32 s43, s{S_WAVE}, 1
    s_lshl_b32 s43, s43, 9
    s_add_u32 s42, s42, s43
    s_lshl_b32 s43, s{S_WAVE}, 13""")
    q = VmQ()
    for k in range(8):
        o(f"s_add_u32 m0, s43, {k*1024}\ns_add_u32 s{S_T}, s42, {k*64}\nbuffer_load_dwordx4 v{V_AD}, s[8:11], s{S_T} offen lds")
    o(f"s_add_u32 s42, s{S_AB}, s{S_WC}")
    for k in range(4):
        o(f"s_add_u32 m0, s{S_RING}, {7*4096 + k*1024}\ns_add_u32 s{S_T}, s42, {16384 + k*64}\nbuffer_load_dwordx4 v{V_AD}, s[8:11], s{S_T} offen lds")
    q.add('act', 12)
    passes = [('K', 0), ('V', 0), ('Q', 0), ('K', 1), ('V', 1), ('Q', 1), ('W', 0), ('W', 1)]
    def dma(G):
        typ, gq = passes[G // 16]; ks = G % 16
        if typ == 'W': off = gq * 128 + ks * 32768; sd = 16; vb = V_OV
        else: off = gq * 128 + {'Q': 0, 'K': 1024, 'V': 2048}[typ] + ks * 32 * 3072; sd = 12; vb = V_QV
        r = [f"s_add_u32 s{S_T}, s{S_WC}, {off}", f"s_add_u32 m0, s{S_RING}, {(G % 8) * 4096}", "s_nop 0"]
        r += [f"buffer_load_dwordx4 v{vb+j}, s[{sd}:{sd+3}], s{S_T} offen offset:{j*1024} lds" for j in range(4)]
        q.add(G, 4)
        return r
    def trs(G):
        typ = passes[G // 16][0]; buf = G & 1
        vb, e_off = (V_TO, 2048) if typ == 'W' else (V_TQ, 512)
        return [f"ds_read_b64_tr_b16 {vr(WF(buf, T) + 2 * e, 2)}, v{vb+T} offset:{(G % 8) * 4096 + e * e_off}" for T in range(4) for e in range(2)]
    for G in range(7): o.ext(dma(G))
    o(f"""v_and_b32 v4, 15, v1
    v_lshrrev_b32 v5, 4, v1
    v_lshrrev_b32 v6, 3, v4
    v_lshlrev_b32 v6, 1, v6
    v_xor_b32 v6, v6, v5
    v_lshl_add_u32 v6, v4, 2, v6
    v_lshlrev_b32 v{V_AR}, 4, v6
    v_bfe_u32 v6, v1, 2, 2
    v_lshl_add_u32 v7, v5, 3, v6
    v_lshlrev_b32 v7, 7, v7
    v_lshrrev_b32 v6, 1, v6
    v_and_b32 v2, 1, v5
    v_lshl_or_b32 v6, v2, 1, v6
    v_lshl_add_u32 v7, v6, 5, v7
    v_and_b32 v3, 3, v1
    v_lshl_add_u32 v7, v3, 3, v7
    v_add_u32 v{V_TQ}, s{S_RING}, v7
    v_lshrrev_b32 v2, 2, v1
    v_bfe_u32 v7, v2, 1, 2
    v_lshlrev_b32 v7, 5, v7
    v_lshl_add_u32 v7, v2, 7, v7
    v_lshl_add_u32 v7, v3, 3, v7
    v_add_u32 v{V_TO}, s{S_RING}, v7""")
    for T in range(1, 4): o(f"v_xor_b32 v{V_TQ+T}, {32*T}, v{V_TQ}\nv_xor_b32 v{V_TO+T}, {32*T}, v{V_TO}")
    o(f"v_lshlrev_b32 v6, 2, v5\nv_sub_u32 v6, v4, v6\nv_mov_b32 v7, {NEG_BIG:#x}\nv_mov_b32 v2, 0\ns_mov_b32 s44, 0xfffffff1")
    for r in range(4):
        o(f"""v_subrev_u32 v3, {r}, v6
        v_and_b32 v{V_S}, s44, v3
        v_cmp_eq_u32 vcc, 0, v{V_S}
        v_add_u32 v3, 16, v3
        v_and_b32 v{V_S}, s44, v3
        v_cndmask_b32 v{V_MC+r}, v7, v2, vcc
        v_cmp_eq_u32 vcc, 0, v{V_S}
        s_nop 1
        v_cndmask_b32 v{V_MP+r}, v7, v2, vcc""")
    o("s_cmp_eq_u32 s41, 0\ns_cselect_b32 s44, 0, -1\ns_mov_b32 s45, s44\ns_nop 0")
    for r in range(4): o(f"v_cndmask_b32 v{V_MP1+r}, v7, v{V_MP+r}, s[44:45]")
    for r in range(4): o(f"v_mov_b32 v{V_ONE+r}, 0x3f803f80")
    o(f"v_lshlrev_b32 v{V_OUT}, 11, v4\nv_lshl_add_u32 v{V_OUT}, v5, 3, v{V_OUT}\ns_lshl_b32 s46, s41, 16\ns_add_u32 s46, s46, s{S_WC}")
    o(f"s_waitcnt vmcnt({q.wait('act')})\ns_barrier")
    stamp(o, 1)
    for f in range(32): o(f"ds_read_b128 {X(f >> 4, f & 15)}, v{V_AR} offset:{f*1024}")
    o(f"v_add_u32 v2, 0x8000, v{V_AR}\nv_add_u32 v3, 0x18000, v{V_AR}")
    for ks in range(16):
        w = ks >> 2
        o(f"ds_read_b128 {X(2, ks)}, v{2 + (w >> 1)} offset:{(w & 1) * 32768 + 7*4096 + (ks & 3) * 1024}")
    o(f"s_waitcnt vmcnt({q.wait(0)})")
    o.ext(trs(0))
    o("s_waitcnt lgkmcnt(0)\ns_barrier")
    for G in range(128):
        typ, gq = passes[G // 16]; ks = G % 16; buf = G & 1
        mf = []
        if typ == 'W':
            for T in range(4):
                for tb in range(2):
                    d = vr(ACC + (T * 2 + tb) * 4); mf.append(mfma(d, vr(WF(buf, T)), X(tb, ks), d if ks else '0'))
        else:
            for T in range(4):
                for tb in ((1, 2) if typ == 'Q' else (0, 1, 2)):
                    d = vr(ACC + (T * 3 + tb) * 4)
                    if typ == 'V': mf.append(mfma(d, X(tb, ks), vr(WF(buf, T)), d if ks else '0'))
                    else: mf.append(mfma(d, vr(WF(buf, T)), X(tb, ks), d if ks else '0'))
        g = Gaps(mf)
        g.put(-1, "s_waitcnt lgkmcnt(0)")
        if G + 7 < 128: g.put(-1, *dma(G + 7))
        if G + 1 < 128:
            g.put(-1, f"s_waitcnt vmcnt({q.wait(G + 1)})")
            for i, x in enumerate(trs(G + 1)): g.put(i, x)
        g.emit(o)
        if ks != 15: continue
        o("s_nop 7")
        if typ in 'KVQ':
            for T in range(4):
                for tb in ((1, 2) if typ == 'Q' else (0, 1, 2)):
                    a = ACC + (T * 3 + tb) * 4
                    d = {'K': KB(T, tb), 'V': VB(T, tb), 'Q': QB(T, tb - 1)}[typ]
                    o(f"v_cvt_pk_bf16_f32 v{d}, v{a}, v{a+1}\nv_cvt_pk_bf16_f32 v{d+1}, v{a+2}, v{a+3}")
        if typ == 'Q': attention(o, gq)
        if typ == 'Q' and gq == 1:
            o("s_waitcnt lgkmcnt(0)\ns_barrier")
            for f in range(32): o(f"ds_read_b128 {X(f >> 4, f & 15)}, v{V_L16} offset:{f*1024}")
            stamp(o, 2)
        if typ == 'W':
            for tb in range(2):
                o(f"s_add_u32 s{S_T}, s46, {tb * 32768 + gq * 128}")
                for T in range(4):
                    a = ACC + (T * 2 + tb) * 4; d = V_S + (T * 2 + tb) * 2
                    o(f"v_cvt_pk_bf16_f32 v{d}, v{a}, v{a+1}\nv_cvt_pk_bf16_f32 v{d+1}, v{a+2}, v{a+3}")
                    o(f"buffer_store_dwordx2 {vr(d, 2)}, v{V_OUT}, s[20:23], s{S_T} offen offset:{T*32}")
                    q.add('st')
    stamp_end(o, 0)

def attention(o, gq):
    items = [(h, t) for h in range(4) for t in range(2)]
    SS = lambda i: V_S + i * 8
    o("s_nop 0")
    for i, (h, t) in enumerate(items):
        mp = V_MP1 if t == 0 else V_MP
        o(f"v_mfma_f32_16x16x16_bf16 {vr(SS(i))}, {vr(KB(h, t), 2)}, {vr(QB(h, t), 2)}, {vr(mp)}")
        o(f"v_mfma_f32_16x16x16_bf16 {vr(SS(i)+4)}, {vr(KB(h, t+1), 2)}, {vr(QB(h, t), 2)}, {vr(V_MC)}")
    o("s_nop 5")
    M = ACC; U = ACC + 8
    for i in range(8):
        s0 = SS(i)
        o(f"""v_max3_f32 v{M+i}, v{s0}, v{s0+1}, v{s0+2}
        v_max3_f32 v{M+i}, v{M+i}, v{s0+3}, v{s0+4}
        v_max3_f32 v{M+i}, v{M+i}, v{s0+5}, v{s0+6}
        v_max_f32 v{M+i}, v{M+i}, v{s0+7}
        v_mov_b32 v{U+i}, v{M+i}""")
    for sw in ('32', '16'):
        o("s_nop 1")
        for i in range(8): o(f"v_permlane{sw}_swap_b32 v{M+i}, v{U+i}")
        for i in range(8):
            o(f"v_max_f32 v{M+i}, v{M+i}, v{U+i}")
            if sw == '32': o(f"v_mov_b32 v{U+i}, v{M+i}")
    for i in range(8): o(f"v_mul_f32 v{M+i}, s{S_C}, v{M+i}")
    for i in range(8):
        for r in range(8): o(f"v_fma_f32 v{SS(i)+r}, v{SS(i)+r}, s{S_C}, -v{M+i}")
        for r in range(8): o(f"v_exp_f32 v{SS(i)+r}, v{SS(i)+r}")
    for i in range(8):
        for r in range(4): o(f"v_cvt_pk_bf16_f32 v{SS(i)+r}, v{SS(i)+2*r}, v{SS(i)+2*r+1}")
    o("s_nop 1")
    OO = lambda i: ACC + 16 + i * 4
    for i, (h, t) in enumerate(items):
        o(mfma(vr(SS(i) + 4), vr(V_ONE), vr(SS(i)), '0'))
        o(mfma(vr(OO(i)), vr(VB(h, t)), vr(SS(i)), '0'))
    o("s_nop 5")
    for i in range(8): o(f"v_rcp_f32 v{M+i}, v{SS(i)+4}")
    for i in range(8):
        for r in range(4): o(f"v_mul_f32 v{OO(i)+r}, v{M+i}, v{OO(i)+r}")
    o(f"s_lshl_b32 s{S_T}, s{S_WAVE}, 12\nv_add_u32 v2, s{S_T}, v{V_L16}")
    for pp in range(2):
        for t in range(2):
            d = V_S + (pp * 2 + t) * 4
            for hh in range(2):
                a = OO((2 * pp + hh) * 2 + t)
                o(f"v_cvt_pk_bf16_f32 v{d+2*hh}, v{a}, v{a+1}\nv_cvt_pk_bf16_f32 v{d+2*hh+1}, v{a+2}, v{a+3}")
            o(f"ds_write_b128 v2, {vr(d)} offset:{t * 16384 + (2 * gq + pp) * 1024}")
```

```python
import re, sys
import numpy as np

M32 = 0xFFFFFFFF
TRANS = {'v_exp_f32','v_log_f32','v_rcp_f32','v_rsq_f32','v_sqrt_f32','v_sin_f32','v_cos_f32'}

class Ins:
    __slots__ = ('op','args','mods','line','text','rd','wr','kind')

def regs_of(tok):
    tok = tok.strip()
    neg = tok.lstrip('-')
    if neg.startswith('abs(') : neg = neg[4:-1]
    if neg.startswith('|'): neg = neg.strip('|')
    m = re.fullmatch(r'([vas])(\d+)', neg)
    if m: return [(m.group(1), int(m.group(2)))]
    m = re.fullmatch(r'([vas])\[(\d+):(\d+)\]', neg)
    if m: return [(m.group(1), i) for i in range(int(m.group(2)), int(m.group(3)) + 1)]
    if neg == 'vcc': return [('s', 106), ('s', 107)]
    if neg == 'exec': return [('s', 126), ('s', 127)]
    if neg == 'm0': return [('s', 124)]
    return []

def parse(text):
    ins = []; labels = {}
    for ln, raw in enumerate(text.split('\n'), 1):
        s = raw.split(';')[0].strip()
        if not s or s.startswith('.'):
            continue
        m = re.fullmatch(r'([\w.$]+):', s)
        if m:
            labels[m.group(1)] = len(ins); continue
        parts = s.split(None, 1)
        op = parts[0]
        for suf in ('_e32', '_e64'):
            if op.endswith(suf): op = op[:-4]
        rest = parts[1] if len(parts) > 1 else ''
        toks = [t.strip() for t in re.split(r',(?![^\[]*\])', rest)] if rest else []
        mods = {}
        if toks:
            last = toks[-1].split()
            if op == 's_waitcnt':
                for t in rest.replace(',', ' ').split():
                    mm = re.fullmatch(r'(\w+)\((\d+)\)', t); mods[mm.group(1)] = int(mm.group(2))
                toks = []
            else:
                toks[-1] = last[0]
                for t in last[1:]:
                    if ':' in t:
                        k, v = t.split(':', 1); mods[k] = int(v, 0) if re.fullmatch(r'-?(0x)?[0-9a-fA-F]+', v) else v
                    else: mods[t] = True
        I = Ins(); I.op = op; I.args = toks; I.mods = mods; I.line = ln; I.text = s
        classify(I); ins.append(I)
    return ins, labels

def classify(I):
    op = I.op; A = I.args; rd = []; wr = []
    R = lambda i: regs_of(A[i])
    if op.startswith('v_mfma'):
        I.kind = 'mfma'; wr = R(0); rd = R(1) + R(2) + R(3)
    elif op.startswith('v_cmp'):
        I.kind = 'valu'; wr = R(0); rd = R(1) + R(2)
    elif op in ('v_readfirstlane_b32',):
        I.kind = 'valu'; wr = R(0); rd = R(1)
    elif op.startswith('v_permlane'):
        I.kind = 'valu'; wr = R(0) + R(1); rd = R(0) + R(1)
    elif op in ('v_fmac_f32',):
        I.kind = 'valu'; wr = R(0); rd = R(0) + R(1) + R(2)
    elif op == 'v_cndmask_b32':
        I.kind = 'valu'; wr = R(0); rd = R(1) + R(2) + R(3)
    elif op == 'v_nop':
        I.kind = 'valu'
    elif op.startswith('v_'):
        I.kind = 'valu'; wr = R(0)
        for i in range(1, len(A)): rd += R(i)
    elif op.startswith('ds_read'):
        I.kind = 'ds'; wr = R(0); rd = R(1)
    elif op.startswith('ds_write'):
        I.kind = 'ds'; rd = R(0) + R(1)
    elif op.startswith('ds_bpermute') or op.startswith('ds_swizzle'):
        I.kind = 'ds'; wr = R(0)
        for i in range(1, len(A)): rd += R(i)
    elif op.startswith('buffer_load'):
        I.kind = 'vmem'
        if 'lds' in I.mods: rd = R(0) + R(1) + R(2) + [('s', 124)]
        else: wr = R(0); rd = R(1) + R(2) + R(3)
    elif op.startswith('buffer_store') or op.startswith('buffer_atomic'):
        I.kind = 'vmem'; rd = R(0) + R(1) + R(2) + R(3)
        if op.startswith('buffer_atomic') and 'sc0' in I.mods: wr = R(0)
    elif op.startswith('s_load') or op in ('s_memtime', 's_memrealtime'):
        I.kind = 'smem'; wr = R(0); rd = R(1) if len(A) > 1 else []
    elif op.startswith('s_cmp') or op.startswith('s_bitcmp'):
        I.kind = 'salu'; rd = R(0) + R(1)
    elif op in ('s_waitcnt', 's_barrier', 's_nop', 's_endpgm', 's_branch', 's_setprio', 's_sleep', 'buffer_inv', 'buffer_wbl2') or op.startswith('s_cbranch'):
        I.kind = 'ctl'
    elif op in ('s_addk_i32',):
        I.kind = 'salu'; wr = R(0); rd = R(0)
    elif op.endswith('saveexec_b64'):
        I.kind = 'salu'; wr = R(0) + regs_of('exec'); rd = R(1) + regs_of('exec')
    elif op.startswith('s_'):
        I.kind = 'salu'; wr = R(0)
        for i in range(1, len(A)): rd += R(i)
    else:
        raise Exception('unknown op ' + I.text)
    I.rd = rd; I.wr = wr

def f2u(x): return int(np.float32(x).view(np.uint32))
INL = {'0.5': f2u(.5), '1.0': f2u(1), '2.0': f2u(2), '4.0': f2u(4), '-0.5': f2u(-.5), '-1.0': f2u(-1), '-2.0': f2u(-2), '-4.0': f2u(-4)}

class Err(Exception): pass

class Wave:
    def __init__(self, ins, labels, entry, wg, wave, arg_sizes, lds_size, policy=None, maxsteps=400000):
        self.ins = ins; self.labels = labels; self.pc = labels[entry]
        self.s = {}; self.v = {}
        self.s[0] = 0; self.s[1] = 0x7000; self.s[2] = wg
        self.s[126] = M32; self.s[127] = M32
        self.v[('v', 0)] = (np.arange(64, dtype=np.uint32) + 64 * wave)
        self.scc = None; self.wg = wg; self.wave = wave
        self.arg_sizes = arg_sizes; self.lds_size = lds_size
        self.policy = policy or {}
        self.errors = []; self.hist = []
        self.t = 0
        self.vm = []; self.lg = []
        self.epoch = 0; self.lds_ev = []; self.gl_ev = []
        self.src = {}
        self.maxsteps = maxsteps; self.nins = 0; self.counts = {}
        self.written = set([('s',0),('s',1),('s',2),('v',0),('s',126),('s',127)])
    def err(self, I, msg):
        e = f"wg{self.wg} w{self.wave} line {I.line}: {I.text} :: {msg}"
        if e not in self.errors: self.errors.append(e)
    def sval(self, tok):
        tok = tok.strip()
        r = regs_of(tok)
        if r and r[0][0] == 's': return self.s.get(r[0][1])
        if tok in INL: return INL[tok]
        try: return int(tok, 0) & M32
        except: return None
    def sval64(self, tok):
        r = regs_of(tok)
        if r:
            lo = self.s.get(r[0][1]); hi = self.s.get(r[1][1])
            if lo is None or hi is None: return None
            return lo | (hi << 32)
        try: return int(tok, 0) & 0xFFFFFFFFFFFFFFFF
        except: return None
    def vval(self, tok):
        r = regs_of(tok)
        if tok.startswith('-') and r: return None
        if r and r[0][0] in 'va': return self.v.get(r[0])
        x = self.sval(tok)
        return None if x is None else np.full(64, x, dtype=np.uint32)
    def hazards(self, I):
        rd = set(I.rd); wr = set(I.wr)
        for (P, tp) in reversed(self.hist):
            d = self.t - tp - 1
            if d >= 20: break
            pw = set(P.wr)
            need = 0; why = ''
            def req(n, w):
                nonlocal need, why
                if n > need: need = n; why = w
            pv = {x for x in pw if x[0] in 'va'}; ps = {x for x in pw if x[0] == 's'}
            if P.kind == 'valu':
                if I.kind == 'mfma' and pv & rd: req(2, 'valu->mfma')
                if P.op in TRANS and I.kind == 'valu' and I.op not in TRANS and pv & rd: req(1, 'trans->valu')
                if P.op in TRANS and I.kind in ('ds','vmem') and pv & rd: req(1, 'trans->mem(pad)')
                if I.op.startswith('v_permlane') and pv & rd: req(2, 'valu->permlane')
                if I.op == 'v_readfirstlane_b32' and pv & rd: req(1, 'valu->readfirstlane')
                if ps & rd:
                    if I.kind == 'valu': req(2, 'valu sgpr->valu')
                    if I.kind == 'vmem': req(5, 'valu sgpr->vmem')
                    if I.kind == 'mfma': req(4, 'valu sgpr->mfma')
                if any(k.startswith('row_') or k.startswith('quad_perm') for k in I.mods) and pv & rd: req(2, 'valu->dpp')
            if P.kind == 'mfma':
                np_ = 8 if '32x32' in P.op else 4
                T = {4: (6, 8, 3), 8: (10, 12, 7)}[np_]
                if I.kind == 'mfma':
                    c = regs_of(I.args[3]); ab = set(regs_of(I.args[1]) + regs_of(I.args[2]))
                    if pv & set(c):
                        if not (c == P.wr and (('32x32' in I.op) == ('32x32' in P.op))): req(T[0], 'mfma D->C overlap')
                    if pv & ab: req(T[1], 'mfma D->AB')
                    if pv & wr and not (c == P.wr): req(T[0], 'mfma D->D waw')
                elif I.kind == 'valu':
                    if pv & (rd | wr): req(T[1], 'mfma D->valu')
                    pc = set(regs_of(P.args[3]))
                    if pc & wr: req(T[2], 'mfma C war')
                elif I.kind in ('ds', 'vmem'):
                    if pv & (rd | wr): req(T[1], 'mfma D->mem')
            if P.kind == 'salu' and ('s', 124) in pw and I.kind == 'vmem' and 'lds' in I.mods: req(1, 'm0->dma')
            if P.kind in ('vmem',) and ('store' in P.op) and ('x4' in P.op or 'x3' in P.op):
                data = set(regs_of(P.args[0]))
                if data & wr: req(2 if I.kind in ('valu','mfma') else 1, 'store data war')
            if P.kind == 'ds' and P.op in ('ds_write_b128','ds_write_b96'):
                data = set(regs_of(P.args[1]))
                if data & wr and I.kind in ('valu','mfma'): req(2, 'ds_write data war(pad)')
            if d < need: self.err(I, f"hazard {why}: need {need} have {d} after line {P.line}: {P.text}")
    def check_pending(self, I):
        touched = set(I.rd) | set(I.wr)
        for q, nm in ((self.vm, 'vm'), (self.lg, 'lgkm')):
            for o in q:
                if o['regs'] & touched:
                    self.err(I, f"touches reg with pending {nm} load from line {o['line']}")
    def run(self):
        U = np.uint32
        while True:
            I = self.ins[self.pc]; self.pc += 1; self.nins += 1
            if self.nins > self.maxsteps: raise Err('too many steps')
            self.counts[I.kind] = self.counts.get(I.kind, 0) + 1
            op = I.op; A = I.args
            self.hazards(I); self.check_pending(I)
            for r in I.rd:
                if r not in self.written: self.err(I, f"reads never-written {r}")
            for r in I.rd:
                if r in self.src: self.src[r]['used'] = True
            for r in I.wr:
                self.written.add(r); self.src.pop(r, None)
            n_states = 1
            if op == 's_endpgm':
                for o in self.vm + self.lg:
                    if o.get('ev') is not None: o['ev']['done'] = (self.epoch, self.t)
                return
            elif op == 's_nop': n_states = int(A[0], 0) + 1
            elif op == 's_waitcnt':
                for q, key in ((self.vm, 'vmcnt'), (self.lg, 'lgkmcnt')):
                    if key in I.mods:
                        n = I.mods[key]
                        if key == 'lgkmcnt' and n > 0 and any(o.get('smem') for o in q): self.err(I, 'counted lgkm with smem pending')
                        while len(q) > n:
                            o = q.pop(0)
                            if o.get('ev') is not None: o['ev']['done'] = (self.epoch, self.t)
            elif op == 's_barrier': self.epoch += 1
            elif op == 's_branch': self.pc = self.labels[A[0]]
            elif op.startswith('s_cbranch'):
                c = op[10:]
                if c in ('scc0', 'scc1'):
                    if self.scc is None: raise Err(f'unknown scc at line {I.line}')
                    tk = self.scc == (c == 'scc1')
                elif c in ('execz', 'execnz'):
                    e = self.sval64('exec')
                    if e is None: tk = self.policy.get(A[0], False)
                    else: tk = (e == 0) == (c == 'execz')
                else:
                    e = self.sval64('vcc')
                    if e is None: tk = self.policy.get(A[0], False)
                    else: tk = (e == 0) == (c == 'vccz')
                if tk: self.pc = self.labels[A[0]]
            elif I.kind == 'smem':
                if op.startswith('s_load'):
                    n = len(I.wr); off = int(A[2], 0)
                    for j in range(n):
                        w = off // 4 + j
                        self.s[I.wr[j][1]] = 0 if w % 2 == 0 else (0x100 + w // 2)
                else:
                    for r in I.wr: self.s[r[1]] = None
                self.lg.append(dict(regs=set(I.wr), line=I.line, smem=True));
            elif I.kind == 'salu': self.salu(I)
            elif I.kind == 'valu': self.valu(I)
            elif I.kind == 'mfma':
                for r in I.wr: self.v[r] = None
            elif I.kind == 'ds':
                ev = None
                if op.startswith('ds_read') or op.startswith('ds_write'):
                    a = self.vval(A[1] if op.startswith('ds_read') else A[0])
                    sz = {'b128': 16, 'b64': 8, 'b32': 4, 'b16': 8}[op.split('_')[-1]]
                    if op == 'ds_read_b64_tr_b16': sz = 8
                    if a is None: self.err(I, 'unknown LDS address')
                    else:
                        a = a.astype(np.int64) + I.mods.get('offset', 0)
                        if a.max() + sz > self.lds_size: self.err(I, f'LDS OOB {a.max()}')
                        if (a % (16 if sz == 16 else sz)).any(): self.err(I, 'LDS misaligned')
                        ev = dict(w=self.wave, wr=op.startswith('ds_write'), a=a, sz=sz, lo=int(a.min()), hi=int(a.max()) + sz, iss=(self.epoch, self.t), done=None, line=I.line, op=op)
                        self.lds_ev.append(ev)
                        for r in I.wr: self.src[r] = ev
                for r in I.wr: self.v[r] = None
                self.lg.append(dict(regs=set(I.wr), line=I.line, ev=ev))
                if len(self.lg) > 15: pass
            elif I.kind == 'vmem':
                lds = 'lds' in I.mods
                vo, sr, so = (A[0], A[1], A[2]) if lds else (A[1], A[2], A[3])
                a = self.vval(vo); s0 = regs_of(sr)[0][1]
                srd = [self.s.get(s0 + j) for j in range(4)]
                sz = {'dwordx4': 16, 'dwordx2': 8, 'dword': 4, 'add': 4}[op.split('_')[-1]]
                sof = self.sval(so); ev = None
                if a is None or sof is None or None in srd: self.err(I, 'unknown global address')
                else:
                    g = a.astype(np.int64) + sof + I.mods.get('offset', 0)
                    arg = srd[1] - 0x100
                    ex = self.sval64('exec')
                    act = np.array([(ex >> l) & 1 for l in range(64)], dtype=bool) if ex is not None else np.ones(64, bool)
                    inb = (g + sz <= srd[2]) & act
                    if srd[0] + srd[2] > self.arg_sizes[arg]: self.err(I, f'SRD window exceeds buffer arg{arg}: {srd[0]:#x}+{srd[2]:#x}')
                    if (g % sz).any(): self.err(I, 'global misaligned')
                    self.gl_ev.append(dict(arg=arg, st='store' in op, a=(g + srd[0])[inb], sz=sz, line=I.line, oob=int((~inb & act).sum())))
                    if lds:
                        m0 = self.s.get(124)
                        if m0 is None: self.err(I, 'unknown m0')
                        else:
                            la = m0 + I.mods.get('offset', 0) + np.arange(64, dtype=np.int64) * sz
                            if la.max() + sz > self.lds_size: self.err(I, 'DMA LDS OOB')
                            ev = dict(w=self.wave, wr=True, a=la, sz=sz, lo=int(la.min()), hi=int(la.max()) + sz, iss=(self.epoch, self.t), done=None, line=I.line, op='dma')
                            self.lds_ev.append(ev)
                for r in I.wr: self.v[r] = None
                self.vm.append(dict(regs=set(I.wr), line=I.line, ev=ev))
                if len(self.vm) > 63: self.err(I, 'vmcnt overflow (>63 outstanding)')
            self.hist.append((I, self.t + n_states - 1 if op == 's_nop' else self.t))
            if len(self.hist) > 40: self.hist.pop(0)
            self.t += n_states
    def salu(self, I):
        op = I.op; A = I.args
        def setd(x, n=1):
            if n == 1: self.s[I.wr[0][1]] = None if x is None else x & M32
            else:
                self.s[I.wr[0][1]] = None if x is None else x & M32
                self.s[I.wr[1][1]] = None if x is None else (x >> 32) & M32
        if op.startswith('s_cmp') or op.startswith('s_bitcmp'):
            if op.endswith('u64'): a, b = self.sval64(A[0]), self.sval64(A[1])
            elif op.endswith('b64'): a, b = self.sval64(A[0]), self.sval(A[1])
            else: a, b = self.sval(A[0]), self.sval(A[1])
            if a is None or b is None: self.scc = None; return
            if op.startswith('s_bitcmp'): self.scc = bool((a >> b) & 1) == (op[8] == '1'); return
            c = op.split('_')[2]
            if op.endswith('i32'):
                a = a - (1 << 32) if a >> 31 else a; b = b - (1 << 32) if b >> 31 else b
            self.scc = {'eq': a == b, 'lg': a != b, 'lt': a < b, 'le': a <= b, 'gt': a > b, 'ge': a >= b}[c]; return
        if op in ('s_mov_b32', 's_movk_i32'): return setd(self.sval(A[1]))
        if op == 's_mov_b64': return setd(self.sval64(A[1]), 2)
        if op == 's_addk_i32':
            a = self.sval(A[0]); return setd(None if a is None else a + int(A[1], 0))
        if op == 's_and_saveexec_b64':
            e = self.sval64('exec'); m = self.sval64(A[1]); setd(e, 2)
            x = None if (e is None or m is None) else e & m
            self.s[126] = None if x is None else x & M32; self.s[127] = None if x is None else x >> 32
            self.scc = None if x is None else x != 0; return
        if op in ('s_or_b64', 's_and_b64', 's_andn2_b64'):
            a, b = self.sval64(A[1]), self.sval64(A[2])
            x = None if a is None or b is None else {'s_or_b64': a | b, 's_and_b64': a & b, 's_andn2_b64': a & ~b}[op]
            self.scc = None if x is None else x != 0
            return setd(x, 2)
        if op == 's_bfm_b64':
            a, b = self.sval(A[1]), self.sval(A[2])
            return setd(((1 << (a & 63)) - 1) << (b & 63), 2)
        if op == 's_cselect_b32':
            if self.scc is None: return setd(None)
            return setd(self.sval(A[1] if self.scc else A[2]))
        a, b = self.sval(A[1]), self.sval(A[2]) if len(A) > 2 else None
        if op == 's_addc_u32':
            if a is None or b is None or self.scc is None: self.scc = None; return setd(None)
            x = a + b + int(self.scc); self.scc = x > M32; return setd(x)
        if a is None or b is None:
            if op != 's_mul_i32': self.scc = None
            return setd(None)
        if op == 's_add_u32': x = a + b; self.scc = x > M32
        elif op == 's_sub_u32': x = a - b; self.scc = x < 0
        elif op == 's_add_i32': x = a + b; self.scc = None
        elif op == 's_sub_i32': x = a - b; self.scc = None
        elif op == 's_mul_i32': x = a * b
        elif op == 's_lshl_b32': x = (a << (b & 31)) & M32; self.scc = x != 0
        elif op == 's_lshr_b32': x = a >> (b & 31); self.scc = x != 0
        elif op == 's_and_b32': x = a & b; self.scc = x != 0
        elif op == 's_or_b32': x = a | b; self.scc = x != 0
        elif op == 's_xor_b32': x = a ^ b; self.scc = x != 0
        elif op == 's_min_u32': x = min(a, b); self.scc = a < b
        elif op == 's_max_u32': x = max(a, b); self.scc = a > b
        elif op == 's_lshl1_add_u32': x = (a << 1) + b; self.scc = None
        elif op == 's_lshl2_add_u32': x = (a << 2) + b; self.scc = None
        elif op == 's_bfe_u32': x = (a >> (b & 31)) & ((1 << ((b >> 16) & 127)) - 1); self.scc = x != 0
        else: raise Err('salu ' + I.text)
        setd(x)
    def valu(self, I):
        op = I.op; A = I.args; U = np.uint32
        if op == 'v_nop': return
        if op == 'v_readfirstlane_b32':
            x = self.vval(A[1]); self.s[I.wr[0][1]] = None if x is None else int(x[0]); return
        if op.startswith('v_cmp'):
            r = None
            if op.endswith('u32') or op.endswith('i32'):
                a, b = self.vval(A[1]), self.vval(A[2])
                if a is not None and b is not None:
                    if op.endswith('i32'): a = a.view(np.int32); b = b.view(np.int32)
                    c = op.split('_')[2]
                    m = {'eq': a == b, 'ne': a != b, 'lt': a < b, 'le': a <= b, 'gt': a > b, 'ge': a >= b}[c]
                    r = sum(1 << l for l in range(64) if m[l])
            self.s[I.wr[0][1]] = None if r is None else r & M32
            self.s[I.wr[1][1]] = None if r is None else r >> 32
            return
        x = None
        src = [self.vval(t) for t in A[1:]]
        ok = all(t is not None for t in src)
        dpp = any(k.startswith('row_') or k.startswith('quad_perm') for k in I.mods)
        with np.errstate(over='ignore'):
            if not ok or dpp: x = None
            elif op in ('v_mov_b32', 'v_accvgpr_write_b32', 'v_accvgpr_read_b32'): x = src[0]
            elif op == 'v_add_u32': x = src[0] + src[1]
            elif op == 'v_sub_u32': x = src[0] - src[1]
            elif op == 'v_subrev_u32': x = src[1] - src[0]
            elif op == 'v_lshlrev_b32': x = src[1] << (src[0] & U(31))
            elif op == 'v_lshrrev_b32': x = src[1] >> (src[0] & U(31))
            elif op == 'v_and_b32': x = src[0] & src[1]
            elif op == 'v_or_b32': x = src[0] | src[1]
            elif op == 'v_xor_b32': x = src[0] ^ src[1]
            elif op == 'v_bfe_u32': x = (src[0] >> src[1]) & ((U(1) << src[2]) - U(1))
            elif op == 'v_lshl_add_u32': x = (src[0] << src[1]) + src[2]
            elif op == 'v_lshl_or_b32': x = (src[0] << src[1]) | src[2]
            elif op == 'v_and_or_b32': x = (src[0] & src[1]) | src[2]
            elif op == 'v_add_lshl_u32': x = (src[0] + src[1]) << src[2]
            elif op == 'v_add3_u32': x = src[0] + src[1] + src[2]
            elif op in ('v_mul_u32_u24', 'v_mul_lo_u32'): x = src[0] * src[1]
            elif op == 'v_mad_u32_u24': x = src[0] * src[1] + src[2]
            elif op == 'v_max_i32': x = np.maximum(src[0].view(np.int32), src[1].view(np.int32)).view(U)
        if op == 'v_cndmask_b32':
            m = self.sval64(A[3]); a, b = self.vval(A[1]), self.vval(A[2])
            x = None
            if m is not None and a is not None and b is not None:
                mm = np.array([(m >> l) & 1 for l in range(64)], dtype=bool); x = np.where(mm, b, a).astype(U)
        ex = self.sval64('exec')
        for r in I.wr:
            if r[0] in 'va':
                if x is not None and len(I.wr) == 1 and ex == 0xFFFFFFFFFFFFFFFF: self.v[r] = x.astype(U)
                else: self.v[r] = None

def lds_races(waves):
    errs = []
    evs = [e for w in waves for e in w.lds_ev]
    wrs = [e for e in evs if e['wr']]
    wrs.sort(key=lambda e: e['lo'])
    def overlap(a, b):
        if a['hi'] <= b['lo'] or b['hi'] <= a['lo']: return False
        sa = set((a['a'][:, None] // 4 + np.arange(a['sz'] // 4)[None]).ravel().tolist())
        sb = set((b['a'][:, None] // 4 + np.arange(b['sz'] // 4)[None]).ravel().tolist())
        return bool(sa & sb)
    from collections import defaultdict
    bk = defaultdict(list)
    for e in wrs:
        for b in range(e['lo'] // 1024, (e['hi'] - 1) // 1024 + 1): bk[b].append(e)
    seen = set()
    for e in evs:
        if not e['wr'] and not e.get('used'): continue
        cands = {}
        for b in range(e['lo'] // 1024, (e['hi'] - 1) // 1024 + 1):
            for w in bk[b]: cands[id(w)] = w
        for w in cands.values():
            if w is e: continue
            if w['w'] == e['w']:
                a, b = (w, e) if w['iss'][1] < e['iss'][1] else (e, w)
                if a['op'] != 'dma' and b['op'] != 'dma': continue
                if a['op'] == 'dma' and b['op'] == 'dma': continue
                ok = a['done'] is not None and a['done'][1] < b['iss'][1]
            else:
                ok = (w['done'][0] < e['iss'][0]) or (e['done'][0] < w['iss'][0])
            if not ok:
                key = (w['line'], e['line'])
                if key in seen: continue
                if overlap(w, e):
                    seen.add(key)
                    errs.append(f"LDS race: wave{w['w']} line {w['line']} iss{w['iss']} done{w['done']} [{w['lo']},{w['hi']}) vs wave{e['w']} line {e['line']} iss{e['iss']} done{e['done']} [{e['lo']},{e['hi']})")
    return errs

def bank_conflicts(waves):
    G128 = [list(range(0,4))+list(range(12,16))+list(range(20,28)), list(range(4,12))+list(range(16,20))+list(range(28,32))]
    G128 += [[x+32 for x in g] for g in G128]
    out = {}
    for w in waves:
        for e in w.lds_ev:
            if e['op'] == 'ds_read_b128': groups = G128; nb = 64
            elif e['op'] in ('ds_read_b64_tr_b16', 'ds_read_b64'): groups = [list(range(32)), list(range(32, 64))]; nb = 64
            elif e['op'] == 'ds_write_b128': groups = [list(range(8*i, 8*i+8)) for i in range(8)]; nb = 32
            else: continue
            worst = 1
            for g in groups:
                cnt = {}
                for l in g:
                    for j in range(e['sz'] // 4):
                        d = int(e['a'][l]) // 4 + j
                        cnt.setdefault(d % nb, set()).add(d)
                worst = max(worst, max(len(x) for x in cnt.values()))
            if worst > 1: out[e['line']] = max(out.get(e['line'], 1), worst)
    return out

ARGS = [2<<20, 1536*1024, 512*1024, 2<<20, 2<<20, 4<<20, 4<<20, 4<<20, 4<<20, 4<<20, 256, 256<<20]

def check_wg(ins, labels, entry, wg, nw, lds, policy=None, verbose=False):
    ws = []
    for w in range(nw):
        W = Wave(ins, labels, entry, wg, w, ARGS, lds, policy); W.run(); ws.append(W)
    errs = [e for W in ws for e in W.errors] + lds_races(ws)
    bc = bank_conflicts(ws)
    if bc: errs.append(f"bank conflicts (line:way): {bc}")
    if verbose:
        print(f"wg{wg}: epochs {[W.epoch for W in ws]} nins {[W.nins for W in ws]} counts {ws[0].counts} oob {[sum(e['oob'] for e in W.gl_ev) for W in ws]}")
    return ws, errs
```

```python
import sys
from common import *
import k1
NAME = "concat_heads__sliding_local_dilated__compressed_kv_cla__prompt"
def build(parts=('k1',)):
    o = Out()
    hdr = open(f"cdna_kernels/{NAME}.s.ref").read().split('\n')
    hdr = [l for l in hdr if l.startswith(';') and '@launch' not in l and 'Override' not in l and 'grid=ceil' not in l]
    o.l += hdr
    cfg = {'k1': ('k1_kernel', 256, 256, 163840), 'k2': ('k2_kernel', 256, 256, 131072), 'k3': ('k3_kernel', 256, 256, 131072)}
    for p in parts:
        n, g, b, l = cfg[p]
        o(f"; @launch kernel={n} grid=({g},1,1) block=({b},1,1) lds={l}")
    o('.amdgcn_target "amdgcn-amd-amdhsa--gfx950"\n.text')
    if 'k1' in parts:
        try:
            import ka; ap = ka.a_part
        except ImportError: ap = None
        k1.k1(o, 'k1_kernel', ap)
    if 'k2' in parts:
        import k2; k2.k2(o, 'k2_kernel')
    if 'k3' in parts:
        import k3; k3.k3(o, 'k3_kernel')
    return o.text(), cfg
if __name__ == '__main__':
    import common
    common.INSTR = len(sys.argv) > 3 and sys.argv[3] == 'instr'
    parts = sys.argv[2].split(',') if len(sys.argv) > 2 else ['k1', 'k2', 'k3']
    t, cfg = build(parts)
    open(sys.argv[1], 'w').write(t)
    import sim
    ins, labels = sim.parse(t)
    wgs = {'k1': [0, 7, 63, 64 + 9, 128 + 63, 192, 200, 255], 'k2': [0, 31, 32, 100, 131, 224, 255], 'k3': [0, 77, 255]}
    bad = 0
    for p in parts:
        n, g, b, l = cfg[p]
        for wg in wgs[p]:
            ws, errs = sim.check_wg(ins, labels, n, wg, b // 64, l, verbose=True)
            for e in errs[:15]: print("  ERR", e)
            bad += len(errs)
    print("errors:", bad)
```

```python
import math, os
def opt(k, d=''): return os.environ.get(k, d)
WS_Q = 0
WS_KV = 16 << 20
WS_C = 48 << 20
WS_END = 64 << 20
OOB = 0x40000000
NEG_BIG = 0xf149f2ca
def f2u(x):
    import struct
    return struct.unpack('<I', struct.pack('<f', x))[0]

def vr(b, n=4): return f"v[{b}:{b+n-1}]" if n > 1 else f"v{b}"
def ar(b, n=4): return f"a[{b}:{b+n-1}]" if n > 1 else f"a{b}"
def sr(b, n=4): return f"s[{b}:{b+n-1}]" if n > 1 else f"s{b}"

class Out:
    def __init__(self): self.l = []
    def __call__(self, s):
        for x in s.split('\n'):
            x = x.strip()
            if not x: continue
            if x.endswith(':') or x.startswith('.') or x.startswith(';'): self.l.append(x)
            else: self.l.append('    ' + x)
    def ext(self, lst):
        for x in lst: self(x)
    def text(self): return '\n'.join(self.l) + '\n'

class Gaps:
    def __init__(self, mf):
        self.mf = mf; self.g = {i: [] for i in range(-1, len(mf))}
    def put(self, i, *ins):
        if i >= len(self.mf): i = len(self.mf) - 1
        self.g[i] += list(ins)
    def put_front(self, i, *ins):
        self.g[i] = list(ins) + self.g[i]
    def emit(self, o):
        o.ext(self.g[-1])
        for i, m in enumerate(self.mf):
            o(m); o.ext(self.g[i])

def mfma(d, a, b, c): return f"v_mfma_f32_16x16x32_bf16 {d}, {a}, {b}, {c}"

def srd(o, base, ptr, nrec, add=None):
    if add is None:
        o(f"s_mov_b32 s{base}, s{ptr}\ns_mov_b32 s{base+1}, s{ptr+1}")
    else:
        o(f"s_add_u32 s{base}, s{ptr}, {add}\ns_addc_u32 s{base+1}, s{ptr+1}, 0")
    o(f"s_mov_b32 s{base+2}, {nrec}\ns_mov_b32 s{base+3}, 0x20000")

def kd(name, vgpr, acc, sgpr=102):
    return f""".section .rodata,"a"
.p2align 6
.amdhsa_kernel {name}
  .amdhsa_next_free_vgpr {vgpr}
  .amdhsa_next_free_sgpr {sgpr}
  .amdhsa_accum_offset {acc}
  .amdhsa_group_segment_fixed_size 0
  .amdhsa_kernarg_size 96
  .amdhsa_user_sgpr_count 2
  .amdhsa_user_sgpr_kernarg_segment_ptr 1
  .amdhsa_system_sgpr_workgroup_id_x 1
.end_amdhsa_kernel
.text
"""

def head(name):
    return f""".globl {name}
.p2align 8
.type {name},@function
{name}:
"""

class VmQ:
    def __init__(self): self.q = []
    def add(self, tag, n=1): self.q += [tag] * n
    def wait(self, tag):
        idx = max(i for i, t in enumerate(self.q) if t == tag)
        return len(self.q) - 1 - idx

INSTR = False
def stamp(o, i):
    if globals()["INSTR"]: o(f"s_memrealtime s[{90+2*i}:{91+2*i}]\ns_memtime s[{70+2*i}:{71+2*i}]")
def stamp_init(o):
    if globals()["INSTR"]: o("s_load_dwordx2 s[88:89], s[0:1], 88\ns_memrealtime s[90:91]\ns_memtime s[70:71]\ns_mov_b32 s83, s2\nv_lshrrev_b32 v255, 6, v0\ns_nop 0\nv_readfirstlane_b32 s82, v255")
def stamp_end(o, kidx):
    if not globals()["INSTR"]: return
    o(f"""s_waitcnt vmcnt(0) lgkmcnt(0)
    s_memrealtime s[96:97]
    s_memtime s[76:77]
    s_add_u32 s84, s88, {(128 << 20) + kidx * 65536}
    s_addc_u32 s85, s89, 0
    s_mov_b32 s86, 65536
    s_mov_b32 s87, 0x20000
    s_waitcnt lgkmcnt(0)
    v_mov_b32 v248, s90
    v_mov_b32 v249, s92
    v_mov_b32 v250, s94
    v_mov_b32 v251, s96
    v_mov_b32 v244, s70
    v_mov_b32 v245, s72
    v_mov_b32 v246, s74
    v_mov_b32 v247, s76
    s_lshl_b32 s83, s83, 8
    s_lshl_b32 s82, s82, 5
    s_add_u32 s83, s83, s82
    v_mov_b32 v253, s83
    s_mov_b64 exec, 1
    buffer_store_dwordx4 v[248:251], v253, s[84:87], 0 offen
    buffer_store_dwordx4 v[244:247], v253, s[84:87], 0 offen offset:16""")
```

```python
from common import *
from eng import QF, V_L16, ST
A_, B_, C_, D_ = 0, 1, 2, 3
def Q(b, s): return ar(QF(b, s))
def K(t, s): return ar((t * 4 + s) * 4)
def V(dt): return ar(32 + dt * 4)
def S(b, t): return 16 + b * 8 + t * 4
V_E = 48
def P(b): return 64 + b * 4
def CI(b, t): return 80 + b * 8 + t * 4
V_M = 112; V_T = 116; V_L = 124
def O(b, dt): return 128 + b * 32 + dt * 4
V_DMA = 13; V_RA = 14; V_THR = 15
S_N = 32; S_US = 33; S_UL = 34; S_USM = 35; S_ULM = 36; S_RA = 37; S_SOFF = 55; S_BM = 38
S_T = 40; S_CL = 42; S_CS = 43; S_FL = 44
S_W4K = 48
R_KV = R_A1

def exps(b, e0): return [f"v_exp_f32 v{e0+i}, v{S(b,0)+i}" for i in range(8)]
def cvts(b, e0): return [f"v_cvt_pk_bf16_f32 v{P(b)+i}, v{e0+2*i}, v{e0+2*i+1}" for i in range(4)]
V_L2 = 120
def adds(b, e0):
    if opt('X_NOADD'): return []
    if opt('X_ACC2'): return [f"v_add_f32 v{(V_L2 if i & 1 else V_L)+b}, v{(V_L2 if i & 1 else V_L)+b}, v{e0+i}" for i in range(8)]
    return [f"v_add_f32 v{V_L+b}, v{V_L+b}, v{e0+i}" for i in range(8)]
def qk(b, first=False):
    return [mfma(vr(S(b, t)), K(t, s), Q(b, s), ('0' if first else vr(CI(b, t))) if s == 0 else vr(S(b, t))) for t in range(2) for s in range(4)]
def pv(b): return [mfma(vr(O(b, dt)), V(dt), vr(P(b)), vr(O(b, dt))) for dt in range(8)]
def vreads(): return [f"ds_read_b128 {V(dt)}, v{V_RA} offset:{8192 + dt*1024}" for dt in range(8)]
def kreads(): return [f"ds_read_b128 {K(i>>2, i&3)}, v{V_RA} offset:{i*1024}" for i in range(8)]
def dmas(tag='KV'): return [f"buffer_load_dwordx4 v{V_DMA}, {sr(R_KV)}, s{S_SOFF} offen offset:{j*1024} {opt('LD_POL','sc1')} lds ; @{tag}" for j in range(4)]
uid = [0]
def barblk(mode, vm=8, lg=0):
    if mode == 'odd': return [f"s_waitcnt lgkmcnt({lg})"] if lg == 0 else []
    if mode == 'even': return [f"s_waitcnt vmcnt({vm}) lgkmcnt({lg})", "s_barrier"]
    uid[0] += 1; l = f"AT_nb{uid[0]}"
    return [f"s_waitcnt lgkmcnt({lg})", f"s_bitcmp1_b64 s[{S_BM}:{S_BM+1}], s{S_N}", f"s_cbranch_scc0 {l}", f"s_waitcnt vmcnt({vm})", "s_barrier", f"{l}:"]
S_DM = 48; S_DX = 49
UPD = [f"s_add_u32 s{S_SOFF}, s{S_SOFF}, 16384", f"s_add_u32 s{S_DM}, s{S_DM}, 16384", f"s_and_b32 s{S_DM}, s{S_DM}, 0x1ffff",
       f"s_cmp_lt_u32 s{S_SOFF}, s{R_KV+2}\ns_cselect_b32 m0, s{S_DM}, s{S_DX}"]
PRE = [f"s_add_u32 s{S_RA}, s{S_RA}, 16384", f"s_and_b32 s{S_RA}, s{S_RA}, 0x1ffff", f"s_add_u32 s{S_N}, s{S_N}, 1"]
RADDR = f"v_add_u32 v{V_RA}, s{S_RA}, v{V_L16}"

def spread(g, lst, gaps):
    gaps = list(gaps)
    assert len(lst) <= len(gaps), (len(lst), len(gaps))
    for x, gp in zip(lst, gaps): g.put(gp, x)

V_EB = 8
def ex(b, t, e): return [f"v_exp_f32 v{e+i}, v{S(b,t)+i}" for i in range(4)]
def cv(b, t, e): return [f"v_cvt_pk_bf16_f32 v{P(b)+2*t+i}, v{e+2*i}, v{e+2*i+1}" for i in range(2)]
def ad(b, e, n=4): return [] if opt('X_NOADD') else [f"v_add_f32 v{V_L+b}, v{V_L+b}, v{e+i}" for i in range(n)]

def place(g, items, cap):
    used = {k: 0 for k in cap}
    for x, lo, hi in items:
        win = [k for k in cap if lo <= k <= hi]
        free = [k for k in win if used[k] < cap[k]]
        k = free[0] if free else min(win, key=lambda q: (used[q] - cap[q], q))
        used[k] += 1; g.put(k, x)

ONES = ar(128)
def LM(b): return 132 + 4 * b
def msum(b): return mfma(ar(LM(b)), ONES, vr(P(b)), ar(LM(b)))
def MS(): return {'abcd'.index(c) for c in opt('MSUM', 'ab')}

def period(typ, mode):
    E0, E1, EB = V_E, V_E + 8, V_EB
    ms = MS()
    dm = dmas(); kr = kreads(); vr_ = vreads()
    W = lambda lst, lo, hi: [(x, lo, hi) for x in lst]
    AD = lambda b, e, lo, hi, n=4: [] if b in ms else W(ad(b, e, n), lo, hi)
    if typ == 'F':
        g = Gaps(pv(A_) + ([msum(A_)] if A_ in ms else []) + pv(B_) + ([msum(B_)] if B_ in ms else []))
        g.put(-1, *vr_[4:]); g.put(-1, *ex(B_, 1, E0 + 4)); g.put(-1, *barblk(mode, 0))
        spread(g, cv(B_, 0, EB) + cv(B_, 1, E0 + 4) + ([] if B_ in ms else ad(B_, EB) + ad(B_, E0 + 4)), range(12))
        return g.lines()
    if typ == 'D':
        order = [A_, C_, B_, D_]; nq = 32; kb = 24
        g = Gaps(qk(A_) + qk(C_) + qk(B_) + qk(D_) + pv(A_) + pv(C_) + pv(B_) + pv(D_))
        e = ex(B_, 1, E0 + 4) + ex(D_, 0, E1) + ex(D_, 1, E1 + 4) + ex(A_, 0, E0) + ex(A_, 1, E0 + 4) + ex(C_, 0, E1) + ex(C_, 1, E1 + 4) + ex(B_, 0, EB)
        dg = [43, 51, 41, 49]
        it = W(cv(B_, 0, EB), 1, 23) + AD(B_, EB, 1, 23) + W(cv(B_, 1, E0 + 4), 9, 23) + AD(B_, E0 + 4, 9, 23) + AD(D_, E1, 15, 39) + W(cv(D_, 0, E1), 15, 39)
        it += W(cv(D_, 1, E1 + 4), 23, 39) + AD(D_, E1 + 4, 23, 39) + AD(A_, E0, 31, 63) + W(cv(A_, 0, E0) + cv(A_, 1, E0 + 4), 41, 63) + AD(A_, E0 + 4, 39, 63)
        it += AD(C_, E1, 47, 63) + W(cv(C_, 0, E1), 49, 63) + W(cv(C_, 1, E1 + 4), 55, 63) + AD(C_, E1 + 4, 55, 63)
        lp = 'AT_D'; lim = S_USM
    elif typ == 'S':
        order = [A_, B_]; nq = 16; kb = 8
        g = Gaps(qk(A_) + qk(B_) + pv(A_) + pv(B_))
        e = ex(B_, 1, E0 + 4) + ex(A_, 0, E1) + ex(A_, 1, E1 + 4) + ex(B_, 0, EB)
        dg = [11, 17, 21, 13]
        it = W(cv(B_, 0, EB), 1, 21) + AD(B_, EB, 1, 21) + W(cv(B_, 1, E0 + 4), 5, 21)[:1] + W(cv(B_, 1, E0 + 4), 7, 21)[1:] + AD(B_, E0 + 4, 7, 31) + AD(A_, E1, 15, 31)
        it += W(cv(A_, 0, E1) + cv(A_, 1, E1 + 4), 25, 31) + AD(A_, E1 + 4, 23, 31)
        lp = 'AT_S'; lim = S_ULM
    else:
        order = [A_, C_, B_, D_]; nq = 16; kb = 8
        g = Gaps(qk(A_) + qk(B_) + pv(A_) + pv(C_) + pv(B_) + pv(D_))
        e = ex(B_, 1, E0 + 4) + ex(D_, 0, E1) + ex(D_, 1, E1 + 4) + ex(A_, 0, E0) + ex(A_, 1, E0 + 4) + ex(B_, 0, EB)
        dg = [27, 35, 25, 33]
        it = W(cv(B_, 0, EB), 1, 23) + AD(B_, EB, 1, 23) + W(cv(B_, 1, E0 + 4), 7, 23) + AD(B_, E0 + 4, 7, 23) + W(cv(D_, 0, E1), 15, 37) + W(cv(D_, 1, E1 + 4), 23, 37)
        it += AD(D_, E1, 23, 47, 8) + W(cv(A_, 0, E0), 31, 47) + AD(A_, E0, 31, 47) + W(cv(A_, 1, E0 + 4), 39, 47) + AD(A_, E0 + 4, 39, 47)
    n = len(g.mf)
    g.put(-1, "s_waitcnt lgkmcnt(4)")
    spread(g, e, range(0, n, 2))
    ds = list(zip(vr_[4:], (1, 3, 5, 7))) + list(zip(kr, range(kb + 1, kb + 17, 2))) + list(zip(vr_[:4], range(n - 7, n, 2)))
    for x, gp in ds: g.put(gp, x)
    g.put(7, RADDR)
    sums = [(nq + 8 * k + 7, b) for k, b in enumerate(order) if b in ms]
    dg = sorted(dg[:4 - min(len(sums), 4)])
    cap = {k: 2 for k in range(1, n, 2)}
    for _, gp in ds: cap[gp] -= 1
    for gp in dg: cap[gp] -= 1
    cap[7] -= 1
    ev = sorted([(gp, None) for gp in dg] + sums, key=lambda z: z[0])
    late = []
    for (gp, b), x in zip(ev, dm):
        if b is None: g.put(gp, x)
        else: late.append((gp, [msum(b), x]))
    place(g, it, cap)
    for gp, x in late: g.put(gp, *x)
    for i, x in enumerate(UPD): g.front(2 * i, x)
    g.front(kb, *barblk(mode, lg=0 if typ == 'D' else 4))
    if typ != 'D': g.front(15, "s_waitcnt lgkmcnt(3)")
    for i, x in enumerate(PRE): g.front(kb + 2 + 2 * i, x)
    if typ == 'T': return g.lines()
    g.front(kb + 12, f"s_cmp_lt_i32 s{S_N}, s{lim}")
    if mode == 'even': g.put(n - 1, f"s_cbranch_scc0 {lp}x")
    else: g.put(n - 1, f"s_cbranch_scc1 {lp}e")
    return g.lines()

def epilogue():
    ms = MS(); r = []
    vb = [b for b in range(4) if b not in ms]
    for sw in ('32', '16'):
        if not vb: break
        r += [f"v_mov_b32 v{V_T+b}, v{V_L+b}" for b in vb] + ["s_nop 1"]
        r += [f"v_permlane{sw}_swap_b32 v{V_L+b}, v{V_T+b}" for b in vb]
        r += [f"v_add_f32 v{V_L+b}, v{V_L+b}, v{V_T+b}" for b in vb]
    r += [f"v_accvgpr_read_b32 v{V_L+b}, a{LM(b)}" for b in sorted(ms)]
    for b in (C_, D_, A_, B_):
        fl = S_FL + (2 if b >= 2 else 0)
        r += [f"v_cmp_nle_f32 vcc, v{V_L+b}, v{V_THR}", f"v_rcp_f32 v{V_E+2*b}, v{V_L+b}", f"s_or_b64 s[{fl}:{fl+1}], s[{fl}:{fl+1}], vcc"]
    for b in (C_, D_, A_, B_):
        sc = S_CS if b >= 2 else S_CL
        if b & 1: r.append(f"s_add_u32 s{S_T}, s{sc}, 131072")
        for s in range(4):
            base = O(b, 2 * s)
            r += [f"v_pk_mul_f32 {vr(base+2*i, 2)}, {vr(base+2*i, 2)}, {vr(V_E+2*b, 2)} op_sel_hi:[1,0]" for i in range(4)]
            r += [f"v_cvt_pk_bf16_f32 v{base+i}, v{base+2*i}, v{base+2*i+1}" for i in range(4)]
            r.append(f"buffer_store_dwordx4 {vr(base)}, v{V_L16}, {sr(R_WS)}, s{S_T if b & 1 else sc} offen offset:{s*1024} {ST} ; @CST")
    return r

def maskblk(b0, CI=CI):
    r = []
    for i in range(4):
        r += [f"v_min_f32 v{CI(b0,0)+i}, v{CI(b0,0)+i}, v{V_M+i}", f"v_mov_b32 v{CI(b0,1)+i}, {NEG_BIG:#x}",
              f"v_min_f32 v{CI(b0+1,1)+i}, v{CI(b0+1,1)+i}, v{V_M+i}"]
    return r

def early_setup():
    return [f"s_mul_i32 s{S_SOFF}, s{S_H}, {HS}", f"s_add_u32 s{R_KV}, s{P_WS}, s{S_SOFF}", f"s_addc_u32 s{R_KV+1}, s{P_WS+1}, 0",
            f"s_lshl_b32 s{S_SOFF}, s{S_I}, 16", f"s_sub_u32 s{R_KV+2}, {HS}, s{S_SOFF}", f"s_lshl_b32 s0, s{S_W}, 12",
            f"v_add_u32 v{V_DMA}, s0, v{V_L16}", f"s_mov_b32 s{S_SOFF}, 0"]
def chunk_dma(c):
    d = dmas(f"C{c}")
    return [([f"s_mov_b32 s{S_SOFF}, {c*16384}", f"s_add_u32 m0, s0, {c*16384}"], d[0])] + [([], x) for x in d[1:]]

def chunks(c0, c1):
    r = []
    for c in range(c0, c1):
        for sal, x in chunk_dma(c): r += sal + (["s_nop 0"] if sal else []) + [x]
    return r
def prologue1():
    r = f"""
    s_lshl_b32 s{S_T}, s{S_I}, 2
    s_add_u32 s{S_US}, s{S_T}, s{S_W}
    s_sub_u32 s{S_UL}, s{S_W}, s{S_T}
    s_add_u32 s{S_UL}, s{S_UL}, 60
    s_sub_u32 s{S_USM}, s{S_US}, 1
    s_sub_u32 s{S_ULM}, s{S_UL}, 1
    s_sub_u32 s{S_T}, 61, s{S_T}
    s_bfm_b64 s[{S_BM}:{S_BM+1}], s{S_T}, 0
    s_and_b32 s{S_BM}, s{S_BM}, 0x55555555
    s_and_b32 s{S_BM+1}, s{S_BM+1}, 0x55555555
    s_lshl_b32 s{S_T}, s{S_H}, 12
    s_add_u32 s{S_T}, s{S_T}, {WS_C}
    s_lshl_b32 s{S_CL}, s{S_UL}, 18
    s_add_u32 s{S_CL}, s{S_CL}, s{S_T}
    s_lshl_b32 s{S_CS}, s{S_US}, 18
    s_add_u32 s{S_CS}, s{S_CS}, s{S_T}
    s_mov_b64 s[{S_FL}:{S_FL+1}], 0
    s_mov_b64 s[{S_FL+2}:{S_FL+3}], 0
    s_mov_b32 s{S_N}, 0
    s_mov_b32 s{S_RA}, 32768
    s_add_u32 s{S_DM}, s0, {6*16384}
    s_add_u32 s{S_DX}, s0, {8*16384}
    v_mov_b32 v{V_RA}, v{V_L16}""".split('\n')
    return [x.strip() for x in r if x.strip()]

def prologue2():
    r = kreads() + [f"v_add_u32 v{V_RA}, 16384, v{V_L16}", "s_waitcnt lgkmcnt(0)"]
    va = f"""v_mov_b32 v{V_THR}, {f2u(2.0**32):#x}
    v_and_b32 v7, 15, v1
    v_lshrrev_b32 v8, 4, v1
    v_lshlrev_b32 v8, 2, v8
    v_mov_b32 v9, 0x7f7fffff
    v_mov_b32 v10, {NEG_BIG:#x}""".split('\n')
    for i in range(4):
        va += [f"v_add_u32 v11, {i}, v8", "v_cmp_gt_u32 vcc, v11, v7", f"v_mov_b32 v{V_L+i}, 0\ns_nop 0", f"v_cndmask_b32 v{V_M+i}, v9, v10, vcc"]
    va += ["v_mov_b32 v11, 0x3f803f80"]
    va2 = [f"v_accvgpr_write_b32 a{128+i}, v11" for i in range(4)] + [f"v_accvgpr_write_b32 a{LM(0)+i}, 0" for i in range(16)]
    g = Gaps(qk(C_, 1) + qk(D_, 1) + qk(A_, 1) + qk(B_, 1))
    for i, x in enumerate(va): g.put(i, x)
    for i, x in enumerate(va2): g.put(23 + i // 3, x)
    for i, x in enumerate(kreads()): g.front(24 + i, x)
    r += g.lines() + vreads()[:4] + stamp('qk0')
    r += [f"s_cmp_lg_u32 s{S_US}, 0", "s_cbranch_scc1 AT_nm0"] + maskblk(C_, S) + ["AT_nm0:"]
    for b in (C_, D_, A_, B_):
        s0 = S(b, 0); t = V_T + b; u = V_E + b
        r += [f"v_max3_f32 v{t}, v{s0}, v{s0+1}, v{s0+2}", f"v_max3_f32 v{t}, v{t}, v{s0+3}, v{s0+4}",
              f"v_max3_f32 v{t}, v{t}, v{s0+5}, v{s0+6}", f"v_max_f32 v{t}, v{t}, v{s0+7}", f"v_mov_b32 v{u}, v{t}"]
    r.append("s_nop 1")
    r += [f"v_permlane32_swap_b32 v{V_T+b}, v{V_E+b}" for b in range(4)]
    for b in range(4): r += [f"v_max_f32 v{V_T+b}, v{V_T+b}, v{V_E+b}", f"v_mov_b32 v{V_E+b}, v{V_T+b}"]
    r.append("s_nop 1")
    r += [f"v_permlane16_swap_b32 v{V_T+b}, v{V_E+b}" for b in range(4)]
    r += [f"v_max_f32 v{V_T+b}, v{V_T+b}, v{V_E+b}" for b in range(4)]
    for b in (A_, C_, B_, D_): r += [f"v_sub_f32 v{S(b,0)+i}, v{S(b,0)+i}, v{V_T+b}" for i in range(8)]
    r += exps(A_, V_E) + exps(C_, V_E + 8) + ex(B_, 0, V_EB)
    for b in range(4): r += [f"v_sub_f32 v{CI(b,0)+i}, 0, v{V_T+b}" for i in range(8)]
    r += cvts(A_, V_E) + cvts(C_, V_E + 8) + ([] if A_ in MS() else adds(A_, V_E)) + ([] if C_ in MS() else adds(C_, V_E + 8))
    return [x.strip() for x in r]

def main_loop(after_t, at_f):
    par = lambda l: [f"s_bitcmp1_b64 s[{S_BM}:{S_BM+1}], s{S_N}", f"s_cbranch_scc1 {l}e", f"s_branch {l}o"]
    r = [f"s_cmp_lt_i32 s{S_N}, s{S_USM}", "s_cbranch_scc0 AT_Dx", ".p2align 6", "AT_De:"]
    r += period('D', 'even') + ["AT_Do:"] + period('D', 'odd')
    r += ["AT_Dx:", f"s_cmp_lg_u32 s{S_N}, s{S_US}", "s_cbranch_scc1 AT_mc"]
    r += period('T', 'dyn') + after_t
    r += [f"s_bitcmp1_b64 s[{S_BM}:{S_BM+1}], s{S_N}", "s_cbranch_scc0 AT_So", "s_branch AT_Se"]
    r += ["AT_mc:"] + maskblk(C_) + par('AT_D') + ["AT_ma:"] + maskblk(A_) + par('AT_S')
    r += [".p2align 6", "AT_Se:"] + period('S', 'even') + ["AT_So:"] + period('S', 'odd')
    r += ["AT_Sx:", f"s_cmp_lg_u32 s{S_N}, s{S_UL}", "s_cbranch_scc1 AT_ma"]
    r += at_f + period('F', 'dyn') + stamp('f') + epilogue()
    return [x.strip() for x in r]
```

```python
import math, os, struct
def opt(k, d=''): return os.environ.get(k, d)
HS = 65 * 16384
WS_KV = 0
WS_C = 36 << 20
WS_OA = 52 << 20
WS_WO = 56 << 20
WS_WA = 60 << 20
WS_END = 61 << 20
OOB = 0x40000000
NEG_BIG = 0xf149f2ca
def f2u(x): return struct.unpack('<I', struct.pack('<f', x))[0]
def vr(b, n=4): return f"v[{b}:{b+n-1}]" if n > 1 else f"v{b}"
def ar(b, n=4): return f"a[{b}:{b+n-1}]" if n > 1 else f"a{b}"
def sr(b, n=4): return f"s[{b}:{b+n-1}]" if n > 1 else f"s{b}"

class Out:
    def __init__(self): self.l = []
    def __call__(self, s):
        for x in s.split('\n'):
            x = x.strip()
            if not x: continue
            if x.endswith(':') or x.startswith('.') or x.startswith(';'): self.l.append(x)
            else: self.l.append('    ' + x)
    def ext(self, lst):
        for x in lst: self(x)
    def text(self): return '\n'.join(self.l) + '\n'

class Gaps:
    def __init__(self, mf):
        self.mf = mf; self.g = {i: [] for i in range(-1, len(mf))}
    def put(self, i, *ins):
        i = min(i, len(self.mf) - 1); self.g[i] += list(ins)
    def front(self, i, *ins):
        i = min(i, len(self.mf) - 1); self.g[i] = list(ins) + self.g[i]
    def lines(self):
        r = list(self.g[-1])
        for i, m in enumerate(self.mf): r += [m] + self.g[i]
        return r
    def emit(self, o): o.ext(self.lines())

def mfma(d, a, b, c): return f"v_mfma_f32_16x16x32_bf16 {d}, {a}, {b}, {c}"

P_XA, P_WQKV, P_WO_A, P_XB, P_CKV, P_WQ, P_WUK, P_WUV, P_WO, P_OUT, P_DBG, P_WS = [56 + 2 * i for i in range(12)]
def srd(base, ptr, nrec, add=None):
    if opt('NOACT') and ptr in (P_XA, P_XB, P_CKV): nrec = 0
    if opt('NOW') and ptr in (P_WQ, P_WUK, P_WUV, P_WQKV): nrec = 0
    if add is None: r = [f"s_mov_b32 s{base}, s{ptr}", f"s_mov_b32 s{base+1}, s{ptr+1}"]
    else: r = [f"s_add_u32 s{base}, s{ptr}, {add}", f"s_addc_u32 s{base+1}, s{ptr+1}, 0"]
    return r + [f"s_mov_b32 s{base+2}, {nrec}", f"s_mov_b32 s{base+3}, 0x20000"]
R_A0, R_A1, R_W0, R_W1, R_WS, R_X = 4, 8, 12, 16, 20, 24
S_W = 28; S_H = 29; S_I = 30
S_X = 31

def kd(name, vgpr, acc, sgpr=102):
    return f""".section .rodata,"a"
.p2align 6
.amdhsa_kernel {name}
  .amdhsa_next_free_vgpr {vgpr}
  .amdhsa_next_free_sgpr {sgpr}
  .amdhsa_accum_offset {acc}
  .amdhsa_group_segment_fixed_size 0
  .amdhsa_kernarg_size 96
  .amdhsa_user_sgpr_count 2
  .amdhsa_user_sgpr_kernarg_segment_ptr 1
  .amdhsa_system_sgpr_workgroup_id_x 1
.end_amdhsa_kernel
.text
"""
def head(name): return f".globl {name}\n.p2align 8\n.type {name},@function\n{name}:\n"

class VmQ:
    def __init__(self): self.q = []
    def scan(self, lines):
        out = []
        for x in lines:
            if x.startswith('@wait'):
                p = x.split()
                n = min(self.need(t) for t in p[1].split(','))
                extra = ' '.join(p[2:])
                out.append(f"s_waitcnt vmcnt({min(n, 63)}) {extra}".strip())
                continue
            if x.startswith('buffer_'):
                tag = x.split('@')[1].strip() if '@' in x else '-'
                if tag != 'skip': self.q.append(tag)
            out.append(x)
        return out
    def need(self, tag):
        idx = [i for i, t in enumerate(self.q) if t == tag]
        if not idx: return 63
        return len(self.q) - 1 - idx[-1]

INSTR = False
def stamp(name):
    names = opt('STAMPS', 'go,k,eng,att,f,pc').split(',')
    if name not in names: return []
    i = names.index(name) + 1
    return [f"{'s_memtime' if opt('CYC') else 's_memrealtime'} s[{84+2*i}:{85+2*i}]", "s_waitcnt lgkmcnt(0)"] if globals()["INSTR"] else []
def stamp_init():
    if not globals()["INSTR"]: return []
    return [("s_memtime" if opt('CYC') else "s_memrealtime") + " s[84:85]", "s_memtime s[80:81]"] + [f"s_mov_b32 s{84+2*i}, 0" for i in range(1, 8)]
def stamp_end(kidx):
    if not globals()["INSTR"]: return []
    r = f"""s_waitcnt vmcnt(0) lgkmcnt(0)
    {'s_memtime' if opt('CYC') else 's_memrealtime'} s[98:99]
    s_memtime s[82:83]
    s_add_u32 s4, s{P_WS}, {(128 << 20) + kidx * 65536}
    s_addc_u32 s5, s{P_WS+1}, 0
    s_mov_b32 s6, 65536
    s_mov_b32 s7, 0x20000
    s_waitcnt lgkmcnt(0)
    s_sub_u32 s82, s82, s80
    s_lshl_b32 s80, s2, 8
    s_lshl_b32 s81, s{S_W}, 6
    s_add_u32 s80, s80, s81
    v_mov_b32 v253, s80
    v_mov_b32 v252, s82""".split('\n')
    for i in range(8): r.append(f"v_mov_b32 v{244+i}, s{84+2*i}")
    r += ["s_mov_b64 exec, 1", "buffer_store_dwordx4 v[244:247], v253, s[4:7], 0 offen", "buffer_store_dwordx4 v[248:251], v253, s[4:7], 0 offen offset:16",
          "buffer_store_dword v252, v253, s[4:7], 0 offen offset:32"]
    return [x.strip() for x in r]

WS_MB = 55 << 20; MB_CTX = 0; MB_KV = 128; MB_OA = 256; MB_WO = 384
S_NON = 3
uidc = [0]
def wg_of(v_rt, v_ct, dst, tmp):
    return [f"v_and_b32 v{tmp}, 3, v{v_rt}", f"v_lshl_add_u32 v{tmp}, v{v_ct}, 2, v{tmp}", f"v_lshrrev_b32 v{dst}, 2, v{v_rt}",
            f"v_lshl_add_u32 v{dst}, v{tmp}, 3, v{dst}", f"v_lshlrev_b32 v{dst}, 9, v{dst}"]
def signal(kind, v):
    uidc[0] += 1; l = f"SG{uidc[0]}"
    r = [f"s_cmp_lg_u32 s{S_W}, 0", f"s_cbranch_scc1 {l}"]
    if kind == 'KV':
        r += [f"v_mov_b32 v{v}, s{S_H}", f"v_and_b32 v{v+1}, 7, v1"]; n = 8
        word = [f"s_lshl_b32 s100, s{S_I}, 2", f"s_add_u32 s100, s100, {WS_MB + MB_KV}"]
    elif kind == 'OA':
        r += [f"v_mov_b32 v{v}, s53", f"v_and_b32 v{v+1}, 7, v1"]; n = 8
        word = [f"s_and_b32 s100, s{S_H}, 7", "s_lshl_b32 s100, s100, 2", f"s_add_u32 s100, s100, {WS_MB + MB_OA}"]
    elif kind == 'WO':
        r += [f"v_and_b32 v{v}, 31, v1", f"v_mov_b32 v{v+1}, s{S_I}"]; n = 32
        word = [f"s_lshl_b32 s100, s{S_H}, 2", f"s_add_u32 s100, s100, {WS_MB + MB_WO}"]
    else:
        r += [f"s_lshl_b32 s100, s{S_I}, 2", "s_sub_u32 s100, 30, s100", f"v_bfe_u32 v{v+1}, v1, 4, 1", f"v_mul_lo_u32 v{v+1}, v{v+1}, s100",
              f"v_bfe_u32 v{v}, v1, 3, 1", f"s_lshl_b32 s100, s{S_I}, 1", f"v_add3_u32 v{v}, v{v}, v{v+1}, s100", f"v_and_b32 v{v+1}, 7, v1"]; n = 32
        word = [f"s_lshl_b32 s100, s{S_H}, 2", f"s_add_u32 s100, s100, {WS_MB + MB_CTX}"]
    r += wg_of(v, v + 1, v + 2, v + 3) + word + [f"v_mov_b32 v{v}, s{S_NON}", f"s_mov_b64 exec, {(1 << n) - 1:#x}",
          f"buffer_store_dword v{v}, v{v+2}, {sr(R_WS)}, s100 offen sc1 ; @skip", "s_mov_b64 exec, -1", f"{l}:"]
    return r
def poll_issue(kind, vd, tag):
    off, n = {'KV': (MB_KV, 8), 'OA': (MB_OA, 8), 'CTX': (MB_CTX, 32), 'WO': (MB_WO, 32)}[kind]
    return [f"s_lshl_b32 s100, s2, 9", f"s_add_u32 s100, s100, {WS_MB + off}", f"v_and_b32 v{vd+1}, {n-1}, v1", f"v_lshl_add_u32 v{vd+1}, v{vd+1}, 2, s100",
            f"buffer_load_dword v{vd}, v{vd+1}, {sr(R_WS)}, 0 offen sc1 ; @{tag}"]
def poll_check(vd, st, R=None, cmp=None):
    uidc[0] += 1; l = f"PL{uidc[0]}"
    R = R_WS if R is None else R
    return [f"s_mov_b32 s{st}, 0x20000", f"{l}:", cmp or f"v_cmp_ne_u32 vcc, s{S_NON}, v{vd}", f"s_cbranch_vccz {l}x ; @taken",
            f"s_sub_u32 s{st}, s{st}, 1", f"s_cbranch_scc1 {l}x", "s_sleep 4",
            f"buffer_load_dword v{vd}, v{vd+1}, {sr(R)}, 0 offen sc1 ; @skip", "s_waitcnt vmcnt(0)", f"s_branch {l}", f"{l}x:"]
```

```python
from common import *
KSCALE = f2u(math.log2(math.e) / math.sqrt(128.0))
ASC = f2u(0.25 * math.log2(math.e))
V_L16 = 2; V_AD = 4; V_WD = 8; V_WA = 10; V_TA = 11
V_TR = 16; V_PK = 24; V_TMP = 28
def WF(buf, T): return 36 + buf * 32 + T * 4
def WFA(buf, f): return 36 + buf * 12 + f * 4
AAC = 60
def XF(buf, tb): return buf * 20 + tb * 4
V_MP = 16; V_MC = 20; V_MP1 = 28; V_ONE = 32; V_AR = 116; V_AX = 118; V_A3 = 120; V_OD = 122; V_WT = 123
ACCV = 128
def QF(b, s): return 64 + (b * 4 + s) * 4
S_CK = 32; S_QL = 33; S_QS = 34; S_KA = 35; S_KW = 36; S_WC = 37; S_AR = 38; S_WL = 39
S_AG = 40; S_AL = 43; S_AW = 44; S_KB = 45; S_KVS = 46; S_T = 47; S_T2 = 48; S_T3 = 49; S_KS = 50; S_AC = 51; S_OA = 52; S_TT = 53; S_KVO = 54
PASSES = [('K', None), ('V', 'K'), ('Q', 'V'), ('A', 'Q')]
NST = 64
ST = 'sc1'
ROT = not opt('NOROT')
def ptype(G): return PASSES[G // 16][0]

def adv(s): return [f"s_add_u32 s{s}, s{s}, 128", f"s_and_b32 s{s}, s{s}, 1023"]

def act_dma(P, half):
    t = ptype(2 * P); base = (P % 3) * 8192
    pre = adv(S_KA) if half == 0 and P > 0 else []
    if t == 'A':
        r = []
        for k in range(3 * half, 3 * half + 3):
            sect, j = k >> 1, k & 1
            sal = []
            if k == 0: sal += pre + [f"s_mul_i32 s{S_T2}, s{S_KA}, 1536", f"s_add_u32 s{S_T2}, s{S_T2}, s{S_AW}"]
            if j == 0 or k == 3: sal += [f"s_add_u32 s{S_T}, s{S_T2}, {sect * 1024}", f"s_add_u32 m0, s{S_AR}, {base + sect * 2048}"]
            r.append((sal, f"buffer_load_dwordx4 v{V_WA if j == 0 else V_WT}, {sr(R_W1)}, s{S_T} offen offset:{j*1024} lds ; @X{P}"))
        return r
    R = R_A1 if t == 'Q' else R_A0
    src = (S_QS if half else S_QL) if t == 'Q' else S_CK
    sal = pre + [f"s_add_u32 s{S_T}, s{src}, s{S_KA}"]
    if t != 'Q' and half: sal += [f"s_add_u32 s{S_T}, s{S_T}, 32768"]
    sal += [f"s_add_u32 m0, s{S_AR}, {base + half * 4096}"]
    return [(sal if k == 0 else [], f"buffer_load_dwordx4 v{V_AD+k}, {sr(R)}, s{S_T} offen offset:{k*1024} lds ; @X{P}") for k in range(4)]

def w_dma(G):
    t = ptype(G); tag = f"W{G//2}"
    pre = adv(S_KB) if G % 2 == 0 and G > 0 else []
    if t != 'A':
        R = {'K': R_W0, 'V': R_W1, 'Q': R_W0}[t]
        sal = pre + ([f"s_lshl_b32 s{S_KW}, s{S_KB}, 12", f"s_add_u32 s{S_KW}, s{S_KW}, s{S_WC}"] if G % 2 == 0 else [f"s_add_u32 s{S_KW}, s{S_KW}, 262144"])
        sal += [f"s_add_u32 m0, s{S_WL}, {(G % 8) * 8192}"]
        return [(sal, f"buffer_load_dwordx4 v{V_WD}, {sr(R)}, s{S_KW} offen lds ; @{tag}"),
                ([], f"buffer_load_dwordx4 v{V_WD+1}, {sr(R)}, s{S_KW} offen offset:1024 lds ; @{tag}")]
    r = []
    for k in ((0, 1) if G % 2 == 0 else (2,)):
        r.append(((pre if k == 0 else []) + [f"s_add_u32 s{S_T3}, s{S_AG+k}, s{S_KB}", f"s_add_u32 m0, s{S_AL}, {((G // 2) % 4) * 16384 + k * 1024}"],
                  f"buffer_load_dwordx4 v{V_A3 + (k & 1)}, {sr(R_A0)}, s{S_T3} offen lds ; @{tag}"))
    return r

def reads(G):
    t = ptype(G); buf = G & 1; P = G // 2
    if t == 'A':
        r = [f"ds_read_b128 {ar(XF(buf, tb))}, v{V_AX + (G & 1)} offset:{(P % 4) * 16384 + tb * 2048}" for tb in range(5)]
        for f, sect in enumerate((1, 2, 0)):
            r += [f"ds_read_b64_tr_b16 {vr(WFA(buf, f) + 2*e, 2)}, v{V_TA + (G & 1)} offset:{(P % 3) * 8192 + sect * 2048 + e * 512}" for e in range(2)]
        return r
    r = [f"ds_read_b128 {ar(XF(buf, tb))}, v{V_AR + (G & 1)} offset:{(P % 3) * 8192 + tb * 2048}" for tb in range(4)]
    for T in range(8):
        r += [f"ds_read_b64_tr_b16 {vr(WF(buf, T) + 2*e, 2)}, v{V_TR+T} offset:{(G % 8) * 8192 + e * 1024}" for e in range(2)]
    return r

def AACC(f, tb): return AAC + (f * 5 + tb - (1 if f == 2 else 0)) * 4
def mfmas(G):
    t = ptype(G); ks = G % 16; buf = G & 1; mf = []
    if t == 'A':
        for f in range(3):
            for tb in range(1 if f == 2 else 0, 5):
                d = vr(AACC(f, tb)); c = d if ks else '0'
                if f == 1: mf.append(mfma(d, ar(XF(buf, tb)), vr(WFA(buf, f)), c))
                else: mf.append(mfma(d, vr(WFA(buf, f)), ar(XF(buf, tb)), c))
        return mf
    for T in range(8):
        for tb in range(4):
            d = (ar if t == 'V' else vr)(ACCV + (T * 4 + tb) * 4); c = d if ks else '0'
            if t == 'V': mf.append(mfma(d, ar(XF(buf, tb)), vr(WF(buf, T)), c))
            else: mf.append(mfma(d, vr(WF(buf, T)), ar(XF(buf, tb)), c))
    return mf

def drain(dt, k):
    pk = V_PK
    if dt == 'K':
        tb, s = k >> 2, k & 3
        lo = ACCV + ((2 * s) * 4 + tb) * 4; hi = lo + 16
        va = [f"v_mul_f32 v{r}, s{S_KS}, v{r}" for r in list(range(lo, lo + 4)) + list(range(hi, hi + 4))]
        src = [lo, lo + 2, hi, hi + 2]
        off = (tb >> 1) * 16384 + ((tb & 1) * 4 + s) * 1024
    elif dt == 'V':
        p, T = k >> 3, k & 7
        lo = ACCV + (T * 4 + 2 * p) * 4
        va = [f"v_accvgpr_read_b32 v{V_TMP+r}, a{lo+r}" for r in range(8)]
        src = [V_TMP + 2 * r for r in range(4)]
        off = (p + 1) * 16384 + 8192 + T * 1024
    else:
        tb, s = k >> 2, k & 3
        lo = ACCV + ((2 * s) * 4 + tb) * 4; hi = lo + 16
        src = [lo, lo + 2, hi, hi + 2]
        va = [f"v_cvt_pk_bf16_f32 v{pk+i}, v{x}, v{x+1}" for i, x in enumerate(src)]
        va += [f"v_accvgpr_write_b32 a{QF(tb, s)+i}, v{pk+i}" for i in range(4)]
        z = [lo, hi] if tb else []
        if 10 <= k < 14: z += [ACCV + 32 * (k - 10), ACCV + 32 * (k - 10) + 16]
        va += [f"v_mov_b32 v{x+i}, 0" for x in z for i in range(4)]
        return va, [], []
    va += [f"v_cvt_pk_bf16_f32 v{pk+i}, v{x}, v{x+1}" for i, x in enumerate(src)]
    return va, [f"s_add_u32 s{S_KVO}, s{S_KVS}, {off}"], [f"buffer_store_dwordx4 {vr(pk)}, v{V_L16}, {sr(R_WS)}, s{S_KVO} offen {opt('KVST', ST)} ; @ST{dt}"]

def step(G, hooks):
    t = ptype(G); ks = G % 16; dr = PASSES[G // 16][1]
    g = Gaps(mfmas(G))
    nxt = G + 1 < NST
    big = t != 'A'; odd = G % 2 == 1
    rd = reads(G + 1) if nxt else []
    ap = (G + 5) // 2
    ad = act_dma(ap, 1 - G % 2) if ap < NST // 2 and G > 0 else []
    wd = w_dma(G + 7) if G + 7 < NST else hooks.get(('dma', G), [])
    va, dsal, dst = drain(dr, ks) if dr else ([], [], [])
    tags = ([f"X{(G+1)//2}", f"W{(G+1)//2}"] if odd and nxt else []) + hooks.get(('wait', G), [])
    full = [f"@wait {','.join(tags)} lgkmcnt(0)" if tags else "s_waitcnt lgkmcnt(0)"] + (["s_barrier"] if odd and nxt else [])
    if big:
        g.put(-1, "s_waitcnt lgkmcnt(12)")
        dgap = [6, 10, 14, 18]; wgap = [22, 26, 30, 31]; sgap = 30
        if odd or len(rd) != 20:
            g.front(3, *full); r0 = 4
        else:
            r0 = 0
        rgap = [x for x in range(r0, 30) if x not in dgap + wgap]
        vgap = [0, 1, 2, 4, 5, 7, 8, 9, 11, 12, 13, 15, 16, 17]
    else:
        g.put(-1, "s_waitcnt lgkmcnt(4)")
        g.front(1, *full)
        dgap = [3, 5, 7, 8]; wgap = [9, 11, 12, 13]; sgap = 13
        rgap = [2, 4, 6, 8, 10, 12, 3, 5, 7, 9, 11]
        rgap = sorted(rgap)
        vgap = [0, 0, 2, 3, 4, 5, 6, 7, 8, 9, 10, 11, 12, 13, 13, 13] + [13] * 8
    for x, gp in zip(rd, rgap): g.put(gp, x)
    if big and not (odd or len(rd) != 20):
        n7 = sum(1 for x in rgap[:20] if x < 7)
        g.front(7, *([f"@wait {','.join(tags)} lgkmcnt({n7})"] if tags else [f"s_waitcnt lgkmcnt({n7})"]))
    for (sal, x), gp in list(zip(ad, dgap)) + list(zip(wd, wgap)):
        for k, y in enumerate(sal):
            q = max(gp - len(sal) + k, 0)
            pos = max([i + 1 for i, z in enumerate(g.g[q]) if z.startswith('buffer_load') or z.startswith('s_')] + [0])
            g.g[q].insert(pos, y)
        g.put(gp, x)
    for x, gp in zip(va, vgap): g.put(gp, x)
    for x in dsal: g.front(sgap - 2, x)
    for x in dst: g.put(sgap, x)
    for gp, x in hooks.get(('misc', G), []): g.front(gp, x) if x.startswith('s_') and '\n' not in x else g.put(gp, x)
    return g.lines()

def setup():
    a = f"""v_and_b32 v1, 63, v0
    v_lshlrev_b32 v{V_L16}, 4, v1
    v_lshrrev_b32 v26, 3, v1
    v_lshrrev_b32 v24, 4, v1
    v_and_b32 v28, 7, v1
    v_xor_b32 v27, v24, v28
    v_lshlrev_b32 v27, 4, v27
    v_lshl_add_u32 v{V_AD}, v26, 10, v27
    v_xor_b32 v27, 64, v{V_AD}
    v_add_u32 v{V_AD+1}, {8192-1024}, v27
    v_add_u32 v{V_AD+2}, {2*(8192-1024)}, v{V_AD}
    v_add_u32 v{V_AD+3}, {3*(8192-1024)}, v27
    s_and_b32 s{S_T}, s{S_W}, 1
    s_lshl_b32 s{S_T}, s{S_T}, 2
    v_or_b32 v25, s{S_T}, v24
    v_lshlrev_b32 v25, 1, v25
    v_and_b32 v26, 15, v1
    v_xor_b32 v25, v25, v26
    v_lshlrev_b32 v25, 4, v25
    v_lshl_add_u32 v25, v24, 13, v25
    s_lshl_b32 s{S_T}, s{S_W}, 16
    v_add_u32 v{V_WD}, s{S_T}, v25
    v_add_u32 v{V_WD+1}, {4*8192-1024}, v{V_WD}
    s_lshl_b32 s{S_CK}, s{S_I}, 18
    s_add_u32 s{S_CK}, s{S_CK}, s{S_T}
    s_lshl_b32 s{S_WC}, s{S_H}, 8
    s_mul_i32 s{S_AR}, s{S_W}, 24576
    s_add_u32 s{S_AR}, s{S_AR}, 65536
    s_lshl_b32 s{S_WL}, s{S_W}, 11
    s_add_u32 s{S_KA}, s{S_I}, s{S_H}
    s_and_b32 s{S_KA}, s{S_KA}, {7 if ROT else 0}
    s_lshl_b32 s{S_KA}, s{S_KA}, 7
    s_mov_b32 s{S_KB}, s{S_KA}""".split('\n')
    b = f"""v_and_b32 v24, 15, v1
    v_lshrrev_b32 v25, 4, v1
    v_lshrrev_b32 v26, 1, v24
    v_xor_b32 v26, v26, v25
    v_lshlrev_b32 v26, 4, v26
    v_lshl_add_u32 v{V_AX}, v24, 7, v26
    v_xor_b32 v{V_AX+1}, 64, v{V_AX}
    v_add_u32 v{V_AR}, s{S_AR}, v{V_AX}
    v_xor_b32 v{V_AR+1}, 64, v{V_AR}
    v_bfe_u32 v26, v1, 2, 2
    v_lshl_add_u32 v27, v25, 3, v26
    v_and_b32 v28, 1, v25
    v_lshl_or_b32 v29, v28, 2, v26
    v_lshlrev_b32 v29, 5, v29
    v_lshl_add_u32 v29, v27, 8, v29
    v_and_b32 v30, 3, v1
    v_lshl_add_u32 v{V_TR}, v30, 3, v29
    v_lshl_add_u32 v27, v28, 3, v26
    v_lshlrev_b32 v27, 7, v27
    v_lshl_add_u32 v27, v30, 3, v27
    v_lshrrev_b32 v26, 1, v26
    v_lshl_or_b32 v26, v28, 1, v26
    v_xor_b32 v26, s{S_W}, v26
    v_lshl_add_u32 v27, v26, 5, v27
    v_lshrrev_b32 v26, 5, v1
    v_mul_u32_u24 v26, 24576, v26
    v_add_u32 v27, v27, v26
    v_add_u32 v{V_TA}, 0x10000, v27
    v_add_u32 v{V_TA+1}, {65536 + 49152}, v27
    v_lshrrev_b32 v26, 3, v1
    v_and_b32 v27, 2, v26
    v_and_b32 v28, 7, v1
    v_xor_b32 v27, v27, v28
    v_lshlrev_b32 v27, 4, v27
    v_mul_u32_u24 v26, 3072, v26
    v_add_u32 v{V_WA}, v26, v27
    v_xor_b32 v27, 64, v27
    v_add_u32 v26, v26, v27
    v_add_u32 v{V_WT}, {8*3072-1024}, v26
    s_and_b32 s{S_T}, s{S_W}, 1
    s_lshl_b32 s{S_T}, s{S_T}, 6
    v_xor_b32 v{V_A3}, s{S_T}, v{V_AD}
    v_xor_b32 v{V_A3+1}, 64, v{V_A3}
    s_lshl_b32 s{S_T}, s{S_I}, 2
    s_add_u32 s{S_QS}, s{S_T}, s{S_W}
    s_sub_u32 s{S_QL}, s{S_W}, s{S_T}
    s_add_u32 s{S_QL}, s{S_QL}, 60
    s_lshl_b32 s{S_QL}, s{S_QL}, 15
    s_lshl_b32 s{S_QS}, s{S_QS}, 15
    s_mul_i32 s{S_KVS}, s{S_H}, {HS}
    s_lshl_b32 s{S_T}, s{S_I}, 17
    s_add_u32 s{S_KVS}, s{S_KVS}, s{S_T}
    s_lshl_b32 s{S_T}, s{S_W}, 15
    s_add_u32 s{S_KVS}, s{S_KVS}, s{S_T}
    s_mov_b32 s{S_KS}, {KSCALE}
    s_mov_b32 s{S_AC}, {ASC}
    s_lshr_b32 s{S_TT}, s{S_X}, 1
    s_lshl_b32 s{S_TT}, s{S_TT}, 3
    s_add_u32 s{S_TT}, s{S_TT}, s{S_I}
    s_and_b32 s{S_OA}, s{S_H}, 7
    s_lshl_b32 s{S_AW}, s{S_OA}, 7
    s_mul_i32 s{S_T}, s{S_W}, {16*3072}
    s_add_u32 s{S_AW}, s{S_AW}, s{S_T}
    s_mul_i32 s{S_AL}, s{S_W}, 3072
    s_lshl_b32 s{S_T}, s{S_TT}, 16
    s_lshl_b32 s{S_KVO}, s{S_AL}, 3
    s_add_u32 s{S_T}, s{S_T}, s{S_KVO}
    s_sub_u32 s{S_AG}, s{S_T}, 16384
    s_cselect_b32 s{S_AG}, {OOB}, s{S_AG}
    s_sub_u32 s{S_AG+1}, s{S_T}, 8192
    s_cselect_b32 s{S_AG+1}, {OOB}, s{S_AG+1}
    s_mov_b32 s{S_AG+2}, s{S_T}
    s_cmp_eq_u32 s{S_W}, 3
    s_cselect_b32 s{S_AG+1}, {OOB}, s{S_AG+1}
    s_cselect_b32 s{S_AG+2}, {OOB}, s{S_AG+2}
    s_lshl_b32 s{S_OA}, s{S_OA}, 11
    s_lshl_b32 s{S_T}, s{S_TT}, 16
    s_add_u32 s{S_OA}, s{S_OA}, s{S_T}
    s_lshr_b32 s{S_T}, s{S_W}, 1
    s_lshl_b32 s{S_T}, s{S_T}, 10
    s_add_u32 s{S_OA}, s{S_OA}, s{S_T}
    s_add_u32 s{S_OA}, s{S_OA}, {WS_OA}
    s_and_b32 s{S_T}, s{S_W}, 1
    s_lshl_b32 s{S_T}, s{S_T}, 3
    v_add_u32 v{V_OD}, s{S_T}, v{V_L16}""".split('\n')
    for T in range(1, 8): b.append(f"v_xor_b32 v{V_TR+T}, {32*T}, v{V_TR}")
    return [x.strip() for x in a], [x.strip() for x in b]

def a_masks():
    b = [f"v_and_b32 v124, 15, v1\nv_lshrrev_b32 v125, 4, v1\nv_lshlrev_b32 v125, 2, v125\nv_sub_u32 v124, v124, v125\nv_mov_b32 v125, {NEG_BIG:#x}\n" +
         "\n".join(f"v_mov_b32 v{V_ONE+r}, 0x3f803f80" for r in range(4))]
    for r in range(4):
        b.append(f"""v_subrev_u32 v126, {r}, v124
        v_and_b32 v127, -15, v126
        v_cmp_ne_u32 vcc, 0, v127
        v_add_u32 v126, 16, v126
        v_and_b32 v127, -15, v126
        v_cndmask_b32 v{V_MC+r}, 0, v125, vcc
        v_cmp_ne_u32 vcc, 0, v127
        s_nop 1
        v_cndmask_b32 v{V_MP+r}, 0, v125, vcc""")
    b.append(f"s_cmp_eq_u32 s{S_TT}, 0\ns_cselect_b32 s100, 0, {0x7f7fffff}\ns_cselect_b32 s100, {NEG_BIG}, s100\n" + "\n".join(f"v_min_f32 v{V_MP1+r}, s100, v{V_MP+r}" for r in range(4)))
    return b

def a_attention():
    r = ["s_nop 4"]
    pk = lambda f, tb: AAC + (AACC(f, tb) - AAC) // 2
    for i in range(28): r.append(f"v_cvt_pk_bf16_f32 v{AAC+i}, v{AAC+2*i}, v{AAC+2*i+1}")
    SS = lambda i: 88 + i * 8
    M = 36; U = 40; OO = lambda i: 44 + i * 4
    r.append("s_nop 0")
    for i in range(4):
        mp = V_MP1 if i == 0 else V_MP
        r.append(f"v_mfma_f32_16x16x16_bf16 {vr(SS(i))}, {vr(pk(0, i), 2)}, {vr(pk(2, i+1), 2)}, {vr(mp)}")
        r.append(f"v_mfma_f32_16x16x16_bf16 {vr(SS(i)+4)}, {vr(pk(0, i+1), 2)}, {vr(pk(2, i+1), 2)}, {vr(V_MC)}")
    r.append("s_nop 5")
    for i in range(4):
        s0 = SS(i)
        r += [f"v_max3_f32 v{M+i}, v{s0}, v{s0+1}, v{s0+2}", f"v_max3_f32 v{M+i}, v{M+i}, v{s0+3}, v{s0+4}",
              f"v_max3_f32 v{M+i}, v{M+i}, v{s0+5}, v{s0+6}", f"v_max_f32 v{M+i}, v{M+i}, v{s0+7}", f"v_mov_b32 v{U+i}, v{M+i}"]
    for sw in ('32', '16'):
        r.append("s_nop 1")
        r += [f"v_permlane{sw}_swap_b32 v{M+i}, v{U+i}" for i in range(4)]
        for i in range(4):
            r.append(f"v_max_f32 v{M+i}, v{M+i}, v{U+i}")
            if sw == '32': r.append(f"v_mov_b32 v{U+i}, v{M+i}")
    r += [f"v_mul_f32 v{M+i}, s{S_AC}, v{M+i}" for i in range(4)]
    for i in range(4):
        r += [f"v_fma_f32 v{SS(i)+k}, v{SS(i)+k}, s{S_AC}, -v{M+i}" for k in range(8)]
        r += [f"v_exp_f32 v{SS(i)+k}, v{SS(i)+k}" for k in range(8)]
    for i in range(4):
        r += [f"v_cvt_pk_bf16_f32 v{SS(i)+k}, v{SS(i)+2*k}, v{SS(i)+2*k+1}" for k in range(4)]
    r.append("s_nop 1")
    for i in range(4):
        r.append(mfma(vr(SS(i) + 4), vr(V_ONE), vr(SS(i)), '0'))
        r.append(mfma(vr(OO(i)), vr(pk(1, i)), vr(SS(i)), '0'))
    r.append("s_nop 5")
    r += [f"v_rcp_f32 v{M+i}, v{SS(i)+4}" for i in range(4)]
    for i in range(4): r += [f"v_mul_f32 v{OO(i)+k}, v{M+i}, v{OO(i)+k}" for k in range(4)]
    for i in range(4):
        d = 88 + i * 2
        r += [f"v_cvt_pk_bf16_f32 v{d}, v{OO(i)}, v{OO(i)+1}", f"v_cvt_pk_bf16_f32 v{d+1}, v{OO(i)+2}, v{OO(i)+3}", f"s_add_u32 s{S_KVO}, s{S_OA}, {i*16384}",
              f"buffer_store_dwordx2 {vr(d, 2)}, v{V_OD}, {sr(R_WS)}, s{S_KVO} offen {ST} ; @STO"]
    return r

def publish_nonce():
    return ["s_lshl_b32 s100, s2, 2", f"s_or_b32 s100, s100, s{S_W}", "s_cmp_lg_u32 s100, 0", "s_cbranch_scc1 L_nononce", "s_memrealtime s[100:101]", "s_waitcnt lgkmcnt(0)",
            "s_or_b32 s100, s100, 1", "v_mov_b32 v14, s100", "v_mov_b32 v15, 0", "s_mov_b64 exec, 1",
            f"buffer_store_dword v14, v15, {sr(R_X)}, 0 offen sc1 ; @skip", "s_mov_b64 exec, -1", "L_nononce:"]

def engine(hooks):
    a, b = setup()
    r = list(a) + ["s_waitcnt lgkmcnt(0)"]
    r += srd(R_A0, P_CKV, 2 << 20) + srd(R_W0, P_WUK, 4 << 20)
    for G in range(7):
        if G < 6:
            for sal, x in act_dma(G // 2, G % 2): r += sal + (["s_nop 0"] if sal else []) + [x]
        for sal, x in w_dma(G): r += sal + (["s_nop 0"] if sal else []) + [x]
    r += b
    r += srd(R_A1, P_XB, 2 << 20) + srd(R_W1, P_WUV, 4 << 20) + srd(R_WS, P_WS, WS_END) + srd(R_X, P_DBG, 256)
    r += publish_nonce()
    r += ["@wait X0,W0", "s_barrier"] + stamp('go') + reads(0)
    hk = dict(hooks)
    def add(G, gp, lines): hk[('misc', G)] = hk.get(('misc', G), []) + [(gp + i, x) for i, x in enumerate(lines)]
    add(10, 23, srd(R_W0, P_WQ, 4 << 20)[:2])
    add(28, 23, srd(R_A0, P_XA, 2 << 20)[:2])
    add(29, 23, srd(R_W1, P_WQKV, 1536 * 1024)[:3])
    for G in range(NST):
        r += step(G, hk)
        r += stamp(f'g{G}')
    return r
```

```python
from common import *
import eng
from eng import V_L16, V_AD, S_AR, ST
V_CO = 4; V_PA = 120; V_PW = 122; V_PC = 12; V_OUT = 14; V_RW = 15; V_RR = 16
def ACC(T, tb): return 64 + (T * 4 + tb) * 4
def ACA(T, tb): return 192 + (T * 4 + tb) * 4
NW = 12; NC = 8
def WB(kk, T): return (kk % NW) * 16 + T * 4
def CX(kk, tb): return 128 + (kk % NC) * 16 + tb * 4
S_CB = 34; S_WB = 35; S_T = 37; S_GC = 40; S_GW = 41; S_ROT = 44; S_OAB = 45; S_WAB = 46; S_OUT = 47
R_OUT = R_A0
LD = opt('LD_POL', 'sc1')

def RX(i): return 128 + 16 * i
def relayout_loads():
    r = srd(R_W0, P_WO_A, 512 * 1024)[:3] + [f"s_and_b32 s100, s{S_H}, 7", "s_cmp_lg_u32 s100, 0", "s_cbranch_scc1 RL_a",
         f"s_lshr_b32 s100, s{S_H}, 1", f"s_add_u32 s100, s100, s{S_W}", "s_lshl_b32 s100, s100, 15", f"s_lshl_b32 s101, s{S_I}, 7", "s_add_u32 s100, s100, s101",
         f"s_lshl_b32 s101, s{S_W}, 14", "s_add_u32 m0, s101, 12288", "s_nop 0"]
    r += [f"buffer_load_dwordx4 v{V_AD+k}, {sr(R_W0)}, s100 offen offset:{k*1024} lds ; @skip" for k in range(4)]
    r += ["RL_a:"] + srd(R_W0, P_WO, 4 << 20)[:3]
    r += [f"s_lshl2_add_u32 s100, s{S_H}, s{S_W}", "s_lshl_b32 s100, s100, 15", f"s_lshl_b32 s101, s{S_I}, 7", "s_add_u32 s100, s100, s101", f"s_add_u32 m0, s{S_AR}, 6144", "s_nop 0"]
    r += [f"buffer_load_dwordx4 v{V_AD+k}, {sr(R_W0)}, s100 offen offset:{k*1024} lds ; @WO" for k in range(2)]
    r += [f"s_add_u32 m0, s{S_AR}, {8192 + 6144 - 2048}", "s_nop 0"]
    r += [f"buffer_load_dwordx4 v{V_AD+k}, {sr(R_W0)}, s100 offen offset:{k*1024} lds ; @WO" for k in range(2, 4)]
    return r
def relayout_reads():
    a = 124; V_X = 126
    r = [f"v_lshrrev_b32 v{a}, 2, v1", f"v_lshrrev_b32 v{a+1}, 3, v1", f"v_and_b32 v{V_X}, 3, v1", f"v_xor_b32 v{a+1}, v{a+1}, v{V_X}", f"v_lshlrev_b32 v{a+1}, 4, v{a+1}",
         f"v_lshl_add_u32 v{a+1}, v{a}, 7, v{a+1}", f"s_and_b32 s100, s{S_H}, 7", "s_cmp_lg_u32 s100, 0", "s_cbranch_scc1 RL_b",
         f"s_lshl_b32 s101, s{S_W}, 14", f"v_add_u32 v{a}, s101, v{a+1}", f"v_xor_b32 v{V_X}, 64, v{a}"]
    for T in range(4):
        for e in range(2):
            r.append(f"ds_read_b64_tr_b16 {vr(RX(4 + T) + 2*e, 2)}, v{a if T < 2 else V_X} offset:{12288 + e * 2048 + (T & 1) * 8}")
    r += ["RL_b:", f"v_add_u32 v{a}, s{S_AR}, v{a+1}", f"v_xor_b32 v{a+1}, 64, v{a}"]
    for T in range(4):
        for e in range(2):
            r.append(f"ds_read_b64_tr_b16 {vr(RX(T) + 2*e, 2)}, v{a + (T >> 1)} offset:{6144 + e * 8192 + (T & 1) * 8}")
    return r
def relayout_stores():
    r = [f"s_lshl_b32 s100, s{S_I}, 5", f"s_add_u32 s100, s100, s{S_H}", f"s_lshl2_add_u32 s100, s100, s{S_W}", "s_lshl_b32 s100, s100, 12", f"s_add_u32 s100, s100, {WS_WO}"]
    r += [f"buffer_store_dwordx4 {vr(RX(T))}, v{V_L16}, {sr(R_WS)}, s100 offen offset:{T*1024} {ST} ; @STW" for T in range(4)]
    r += [f"s_and_b32 s100, s{S_H}, 7", "s_cmp_lg_u32 s100, 0", "s_cbranch_scc1 RL_c",
          f"s_lshl_b32 s100, s{S_I}, 4", f"s_lshr_b32 s101, s{S_H}, 1", "s_add_u32 s100, s100, s101", f"s_add_u32 s100, s100, s{S_W}", "s_lshl_b32 s100, s100, 12", f"s_add_u32 s100, s100, {WS_WA}"]
    r += [f"buffer_store_dwordx4 {vr(RX(4 + T))}, v{V_L16}, {sr(R_WS)}, s100 offen offset:{T*1024} {ST} ; @skip" for T in range(4)]
    return r + ["RL_c:"]

def grp(reg, base, sh, kk):
    return [f"s_add_u32 s{reg}, s{S_ROT}, {kk >> 2}", f"s_and_b32 s{reg}, s{reg}, 7", f"s_lshl_b32 s{reg}, s{reg}, {sh}", f"s_add_u32 s{reg}, s{reg}, s{base}"]
def w_ld(kk):
    r = grp(S_GW, S_WB, 14, kk) if kk % 4 == 0 else [f"s_add_u32 s{S_GW}, s{S_GW}, 4096"]
    return r + [f"buffer_load_dwordx4 {ar(WB(kk, T))}, v{V_L16}, {sr(R_WS)}, s{S_GW} offen offset:{T*1024} {LD} ; @W{kk}" for T in range(4)]
def c_ld(kk):
    r = grp(S_GC, S_CB, 12, kk) if kk % 4 == 0 else []
    return r + [f"buffer_load_dwordx4 {vr(CX(kk, tb))}, v{V_CO+tb}, {sr(R_WS)}, s{S_GC} offen offset:{(kk & 3)*1024} {LD} ; @C{kk}" for tb in range(4)]
def AW(k, T): return 64 + k * 16 + T * 4
def AC(k, tb): return 128 + k * 16 + tb * 4

def polls(): return poll_issue('OA', V_PA, 'PA') + poll_issue('WO', V_PW, 'PW')

def pre_join():
    r = f"""s_lshl_b32 s{S_T}, s{S_W}, 14
    s_lshl_b32 s{S_WAB}, s{S_I}, 16
    s_add_u32 s{S_WAB}, s{S_WAB}, s{S_T}
    s_add_u32 s{S_WAB}, s{S_WAB}, {WS_WA}
    s_lshl_b32 s{S_WB}, s{S_I}, 19
    s_lshl_b32 s{S_T}, s{S_W}, 17
    s_add_u32 s{S_WB}, s{S_WB}, s{S_T}
    s_add_u32 s{S_WB}, s{S_WB}, {WS_WO}
    s_lshl_b32 s{S_OAB}, s{S_H}, 16
    s_lshl_b32 s{S_T}, s{S_W}, 12
    s_add_u32 s{S_OAB}, s{S_OAB}, s{S_T}
    s_add_u32 s{S_OAB}, s{S_OAB}, {WS_OA}
    s_and_b32 s{S_ROT}, s{S_H}, {int(opt('ROTM', '0'))}
    @wait PA,PW""".split('\n')
    r += poll_check(V_PA, S_T) + poll_check(V_PW, S_T)
    for k in range(4):
        r += [f"s_add_u32 s{S_T}, s{S_WAB}, {k * 4096}"] + [f"buffer_load_dwordx4 {ar(AW(k, T))}, v{V_L16}, {sr(R_WS)}, s{S_T} offen offset:{T*1024} {LD} ; @A{k}" for T in range(4)]
        for tb in range(4):
            r += [f"s_add_u32 s{S_T}, s{S_OAB}, {tb * 16384}", f"buffer_load_dwordx4 {ar(AC(k, tb))}, v{V_L16}, {sr(R_WS)}, s{S_T} offen offset:{k*1024} {LD} ; @A{k}"]
    for kk in range(4): r += (["s_waitcnt vmcnt(56)"] if kk == 3 else []) + w_ld(kk)
    return [x.strip() for x in r]

def xwrite(acc, isa, kind):
    r = []
    for d in range(1, 4):
        for T in range(4): pass
    return r

def outproj():
    r = poll_issue('CTX', V_PC, 'PC')
    r += f"""v_mov_b32 v{V_CO}, v{V_L16}
    v_add_u32 v{V_CO+1}, 0x20000, v{V_L16}
    v_add_u32 v{V_CO+2}, 0x40000, v{V_L16}
    v_add_u32 v{V_CO+3}, 0x60000, v{V_L16}
    s_lshl_b32 s{S_CB}, s{S_H}, 19
    s_lshl_b32 s{S_T}, s{S_W}, 15
    s_add_u32 s{S_CB}, s{S_CB}, s{S_T}
    s_add_u32 s{S_CB}, s{S_CB}, {WS_C}
    s_lshl_b32 s{S_OUT}, s{S_H}, 17
    s_add_u32 s{S_OUT}, s{S_OUT}, s{S_T}
    s_lshl_b32 s{S_T}, s{S_I}, 7
    s_add_u32 s{S_OUT}, s{S_OUT}, s{S_T}
    v_and_b32 v{V_OUT}, 15, v1
    v_lshlrev_b32 v{V_OUT}, 11, v{V_OUT}
    v_lshrrev_b32 v20, 4, v1
    v_lshl_add_u32 v{V_OUT}, v20, 4, v{V_OUT}
    s_lshl_b32 s{S_T}, s{S_W}, 12
    v_add_u32 v{V_RW}, s{S_T}, v{V_L16}
    s_lshl_b32 s{S_T}, s{S_W}, 14
    v_add_u32 v{V_RR}, s{S_T}, v{V_L16}""".split('\n')
    r += srd(R_OUT, P_OUT, 4 << 20)
    for k in range(4):
        r += [f"@wait A{k}"] + [mfma(ar(ACA(T, tb)), ar(AW(k, T)), ar(AC(k, tb)), ar(ACA(T, tb)) if k else '0') for T in range(4) for tb in range(4)]
    for kk in range(4, 8): r += w_ld(kk)
    r += stamp('a2') + ["@wait PC"] + poll_check(V_PC, S_T) + stamp('pc')
    for kk in range(7): r += c_ld(kk)
    r += [f"ds_write_b128 v{V_RW}, {ar(ACA(T, tb))} offset:{tb * 16384 + T * 1024}" for tb in range(4) for T in range(4)]
    for kk in range(32):
        mf = [mfma(vr(ACC(T, tb)), ar(WB(kk, T)), vr(CX(kk, tb)), vr(ACC(T, tb)) if kk else '0') for T in range(4) for tb in range(4)]
        g = Gaps(mf)
        g.put(-1, f"@wait C{kk},W{kk}")
        ld = (w_ld(kk + 8) if kk + 8 < 32 else []) + (c_ld(kk + 7) if kk + 7 < 32 else [])
        gp = 0
        for x in ld:
            g.put(gp, x)
            if x.startswith('buffer'): gp += 2
        r += g.lines()
        if kk == 2:
            r += ["s_waitcnt lgkmcnt(0)", "s_barrier"] + rd4(20, 0)
        if kk == 4: r += ["s_waitcnt lgkmcnt(0)"] + red(20, 0)
    r += stamp('opl') + ["s_nop 6"]
    r += [f"v_add_u32 v{V_RW}, 0x10000, v{V_RW}", f"v_add_u32 v{V_RR}, 0x10000, v{V_RR}"]
    r += [f"ds_write_b128 v{V_RW}, {vr(ACC(T, tb))} offset:{tb * 16384 + T * 1024}" for tb in range(4) for T in range(4)]
    r += ["s_waitcnt lgkmcnt(0)", "s_barrier"] + rd4(128, 1) + ["s_waitcnt lgkmcnt(0)"] + red(128, 1)
    return [x.strip() for x in r]

def rd4(b, part):
    if part == 0:
        return [f"ds_read_b128 {ar(192 + (s * 4 + T) * 4)}, v{V_RR} offset:{s * 4096 + T * 1024}" for s in range(4) for T in range(4)]
    return [f"ds_read_b128 {vr(b + (s * 4 + T) * 4)}, v{V_RR} offset:{s * 4096 + T * 1024}" for s in range(4) for T in range(4)]
def red(b, part):
    r = []
    if part == 0:
        for i in range(16):
            r += [f"v_accvgpr_read_b32 v{b+i}, a{192+i}", f"v_accvgpr_read_b32 v{b+16}, a{208+i}", f"v_accvgpr_read_b32 v{b+17}, a{224+i}", f"v_accvgpr_read_b32 v{b+18}, a{240+i}",
                  f"v_add_f32 v{b+i}, v{b+i}, v{b+16}", f"v_add_f32 v{b+17}, v{b+17}, v{b+18}", f"v_add_f32 v{b+i}, v{b+i}, v{b+17}"]
    else:
        for i in range(16): r += [f"v_add_f32 v{b+i}, v{b+i}, v{b+16+i}", f"v_add_f32 v{b+32+i}, v{b+32+i}, v{b+48+i}"]
        r += [f"v_add_f32 v{b+i}, v{b+i}, v{b+32+i}" for i in range(16)]
    r += [f"v_cvt_pk_bf16_f32 v{b+i}, v{b+2*i}, v{b+2*i+1}" for i in range(8)]
    r += [f"buffer_store_dwordx4 {vr(b + 4*p)}, v{V_OUT}, {sr(R_OUT)}, s{S_OUT} offen offset:{part*1024 + p*64}" for p in range(2)]
    return r
```

```python
import re, sys
import numpy as np

M32 = 0xFFFFFFFF
TRANS = {'v_exp_f32','v_log_f32','v_rcp_f32','v_rsq_f32','v_sqrt_f32','v_sin_f32','v_cos_f32'}

class Ins:
    __slots__ = ('op','args','mods','line','text','rd','wr','kind','true')

def regs_of(tok):
    tok = tok.strip()
    neg = tok.lstrip('-')
    if neg.startswith('abs(') : neg = neg[4:-1]
    if neg.startswith('|'): neg = neg.strip('|')
    m = re.fullmatch(r'([vas])(\d+)', neg)
    if m: return [(m.group(1), int(m.group(2)))]
    m = re.fullmatch(r'([vas])\[(\d+):(\d+)\]', neg)
    if m: return [(m.group(1), i) for i in range(int(m.group(2)), int(m.group(3)) + 1)]
    if neg == 'vcc': return [('s', 106), ('s', 107)]
    if neg == 'exec': return [('s', 126), ('s', 127)]
    if neg == 'm0': return [('s', 124)]
    return []

def parse(text):
    ins = []; labels = {}
    for ln, raw in enumerate(text.split('\n'), 1):
        s = raw.split(';')[0].strip()
        if not s or s.startswith('.'):
            continue
        m = re.fullmatch(r'([\w.$]+):', s)
        if m:
            labels[m.group(1)] = len(ins); continue
        parts = s.split(None, 1)
        op = parts[0]
        for suf in ('_e32', '_e64'):
            if op.endswith(suf): op = op[:-4]
        rest = parts[1] if len(parts) > 1 else ''
        toks = [t.strip() for t in re.split(r',(?![^\[]*\])', rest)] if rest else []
        mods = {}
        if toks:
            last = toks[-1].split()
            if op == 's_waitcnt':
                for t in rest.replace(',', ' ').split():
                    mm = re.fullmatch(r'(\w+)\((\d+)\)', t); mods[mm.group(1)] = int(mm.group(2))
                toks = []
            else:
                toks[-1] = last[0]
                for t in last[1:]:
                    if ':' in t:
                        k, v = t.split(':', 1); mods[k] = int(v, 0) if re.fullmatch(r'-?(0x)?[0-9a-fA-F]+', v) else v
                    else: mods[t] = True
        I = Ins(); I.op = op; I.args = toks; I.mods = mods; I.line = ln; I.text = s; I.true = '@true' in raw or '@taken' in raw
        classify(I); ins.append(I)
    return ins, labels

def classify(I):
    op = I.op; A = I.args; rd = []; wr = []
    R = lambda i: regs_of(A[i])
    if op.startswith('v_mfma'):
        I.kind = 'mfma'; wr = R(0); rd = R(1) + R(2) + R(3)
    elif op.startswith('v_cmp'):
        I.kind = 'valu'; wr = R(0); rd = R(1) + R(2)
    elif op in ('v_readfirstlane_b32',):
        I.kind = 'valu'; wr = R(0); rd = R(1)
    elif op.startswith('v_permlane'):
        I.kind = 'valu'; wr = R(0) + R(1); rd = R(0) + R(1)
    elif op in ('v_fmac_f32',):
        I.kind = 'valu'; wr = R(0); rd = R(0) + R(1) + R(2)
    elif op == 'v_cndmask_b32':
        I.kind = 'valu'; wr = R(0); rd = R(1) + R(2) + R(3)
    elif op == 'v_nop':
        I.kind = 'valu'
    elif op.startswith('v_'):
        I.kind = 'valu'; wr = R(0)
        for i in range(1, len(A)): rd += R(i)
    elif op.startswith('ds_read'):
        I.kind = 'ds'; wr = R(0); rd = R(1)
    elif op.startswith('ds_write'):
        I.kind = 'ds'; rd = R(0) + R(1)
    elif op.startswith('ds_bpermute') or op.startswith('ds_swizzle'):
        I.kind = 'ds'; wr = R(0)
        for i in range(1, len(A)): rd += R(i)
    elif op.startswith('buffer_load'):
        I.kind = 'vmem'
        if 'lds' in I.mods: rd = R(0) + R(1) + R(2) + [('s', 124)]
        else: wr = R(0); rd = R(1) + R(2) + R(3)
    elif op.startswith('buffer_store') or op.startswith('buffer_atomic'):
        I.kind = 'vmem'; rd = R(0) + R(1) + R(2) + R(3)
        if op.startswith('buffer_atomic') and 'sc0' in I.mods: wr = R(0)
    elif op.startswith('s_load') or op in ('s_memtime', 's_memrealtime'):
        I.kind = 'smem'; wr = R(0); rd = R(1) if len(A) > 1 else []
    elif op.startswith('s_cmp') or op.startswith('s_bitcmp'):
        I.kind = 'salu'; rd = R(0) + R(1)
    elif op in ('s_waitcnt', 's_barrier', 's_nop', 's_endpgm', 's_branch', 's_setprio', 's_sleep', 'buffer_inv', 'buffer_wbl2') or op.startswith('s_cbranch'):
        I.kind = 'ctl'
    elif op in ('s_addk_i32',):
        I.kind = 'salu'; wr = R(0); rd = R(0)
    elif op.endswith('saveexec_b64'):
        I.kind = 'salu'; wr = R(0) + regs_of('exec'); rd = R(1) + regs_of('exec')
    elif op.startswith('s_'):
        I.kind = 'salu'; wr = R(0)
        for i in range(1, len(A)): rd += R(i)
    else:
        raise Exception('unknown op ' + I.text)
    I.rd = rd; I.wr = wr

def f2u(x): return int(np.float32(x).view(np.uint32))
INL = {'0.5': f2u(.5), '1.0': f2u(1), '2.0': f2u(2), '4.0': f2u(4), '-0.5': f2u(-.5), '-1.0': f2u(-1), '-2.0': f2u(-2), '-4.0': f2u(-4)}

class Err(Exception): pass

class Wave:
    def __init__(self, ins, labels, entry, wg, wave, arg_sizes, lds_size, policy=None, maxsteps=400000):
        self.ins = ins; self.labels = labels; self.pc = labels[entry]
        self.s = {}; self.v = {}
        self.s[0] = 0; self.s[1] = 0x7000; self.s[2] = wg
        self.s[126] = M32; self.s[127] = M32
        self.v[('v', 0)] = (np.arange(64, dtype=np.uint32) + 64 * wave)
        self.scc = None; self.wg = wg; self.wave = wave
        self.arg_sizes = arg_sizes; self.lds_size = lds_size
        self.policy = policy or {}
        self.errors = []; self.hist = []
        self.t = 0
        self.vm = []; self.lg = []
        self.epoch = 0; self.lds_ev = []; self.gl_ev = []
        self.src = {}
        self.maxsteps = maxsteps; self.nins = 0; self.counts = {}
        self.written = set([('s',0),('s',1),('s',2),('v',0),('s',126),('s',127)])
    def err(self, I, msg):
        e = f"wg{self.wg} w{self.wave} line {I.line}: {I.text} :: {msg}"
        if e not in self.errors: self.errors.append(e)
    def sval(self, tok):
        tok = tok.strip()
        r = regs_of(tok)
        if r and r[0][0] == 's': return self.s.get(r[0][1])
        if tok in INL: return INL[tok]
        try: return int(tok, 0) & M32
        except: return None
    def sval64(self, tok):
        r = regs_of(tok)
        if r:
            lo = self.s.get(r[0][1]); hi = self.s.get(r[1][1])
            if lo is None or hi is None: return None
            return lo | (hi << 32)
        try: return int(tok, 0) & 0xFFFFFFFFFFFFFFFF
        except: return None
    def vval(self, tok):
        r = regs_of(tok)
        if tok.startswith('-') and r: return None
        if r and r[0][0] in 'va': return self.v.get(r[0])
        x = self.sval(tok)
        return None if x is None else np.full(64, x, dtype=np.uint32)
    def hazards(self, I):
        rd = set(I.rd); wr = set(I.wr)
        for (P, tp) in reversed(self.hist):
            d = self.t - tp - 1
            if d >= 20: break
            pw = set(P.wr)
            need = 0; why = ''
            def req(n, w):
                nonlocal need, why
                if n > need: need = n; why = w
            pv = {x for x in pw if x[0] in 'va'}; ps = {x for x in pw if x[0] == 's'}
            if P.kind == 'valu':
                if I.kind == 'mfma' and pv & rd: req(2, 'valu->mfma')
                if P.op in TRANS and I.kind == 'valu' and I.op not in TRANS and pv & rd: req(1, 'trans->valu')
                if P.op in TRANS and I.kind in ('ds','vmem') and pv & rd: req(1, 'trans->mem(pad)')
                if I.op.startswith('v_permlane') and pv & rd: req(2, 'valu->permlane')
                if I.op == 'v_readfirstlane_b32' and pv & rd: req(1, 'valu->readfirstlane')
                if ps & rd:
                    if I.kind == 'valu': req(2, 'valu sgpr->valu')
                    if I.kind == 'vmem': req(5, 'valu sgpr->vmem')
                    if I.kind == 'mfma': req(4, 'valu sgpr->mfma')
                if any(k.startswith('row_') or k.startswith('quad_perm') for k in I.mods) and pv & rd: req(2, 'valu->dpp')
            if P.kind == 'mfma':
                np_ = 8 if '32x32' in P.op else 4
                T = {4: (6, 8, 3), 8: (10, 12, 7)}[np_]
                if I.kind == 'mfma':
                    c = regs_of(I.args[3]); ab = set(regs_of(I.args[1]) + regs_of(I.args[2]))
                    if pv & set(c):
                        if not (c == P.wr and (('32x32' in I.op) == ('32x32' in P.op))): req(T[0], 'mfma D->C overlap')
                    if pv & ab: req(T[1], 'mfma D->AB')
                    if pv & wr and not (c == P.wr): req(T[0], 'mfma D->D waw')
                elif I.kind == 'valu':
                    if pv & (rd | wr): req(T[1], 'mfma D->valu')
                    pc = set(regs_of(P.args[3]))
                    if pc & wr: req(T[2], 'mfma C war')
                elif I.kind in ('ds', 'vmem'):
                    if pv & (rd | wr): req(T[1], 'mfma D->mem')
            if P.kind == 'salu' and ('s', 124) in pw and I.kind == 'vmem' and 'lds' in I.mods: req(1, 'm0->dma')
            if P.kind in ('vmem',) and ('store' in P.op) and ('x4' in P.op or 'x3' in P.op):
                data = set(regs_of(P.args[0]))
                if data & wr: req(2 if I.kind in ('valu','mfma') else 1, 'store data war')
            if P.kind == 'ds' and P.op in ('ds_write_b128','ds_write_b96'):
                data = set(regs_of(P.args[1]))
                if data & wr and I.kind in ('valu','mfma'): req(2, 'ds_write data war(pad)')
            if d < need: self.err(I, f"hazard {why}: need {need} have {d} after line {P.line}: {P.text}")
    def check_pending(self, I):
        touched = set(I.rd) | set(I.wr)
        for q, nm in ((self.vm, 'vm'), (self.lg, 'lgkm')):
            for o in q:
                if o['regs'] & touched:
                    self.err(I, f"touches reg with pending {nm} load from line {o['line']}")
    def run(self):
        U = np.uint32
        while True:
            I = self.ins[self.pc]; self.pc += 1; self.nins += 1
            if self.nins > self.maxsteps: raise Err('too many steps')
            self.counts[I.kind] = self.counts.get(I.kind, 0) + 1
            op = I.op; A = I.args
            self.hazards(I); self.check_pending(I)
            for r in I.rd:
                if r not in self.written: self.err(I, f"reads never-written {r}")
            for r in I.rd:
                if r in self.src: self.src[r]['used'] = True
            for r in I.wr:
                self.written.add(r); self.src.pop(r, None)
            n_states = 1
            if op == 's_endpgm':
                for o in self.vm + self.lg:
                    if o.get('ev') is not None: o['ev']['done'] = (self.epoch, self.t)
                return
            elif op == 's_nop': n_states = int(A[0], 0) + 1
            elif op == 's_waitcnt':
                for q, key in ((self.vm, 'vmcnt'), (self.lg, 'lgkmcnt')):
                    if key in I.mods:
                        n = I.mods[key]
                        if key == 'lgkmcnt' and n > 0 and any(o.get('smem') for o in q): self.err(I, 'counted lgkm with smem pending')
                        while len(q) > n:
                            o = q.pop(0)
                            if o.get('ev') is not None: o['ev']['done'] = (self.epoch, self.t)
            elif op == 's_barrier': self.epoch += 1
            elif op == 's_branch': self.pc = self.labels[A[0]]
            elif op.startswith('s_cbranch'):
                c = op[10:]
                if c in ('scc0', 'scc1'):
                    if self.scc is None: raise Err(f'unknown scc at line {I.line}')
                    tk = self.scc == (c == 'scc1')
                elif c in ('execz', 'execnz'):
                    e = self.sval64('exec')
                    if e is None: tk = self.policy.get(A[0], False)
                    else: tk = (e == 0) == (c == 'execz')
                else:
                    e = self.sval64('vcc')
                    if e is None: tk = I.true or self.policy.get(A[0], False)
                    else: tk = (e == 0) == (c == 'vccz')
                if tk: self.pc = self.labels[A[0]]
            elif I.kind == 'smem':
                if op.startswith('s_load'):
                    n = len(I.wr); off = int(A[2], 0)
                    for j in range(n):
                        w = off // 4 + j
                        self.s[I.wr[j][1]] = 0 if w % 2 == 0 else (0x100 + w // 2)
                else:
                    for r in I.wr: self.s[r[1]] = None
                self.lg.append(dict(regs=set(I.wr), line=I.line, smem=True));
            elif I.kind == 'salu': self.salu(I)
            elif I.kind == 'valu': self.valu(I)
            elif I.kind == 'mfma':
                for r in I.wr: self.v[r] = None
            elif I.kind == 'ds':
                ev = None
                if op.startswith('ds_read') or op.startswith('ds_write'):
                    a = self.vval(A[1] if op.startswith('ds_read') else A[0])
                    sz = {'b128': 16, 'b64': 8, 'b32': 4, 'b16': 8}[op.split('_')[-1]]
                    if op == 'ds_read_b64_tr_b16': sz = 8
                    if a is None: self.err(I, 'unknown LDS address')
                    else:
                        a = a.astype(np.int64) + I.mods.get('offset', 0)
                        if a.max() + sz > self.lds_size: self.err(I, f'LDS OOB {a.max()}')
                        if (a % (16 if sz == 16 else sz)).any(): self.err(I, 'LDS misaligned')
                        ev = dict(w=self.wave, wr=op.startswith('ds_write'), a=a, sz=sz, lo=int(a.min()), hi=int(a.max()) + sz, iss=(self.epoch, self.t), done=None, line=I.line, op=op)
                        self.lds_ev.append(ev)
                        for r in I.wr: self.src[r] = ev
                for r in I.wr: self.v[r] = None
                self.lg.append(dict(regs=set(I.wr), line=I.line, ev=ev))
                if len(self.lg) > 15: pass
            elif I.kind == 'vmem':
                lds = 'lds' in I.mods
                vo, sr, so = (A[0], A[1], A[2]) if lds else (A[1], A[2], A[3])
                a = self.vval(vo); s0 = regs_of(sr)[0][1]
                srd = [self.s.get(s0 + j) for j in range(4)]
                sz = {'dwordx4': 16, 'dwordx2': 8, 'dword': 4, 'add': 4}[op.split('_')[-1]]
                sof = self.sval(so); ev = None
                if a is None or sof is None or None in srd: self.err(I, 'unknown global address')
                else:
                    g = a.astype(np.int64) + sof + I.mods.get('offset', 0)
                    arg = srd[1] - 0x100
                    ex = self.sval64('exec')
                    act = np.array([(ex >> l) & 1 for l in range(64)], dtype=bool) if ex is not None else np.ones(64, bool)
                    inb = (g + sz <= srd[2]) & act
                    if srd[0] + srd[2] > self.arg_sizes[arg]: self.err(I, f'SRD window exceeds buffer arg{arg}: {srd[0]:#x}+{srd[2]:#x}')
                    if (g % sz).any(): self.err(I, 'global misaligned')
                    self.gl_ev.append(dict(arg=arg, st='store' in op, a=(g + srd[0])[inb], sz=sz, line=I.line, oob=int((~inb & act).sum())))
                    if lds:
                        m0 = self.s.get(124)
                        if m0 is None: self.err(I, 'unknown m0')
                        else:
                            la = m0 + I.mods.get('offset', 0) + np.arange(64, dtype=np.int64) * sz
                            if la.max() + sz > self.lds_size: self.err(I, 'DMA LDS OOB')
                            ev = dict(w=self.wave, wr=True, a=la, sz=sz, lo=int(la.min()), hi=int(la.max()) + sz, iss=(self.epoch, self.t), done=None, line=I.line, op='dma')
                            self.lds_ev.append(ev)
                for r in I.wr: self.v[r] = None
                self.vm.append(dict(regs=set(I.wr), line=I.line, ev=ev))
                if len(self.vm) > 63: self.err(I, 'vmcnt overflow (>63 outstanding)')
            self.hist.append((I, self.t + n_states - 1 if op == 's_nop' else self.t))
            if len(self.hist) > 40: self.hist.pop(0)
            self.t += n_states
    def salu(self, I):
        op = I.op; A = I.args
        def setd(x, n=1):
            if n == 1: self.s[I.wr[0][1]] = None if x is None else x & M32
            else:
                self.s[I.wr[0][1]] = None if x is None else x & M32
                self.s[I.wr[1][1]] = None if x is None else (x >> 32) & M32
        if op.startswith('s_cmp') or op.startswith('s_bitcmp'):
            if op.endswith('u64'): a, b = self.sval64(A[0]), self.sval64(A[1])
            elif op.endswith('b64'): a, b = self.sval64(A[0]), self.sval(A[1])
            else: a, b = self.sval(A[0]), self.sval(A[1])
            if a is None or b is None: self.scc = True if I.true else None; return
            if op.startswith('s_bitcmp'): self.scc = bool((a >> b) & 1) == (op[8] == '1'); return
            c = op.split('_')[2]
            if op.endswith('i32'):
                a = a - (1 << 32) if a >> 31 else a; b = b - (1 << 32) if b >> 31 else b
            self.scc = {'eq': a == b, 'lg': a != b, 'lt': a < b, 'le': a <= b, 'gt': a > b, 'ge': a >= b}[c]; return
        if op in ('s_mov_b32', 's_movk_i32'): return setd(self.sval(A[1]))
        if op == 's_mov_b64': return setd(self.sval64(A[1]), 2)
        if op == 's_addk_i32':
            a = self.sval(A[0]); return setd(None if a is None else a + int(A[1], 0))
        if op == 's_and_saveexec_b64':
            e = self.sval64('exec'); m = self.sval64(A[1]); setd(e, 2)
            x = None if (e is None or m is None) else e & m
            self.s[126] = None if x is None else x & M32; self.s[127] = None if x is None else x >> 32
            self.scc = None if x is None else x != 0; return
        if op in ('s_or_b64', 's_and_b64', 's_andn2_b64'):
            a, b = self.sval64(A[1]), self.sval64(A[2])
            x = None if a is None or b is None else {'s_or_b64': a | b, 's_and_b64': a & b, 's_andn2_b64': a & ~b}[op]
            self.scc = None if x is None else x != 0
            return setd(x, 2)
        if op == 's_bfm_b64':
            a, b = self.sval(A[1]), self.sval(A[2])
            return setd(((1 << (a & 63)) - 1) << (b & 63), 2)
        if op == 's_cselect_b32':
            if self.scc is None: return setd(None)
            return setd(self.sval(A[1] if self.scc else A[2]))
        a, b = self.sval(A[1]), self.sval(A[2]) if len(A) > 2 else None
        if op == 's_addc_u32':
            if a is None or b is None or self.scc is None: self.scc = None; return setd(None)
            x = a + b + int(self.scc); self.scc = x > M32; return setd(x)
        if a is None or b is None:
            if op != 's_mul_i32': self.scc = None
            return setd(None)
        if op == 's_add_u32': x = a + b; self.scc = x > M32
        elif op == 's_sub_u32': x = a - b; self.scc = x < 0
        elif op == 's_add_i32': x = a + b; self.scc = None
        elif op == 's_sub_i32': x = a - b; self.scc = None
        elif op == 's_mul_i32': x = a * b
        elif op == 's_lshl_b32': x = (a << (b & 31)) & M32; self.scc = x != 0
        elif op == 's_lshr_b32': x = a >> (b & 31); self.scc = x != 0
        elif op == 's_and_b32': x = a & b; self.scc = x != 0
        elif op == 's_or_b32': x = a | b; self.scc = x != 0
        elif op == 's_xor_b32': x = a ^ b; self.scc = x != 0
        elif op == 's_min_u32': x = min(a, b); self.scc = a < b
        elif op == 's_max_u32': x = max(a, b); self.scc = a > b
        elif op == 's_lshl1_add_u32': x = (a << 1) + b; self.scc = None
        elif op == 's_lshl2_add_u32': x = (a << 2) + b; self.scc = None
        elif op == 's_bfe_u32': x = (a >> (b & 31)) & ((1 << ((b >> 16) & 127)) - 1); self.scc = x != 0
        else: raise Err('salu ' + I.text)
        setd(x)
    def valu(self, I):
        op = I.op; A = I.args; U = np.uint32
        if op == 'v_nop': return
        if op == 'v_readfirstlane_b32':
            x = self.vval(A[1]); self.s[I.wr[0][1]] = None if x is None else int(x[0]); return
        if op.startswith('v_cmp'):
            r = None
            if op.endswith('u32') or op.endswith('i32'):
                a, b = self.vval(A[1]), self.vval(A[2])
                if a is not None and b is not None:
                    if op.endswith('i32'): a = a.view(np.int32); b = b.view(np.int32)
                    c = op.split('_')[2]
                    m = {'eq': a == b, 'ne': a != b, 'lt': a < b, 'le': a <= b, 'gt': a > b, 'ge': a >= b}[c]
                    r = sum(1 << l for l in range(64) if m[l])
            self.s[I.wr[0][1]] = None if r is None else r & M32
            self.s[I.wr[1][1]] = None if r is None else r >> 32
            return
        x = None
        src = [self.vval(t) for t in A[1:]]
        ok = all(t is not None for t in src)
        dpp = any(k.startswith('row_') or k.startswith('quad_perm') for k in I.mods)
        with np.errstate(over='ignore'):
            if not ok or dpp: x = None
            elif op in ('v_mov_b32', 'v_accvgpr_write_b32', 'v_accvgpr_read_b32'): x = src[0]
            elif op == 'v_add_u32': x = src[0] + src[1]
            elif op == 'v_sub_u32': x = src[0] - src[1]
            elif op == 'v_subrev_u32': x = src[1] - src[0]
            elif op == 'v_lshlrev_b32': x = src[1] << (src[0] & U(31))
            elif op == 'v_lshrrev_b32': x = src[1] >> (src[0] & U(31))
            elif op == 'v_and_b32': x = src[0] & src[1]
            elif op == 'v_or_b32': x = src[0] | src[1]
            elif op == 'v_xor_b32': x = src[0] ^ src[1]
            elif op == 'v_bfe_u32': x = (src[0] >> src[1]) & ((U(1) << src[2]) - U(1))
            elif op == 'v_lshl_add_u32': x = (src[0] << src[1]) + src[2]
            elif op == 'v_lshl_or_b32': x = (src[0] << src[1]) | src[2]
            elif op == 'v_and_or_b32': x = (src[0] & src[1]) | src[2]
            elif op == 'v_add_lshl_u32': x = (src[0] + src[1]) << src[2]
            elif op == 'v_add3_u32': x = src[0] + src[1] + src[2]
            elif op in ('v_mul_u32_u24', 'v_mul_lo_u32'): x = src[0] * src[1]
            elif op == 'v_mad_u32_u24': x = src[0] * src[1] + src[2]
            elif op == 'v_max_i32': x = np.maximum(src[0].view(np.int32), src[1].view(np.int32)).view(U)
        if op == 'v_cndmask_b32':
            m = self.sval64(A[3]); a, b = self.vval(A[1]), self.vval(A[2])
            x = None
            if m is not None and a is not None and b is not None:
                mm = np.array([(m >> l) & 1 for l in range(64)], dtype=bool); x = np.where(mm, b, a).astype(U)
        ex = self.sval64('exec')
        for r in I.wr:
            if r[0] in 'va':
                if x is not None and len(I.wr) == 1 and ex == 0xFFFFFFFFFFFFFFFF: self.v[r] = x.astype(U)
                else: self.v[r] = None

def lds_races(waves):
    errs = []
    evs = [e for w in waves for e in w.lds_ev]
    wrs = [e for e in evs if e['wr']]
    wrs.sort(key=lambda e: e['lo'])
    def overlap(a, b):
        if a['hi'] <= b['lo'] or b['hi'] <= a['lo']: return False
        sa = set((a['a'][:, None] // 4 + np.arange(a['sz'] // 4)[None]).ravel().tolist())
        sb = set((b['a'][:, None] // 4 + np.arange(b['sz'] // 4)[None]).ravel().tolist())
        return bool(sa & sb)
    from collections import defaultdict
    bk = defaultdict(list)
    for e in wrs:
        for b in range(e['lo'] // 1024, (e['hi'] - 1) // 1024 + 1): bk[b].append(e)
    seen = set()
    for e in evs:
        if not e['wr'] and not e.get('used'): continue
        cands = {}
        for b in range(e['lo'] // 1024, (e['hi'] - 1) // 1024 + 1):
            for w in bk[b]: cands[id(w)] = w
        for w in cands.values():
            if w is e: continue
            if w['w'] == e['w']:
                a, b = (w, e) if w['iss'][1] < e['iss'][1] else (e, w)
                if a['op'] != 'dma' and b['op'] != 'dma': continue
                if a['op'] == 'dma' and b['op'] == 'dma': continue
                ok = a['done'] is not None and a['done'][1] < b['iss'][1]
            else:
                ok = (w['done'][0] < e['iss'][0]) or (e['done'][0] < w['iss'][0])
            if not ok:
                key = (w['line'], e['line'])
                if key in seen: continue
                if overlap(w, e):
                    seen.add(key)
                    errs.append(f"LDS race: wave{w['w']} line {w['line']} iss{w['iss']} done{w['done']} [{w['lo']},{w['hi']}) vs wave{e['w']} line {e['line']} iss{e['iss']} done{e['done']} [{e['lo']},{e['hi']})")
    return errs

def bank_conflicts(waves):
    G128 = [list(range(0,4))+list(range(12,16))+list(range(20,28)), list(range(4,12))+list(range(16,20))+list(range(28,32))]
    G128 += [[x+32 for x in g] for g in G128]
    out = {}
    for w in waves:
        for e in w.lds_ev:
            if e['op'] == 'ds_read_b128': groups = G128; nb = 64
            elif e['op'] in ('ds_read_b64_tr_b16', 'ds_read_b64'): groups = [list(range(32)), list(range(32, 64))]; nb = 64
            elif e['op'] == 'ds_write_b128': groups = [list(range(8*i, 8*i+8)) for i in range(8)]; nb = 32
            else: continue
            worst = 1
            for g in groups:
                cnt = {}
                for l in g:
                    for j in range(e['sz'] // 4):
                        d = int(e['a'][l]) // 4 + j
                        cnt.setdefault(d % nb, set()).add(d)
                worst = max(worst, max(len(x) for x in cnt.values()))
            if worst > 1: out[e['line']] = max(out.get(e['line'], 1), worst)
    return out

ARGS = [2<<20, 1536*1024, 512*1024, 2<<20, 2<<20, 4<<20, 4<<20, 4<<20, 4<<20, 4<<20, 256, 256<<20]

def check_wg(ins, labels, entry, wg, nw, lds, policy=None, verbose=False):
    ws = []
    for w in range(nw):
        W = Wave(ins, labels, entry, wg, w, ARGS, lds, policy); W.run(); ws.append(W)
    errs = [e for W in ws for e in W.errors] + lds_races(ws)
    bc = bank_conflicts(ws)
    if bc: errs.append(f"bank conflicts (line:way): {bc}")
    if verbose:
        print(f"wg{wg}: epochs {[W.epoch for W in ws]} nins {[W.nins for W in ws]} counts {ws[0].counts} oob {[sum(e['oob'] for e in W.gl_ev) for W in ws]}")
    return ws, errs
```

```python
import sys
import common
from common import *
NAME = "concat_heads__sliding_local_dilated__compressed_kv_cla__prompt"
KN = NAME + "_kernel"
def build():
    import eng, att, op
    o = Out()
    hdr = open(f"cdna_kernels/{NAME}.s.ref").read().split('\n')
    o.l += [l for l in hdr if l.startswith(';') and '@launch' not in l]
    o("; @launch grid=(256,1,1) block=(256,1,1) lds=163840")
    o('.amdgcn_target "amdgcn-amd-amdhsa--gfx950"\n.text')
    o(head(KN))
    r = ["s_cmp_ge_u32 s2, 256", "s_cbranch_scc1 L_end", "s_load_dwordx16 s[56:71], s[0:1], 0", "s_load_dwordx8 s[72:79], s[0:1], 64"] + stamp_init()
    r += f"""v_lshrrev_b32 v1, 6, v0
    s_and_b32 s{S_X}, s2, 7
    v_readfirstlane_b32 s{S_W}, v1
    s_lshr_b32 s{S_I}, s2, 3
    s_and_b32 s{S_H}, s{S_I}, 3
    s_lshl2_add_u32 s{S_H}, s{S_X}, s{S_H}
    s_lshr_b32 s{S_I}, s{S_I}, 2""".split('\n')
    hooks = {('wait', 49): ['STV', 'STK'], ('wait', 45): ['NON']}
    J = '\n'.join
    hooks[('misc', 40)] = [(2, J(["v_mov_b32 v15, 0", f"buffer_load_dword v14, v15, {sr(R_X)}, 0 offen sc1 ; @NON"]))]
    hooks[('misc', 45)] = [(30, J(poll_check(14, 100, R_X, "v_cmp_eq_u32 vcc, 0, v14") + [f"v_readfirstlane_b32 s{S_NON}, v14"]))]
    hooks[('misc', 49)] = [(3, J(signal('KV', 124)))]
    hooks[('misc', 50)] = [(1, x) for x in reversed(att.early_setup()[:6])] + [(3, att.early_setup()[6])]
    hooks[('misc', 52)] = [(3, J(poll_issue('KV', 14, 'PKV')))]
    hooks[('wait', 56)] = ['PKV']
    hooks[('misc', 56)] = [(3, J(poll_check(14, 100))), (10, J(op.relayout_stores()))]
    hooks[('misc', 48)] = [(1, J(op.relayout_loads()))]
    hooks[('wait', 55)] = ['WO']
    hooks[('misc', 55)] = [(1, J(op.relayout_reads()))]
    for k, x in enumerate(eng.a_masks()): hooks[('misc', 57 + k)] = [(1, x)]
    for c in range(3): hooks[('dma', 57 + 2 * c)] = att.chunk_dma(c)
    r += eng.engine(hooks) + stamp('eng')
    stop = opt('STOP')
    r += ["s_barrier"] + att.chunks(3, 5) + att.prologue1()
    r += eng.a_attention() + att.chunks(5, 7) + ["@wait C1", "s_barrier"] + att.prologue2() + ["@wait STO"] + stamp('att')
    r += att.main_loop(signal('OA', 116) + signal('WO', 116), op.polls())
    r += stamp('epi') + op.pre_join() + ["@wait CST"] + stamp('vm0') + ["s_barrier"] + signal('CTX', 20) + stamp('op0')
    r += op.outproj()
    r += stamp_end(0)
    lines = []
    for x in r: lines += [y.strip() for y in x.split('\n')]
    o.ext(VmQ().scan(lines))
    o("L_end:\ns_endpgm")
    o(kd(KN, 512, 256))
    return o.text()
if __name__ == '__main__':
    common.INSTR = len(sys.argv) > 2 and sys.argv[2] == 'instr'
    t = build()
    open(sys.argv[1], 'w').write(t)
    import sim
    ins, labels = sim.parse(t)
    bad = 0
    for wg in ([0, 37, 131, 255] if not opt('QUICK') else [0]):
        ws, errs = sim.check_wg(ins, labels, KN, wg, 4, 163840, verbose=True)
        for e in errs[:12]: print("  ERR", e)
        bad += len(errs)
    print("errors:", bad)
```

```python
import re
VOP3 = ('v_mfma', 'v_cvt_pk_bf16_f32', 'v_max3', 'v_fma_', 'v_lshl_add', 'v_lshl_or', 'v_and_or', 'v_add3', 'v_bfe', 'v_mul_lo', 'v_mad', 'v_accvgpr', 'v_add_lshl', 'v_readlane', 'v_pk_')
INL = {'0.5', '1.0', '2.0', '4.0', '-0.5', '-1.0', '-2.0', '-4.0'}
def is_lit(t):
    t = t.strip()
    if t in INL: return False
    try: v = int(t, 0)
    except ValueError: return False
    return not (-16 <= v <= 64)
def size(line):
    s = line.split(';')[0].strip()
    if not s or s.endswith(':') or s.startswith('.'): return 0
    op = s.split()[0]
    args = [a.strip() for a in re.split(r',(?![^\[]*\])', s[len(op):])] if len(s) > len(op) else []
    if op.startswith(('ds_', 'buffer_', 'global_', 's_load', 's_mem')): return 8
    if op.startswith('v_'):
        if op.endswith('_e64') or op.startswith(VOP3): return 8
        if op.startswith('v_cmp') and args[0] != 'vcc': return 8
        if op == 'v_cndmask_b32' and args[3] != 'vcc': return 8
        if len(args) >= 3 and not args[2].startswith('v'): return 8
        return 8 if any(is_lit(a) for a in args[1:]) else 4
    if op.startswith(('s_waitcnt', 's_barrier', 's_nop', 's_branch', 's_cbranch', 's_endpgm', 's_sleep', 's_setprio', 's_movk', 's_addk')): return 4
    return 8 if any(is_lit(a) for a in args) else 4
WIDEN = ('v_exp_f32', 'v_add_f32', 'v_mul_f32', 'v_add_u32', 'v_mov_b32', 'v_sub_f32', 'v_max_f32', 'v_min_f32', 'v_rcp_f32', 'v_xor_b32', 'v_and_b32', 'v_lshlrev_b32', 'v_lshrrev_b32')
def align8(lines, start=0):
    out = list(lines); pos = start; run = []
    for i, x in enumerate(out):
        if x.strip().startswith('.p2align'): pos = 0; run = []; continue
        n = size(x)
        if n == 8:
            if pos % 8 == 4:
                c = [k for k in run if out[k].strip().split()[0] in WIDEN and size(out[k]) == 4]
                if c:
                    k = c[-1]; op = out[k].strip().split()[0]
                    out[k] = out[k].replace(op, op + '_e64', 1); pos += 4; run = []
            else: run = []
        elif n == 4: run.append(i)
        pos += n
    return out
```

```python
import math, os, struct
def opt(k, d=''): return os.environ.get(k, d)
HS = 65 * 16384
WS_KV = 0
WS_C = 36 << 20
WS_OA = 52 << 20
WS_WO = 56 << 20
WS_WA = 60 << 20
WS_XB = 64 << 20
WS_END = 80 << 20
OOB = 0x40000000
NEG_BIG = 0xf149f2ca
def f2u(x): return struct.unpack('<I', struct.pack('<f', x))[0]
def vr(b, n=4): return f"v[{b}:{b+n-1}]" if n > 1 else f"v{b}"
def ar(b, n=4): return f"a[{b}:{b+n-1}]" if n > 1 else f"a{b}"
def sr(b, n=4): return f"s[{b}:{b+n-1}]" if n > 1 else f"s{b}"

class Out:
    def __init__(self): self.l = []
    def __call__(self, s):
        for x in s.split('\n'):
            x = x.strip()
            if not x: continue
            if x.endswith(':') or x.startswith('.') or x.startswith(';'): self.l.append(x)
            else: self.l.append('    ' + x)
    def ext(self, lst):
        for x in lst: self(x)
    def text(self): return '\n'.join(self.l) + '\n'

class Gaps:
    def __init__(self, mf):
        self.mf = mf; self.g = {i: [] for i in range(-1, len(mf))}
    def put(self, i, *ins):
        i = min(i, len(self.mf) - 1); self.g[i] += list(ins)
    def front(self, i, *ins):
        i = min(i, len(self.mf) - 1); self.g[i] = list(ins) + self.g[i]
    def lines(self):
        r = list(self.g[-1])
        for i, m in enumerate(self.mf): r += [m] + self.g[i]
        return r
    def emit(self, o): o.ext(self.lines())

def mfma(d, a, b, c): return f"v_mfma_f32_16x16x32_bf16 {d}, {a}, {b}, {c}"

P_XA, P_WQKV, P_WO_A, P_XB, P_CKV, P_WQ, P_WUK, P_WUV, P_WO, P_OUT, P_DBG, P_WS = [56 + 2 * i for i in range(12)]
def srd(base, ptr, nrec, add=None):
    if opt('NOACT') and ptr in (P_XA, P_XB, P_CKV): nrec = 0
    if opt('NOW') and ptr in (P_WQ, P_WUK, P_WUV, P_WQKV): nrec = 0
    if add is None: r = [f"s_mov_b32 s{base}, s{ptr}", f"s_mov_b32 s{base+1}, s{ptr+1}"]
    else: r = [f"s_add_u32 s{base}, s{ptr}, {add}", f"s_addc_u32 s{base+1}, s{ptr+1}, 0"]
    return r + [f"s_mov_b32 s{base+2}, {nrec}", f"s_mov_b32 s{base+3}, 0x20000"]
R_A0, R_A1, R_W0, R_W1, R_WS, R_X = 4, 8, 12, 16, 20, 24
S_W = 28; S_H = 29; S_I = 30
S_X = 31

def kd(name, vgpr, acc, sgpr=102):
    return f""".section .rodata,"a"
.p2align 6
.amdhsa_kernel {name}
  .amdhsa_next_free_vgpr {vgpr}
  .amdhsa_next_free_sgpr {sgpr}
  .amdhsa_accum_offset {acc}
  .amdhsa_group_segment_fixed_size 0
  .amdhsa_kernarg_size 96
  .amdhsa_user_sgpr_count 2
  .amdhsa_user_sgpr_kernarg_segment_ptr 1
  .amdhsa_system_sgpr_workgroup_id_x 1
.end_amdhsa_kernel
.text
"""
def head(name): return f".globl {name}\n.p2align 8\n.type {name},@function\n{name}:\n"

class VmQ:
    def __init__(self): self.q = []
    def scan(self, lines):
        out = []
        for x in lines:
            if x.startswith('@wait'):
                p = x.split()
                n = min(self.need(t) for t in p[1].split(','))
                extra = ' '.join(p[2:])
                out.append(f"s_waitcnt vmcnt({min(n, 63)}) {extra}".strip())
                continue
            if x.startswith('buffer_') or x.startswith('global_'):
                tag = x.split('@')[1].strip() if '@' in x else '-'
                if tag != 'skip': self.q.append(tag)
            out.append(x)
        return out
    def need(self, tag):
        idx = [i for i, t in enumerate(self.q) if t == tag]
        if not idx: return 63
        return len(self.q) - 1 - idx[-1]

INSTR = False
def stamp(name):
    names = opt('STAMPS', 'go,k,eng,att,f,pc').split(',')
    if name not in names: return []
    i = names.index(name) + 1
    return [f"{'s_memtime' if opt('CYC') else 's_memrealtime'} s[{84+2*i}:{85+2*i}]", "s_waitcnt lgkmcnt(0)"] if globals()["INSTR"] else []
def stamp_init():
    if not globals()["INSTR"]: return []
    return [("s_memtime" if opt('CYC') else "s_memrealtime") + " s[84:85]", "s_memtime s[80:81]"] + [f"s_mov_b32 s{84+2*i}, 0" for i in range(1, 8)]
def stamp_end(kidx):
    if not globals()["INSTR"]: return []
    r = f"""s_waitcnt vmcnt(0) lgkmcnt(0)
    {'s_memtime' if opt('CYC') else 's_memrealtime'} s[98:99]
    s_memtime s[82:83]
    s_add_u32 s4, s{P_WS}, {(128 << 20) + kidx * 65536}
    s_addc_u32 s5, s{P_WS+1}, 0
    s_mov_b32 s6, 65536
    s_mov_b32 s7, 0x20000
    s_waitcnt lgkmcnt(0)
    s_sub_u32 s82, s82, s80
    s_lshl_b32 s80, s2, 8
    s_lshl_b32 s81, s{S_W}, 6
    s_add_u32 s80, s80, s81
    v_mov_b32 v253, s80
    v_mov_b32 v252, s82""".split('\n')
    for i in range(8): r.append(f"v_mov_b32 v{244+i}, s{84+2*i}")
    r += ["s_mov_b64 exec, 1", "buffer_store_dwordx4 v[244:247], v253, s[4:7], 0 offen", "buffer_store_dwordx4 v[248:251], v253, s[4:7], 0 offen offset:16",
          "buffer_store_dword v252, v253, s[4:7], 0 offen offset:32"]
    return [x.strip() for x in r]

WS_MB = 55 << 20
MB = {'CTX': (0, 8), 'KV': (32, 8), 'OA': (64, 8), 'XB': (96, 4), 'WA': (112, 4), 'WO': (128, 16)}
S_NON = 3
uidc = [0]
def signal(kind, v, cond=()):
    uidc[0] += 1; l = f"SG{uidc[0]}"
    r = [f"s_cmp_lg_u32 s{S_W}, 0", f"s_cbranch_scc1 {l}"] + list(cond) + ([f"s_cbranch_scc1 {l}"] if cond else [])
    X, Jv = v, v + 1
    if kind == 'KV':
        r += [f"v_mov_b32 v{X}, s{S_X}", f"s_and_b32 s100, s{S_H}, 3", f"v_lshl_add_u32 v{Jv}, v1, 2, s100"]; n = 8
        word = [f"s_mov_b32 s100, s{S_I}"]
    elif kind == 'OA':
        r += [f"s_lshr_b32 s100, s53, 2", f"v_mov_b32 v{X}, s100", f"s_and_b32 s100, s53, 3", f"v_lshl_add_u32 v{Jv}, v1, 2, s100"]; n = 8
        word = [f"s_and_b32 s100, s{S_H}, 7"]
    elif kind == 'WA':
        r += [f"v_lshrrev_b32 v{X}, 2, v1", f"v_and_b32 v{Jv}, 3, v1", f"s_lshl_b32 s100, s{S_I}, 2", f"v_add_u32 v{Jv}, s100, v{Jv}"]; n = 32
        word = [f"s_lshr_b32 s100, s{S_H}, 3"]
    elif kind == 'WO':
        r += [f"s_and_b32 s100, s{S_X}, 6", f"v_and_b32 v{X}, 1, v1", f"v_add_u32 v{X}, s100, v{X}", f"v_lshrrev_b32 v{Jv}, 1, v1", f"s_lshr_b32 s100, s{S_I}, 1",
              f"v_lshl_add_u32 v{Jv}, v{Jv}, 2, s100"]; n = 16
        word = [f"s_and_b32 s100, s{S_H}, 7", "s_lshl_b32 s100, s100, 1", f"s_and_b32 s101, s{S_I}, 1", "s_add_u32 s100, s100, s101"]
    elif kind == 'CTX':
        r += [f"s_and_b32 s100, s{S_X}, 6", f"v_and_b32 v{X}, 1, v1", f"v_add_u32 v{X}, s100, v{X}", f"v_lshrrev_b32 v{Jv}, 1, v1", f"s_lshl_b32 s100, s{S_I}, 2",
              f"v_add_u32 v{Jv}, s100, v{Jv}"]; n = 8
        word = [f"s_and_b32 s100, s{S_H}, 7"]
    else:
        r += [f"v_lshl_add_u32 v{X}, v1, 1, s{S_X}", f"v_and_b32 v{X}, 7, v{X}", "s_lshr_b32 s100, s2, 3", f"v_mov_b32 v{Jv}, s100"]; n = 4
        word = ["s_mov_b32 s100, 0"]
    r += [f"v_lshl_add_u32 v{v+2}, v{Jv}, 3, v{X}", f"v_lshlrev_b32 v{v+2}, 9, v{v+2}"]
    if kind == 'XB': r += [f"v_lshl_add_u32 v{v+2}, v1, 2, v{v+2}"]
    r += word + ["s_lshl_b32 s100, s100, 2", f"s_add_u32 s100, s100, {WS_MB + MB[kind][0]}", f"v_mov_b32 v{v}, s{S_NON}", f"s_mov_b64 exec, {(1 << n) - 1:#x}",
          f"buffer_store_dword v{v}, v{v+2}, {sr(R_WS)}, s100 offen sc1 ; @skip", "s_mov_b64 exec, -1", f"{l}:"]
    return r
def poll_issue(kind, vd, tag):
    off, n = MB[kind]
    return [f"s_lshl_b32 s100, s2, 9", f"s_add_u32 s100, s100, {WS_MB + off}", f"v_and_b32 v{vd+1}, {n-1}, v1", f"v_lshl_add_u32 v{vd+1}, v{vd+1}, 2, s100",
            f"buffer_load_dword v{vd}, v{vd+1}, {sr(R_WS)}, 0 offen sc1 ; @{tag}"]
def poll_check(vd, st, R=None, cmp=None):
    uidc[0] += 1; l = f"PL{uidc[0]}"
    R = R_WS if R is None else R
    return [f"s_mov_b32 s{st}, 0x20000", f"{l}:", cmp or f"v_cmp_ne_u32 vcc, s{S_NON}, v{vd}", f"s_cbranch_vccz {l}x ; @taken",
            f"s_sub_u32 s{st}, s{st}, 1", f"s_cbranch_scc1 {l}x", "s_sleep 4",
            f"buffer_load_dword v{vd}, v{vd+1}, {sr(R)}, 0 offen sc1 ; @skip", "s_waitcnt vmcnt(0)", f"s_branch {l}", f"{l}x:"]
```

```python
from common import *
KSCALE = f2u(math.log2(math.e) / math.sqrt(128.0))
ASC = f2u(0.25 * math.log2(math.e))
V_L16 = 2; V_AD = 4; V_WD = 8; V_WA = 10; V_TA = 11
V_TR = 16; V_PK = 24; V_TMP = 28
def WF(buf, T): return 36 + buf * 32 + T * 4
def WFA(buf, f): return 36 + buf * 12 + f * 4
AAC = 60
def XF(buf, tb): return buf * 20 + tb * 4
V_MP = 16; V_MC = 20; V_MP1 = 28; V_ONE = 32; V_AR = 116; V_AX = 118; V_A3 = 120; V_OD = 122; V_WT = 123
ACCV = 128
def QF(b, s): return 64 + (b * 4 + s) * 4
S_CK = 32; S_QL = 33; S_QS = 34; S_KA = 35; S_KW = 36; S_WC = 37; S_AR = 38; S_WL = 39
S_AG = 40; S_AL = 43; S_AW = 44; S_KB = 45; S_KVS = 46; S_T = 47; S_T2 = 48; S_T3 = 49; S_KS = 50; S_AC = 51; S_OA = 52; S_TT = 53; S_KVO = 54
PASSES = [('K', None), ('V', 'K'), ('Q', 'V'), ('A', 'Q')]
NST = 64
ST = 'sc1'
ROT = not opt('NOROT')
def ptype(G): return PASSES[G // 16][0]

def adv(s): return [f"s_add_u32 s{s}, s{s}, 128", f"s_and_b32 s{s}, s{s}, 1023"]

def act_dma(P, half):
    t = ptype(2 * P); base = (P % 3) * 8192
    pre = adv(S_KA) if half == 0 and P > 0 else []
    if t == 'A':
        r = []
        for k in range(3 * half, 3 * half + 3):
            sect, j = k >> 1, k & 1
            sal = []
            if k == 0: sal += pre + [f"s_mul_i32 s{S_T2}, s{S_KA}, 1536", f"s_add_u32 s{S_T2}, s{S_T2}, s{S_AW}"]
            if j == 0 or k == 3: sal += [f"s_add_u32 s{S_T}, s{S_T2}, {sect * 1024}", f"s_add_u32 m0, s{S_AR}, {base + sect * 2048}"]
            r.append((sal, f"buffer_load_dwordx4 v{V_WA if j == 0 else V_WT}, {sr(R_W1)}, s{S_T} offen offset:{j*1024} lds ; @X{P}"))
        return r
    R = R_A1 if t == 'Q' else R_A0
    src = (S_QS if half else S_QL) if t == 'Q' else S_CK
    sal = pre + [f"s_add_u32 s{S_T}, s{src}, s{S_KA}"]
    if t != 'Q' and half: sal += [f"s_add_u32 s{S_T}, s{S_T}, 32768"]
    sal += [f"s_add_u32 m0, s{S_AR}, {base + half * 4096}"]
    return [(sal if k == 0 else [], f"buffer_load_dwordx4 v{V_AD+k}, {sr(R)}, s{S_T} offen offset:{k*1024} lds ; @X{P}") for k in range(4)]

def w_dma(G):
    t = ptype(G); tag = f"W{G//2}"
    pre = adv(S_KB) if G % 2 == 0 and G > 0 else []
    if t != 'A':
        R = {'K': R_W0, 'V': R_W1, 'Q': R_W0}[t]
        sal = pre + ([f"s_lshl_b32 s{S_KW}, s{S_KB}, 12", f"s_add_u32 s{S_KW}, s{S_KW}, s{S_WC}"] if G % 2 == 0 else [f"s_add_u32 s{S_KW}, s{S_KW}, 262144"])
        sal += [f"s_add_u32 m0, s{S_WL}, {(G % 8) * 8192}"]
        return [(sal, f"buffer_load_dwordx4 v{V_WD}, {sr(R)}, s{S_KW} offen lds ; @{tag}"),
                ([], f"buffer_load_dwordx4 v{V_WD+1}, {sr(R)}, s{S_KW} offen offset:1024 lds ; @{tag}")]
    r = []
    for k in ((0, 1) if G % 2 == 0 else (2,)):
        r.append(((pre if k == 0 else []) + [f"s_add_u32 s{S_T3}, s{S_AG+k}, s{S_KB}", f"s_add_u32 m0, s{S_AL}, {((G // 2) % 4) * 16384 + k * 1024}"],
                  f"buffer_load_dwordx4 v{V_A3 + (k & 1)}, {sr(R_A0)}, s{S_T3} offen lds ; @{tag}"))
    return r

def reads(G):
    t = ptype(G); buf = G & 1; P = G // 2
    if t == 'A':
        r = [f"ds_read_b128 {ar(XF(buf, tb))}, v{V_AX + (G & 1)} offset:{(P % 4) * 16384 + tb * 2048}" for tb in range(5)]
        for f, sect in enumerate((1, 2, 0)):
            r += [f"ds_read_b64_tr_b16 {vr(WFA(buf, f) + 2*e, 2)}, v{V_TA + (G & 1)} offset:{(P % 3) * 8192 + sect * 2048 + e * 512}" for e in range(2)]
        return r
    r = [f"ds_read_b128 {ar(XF(buf, tb))}, v{V_AR + (G & 1)} offset:{(P % 3) * 8192 + tb * 2048}" for tb in range(4)]
    for T in range(8):
        r += [f"ds_read_b64_tr_b16 {vr(WF(buf, T) + 2*e, 2)}, v{V_TR+T} offset:{(G % 8) * 8192 + e * 1024}" for e in range(2)]
    return r

def AACC(f, tb): return AAC + (f * 5 + tb - (1 if f == 2 else 0)) * 4
def mfmas(G):
    t = ptype(G); ks = G % 16; buf = G & 1; mf = []
    if t == 'A':
        for f in range(3):
            for tb in range(1 if f == 2 else 0, 5):
                d = vr(AACC(f, tb)); c = d if ks else '0'
                if f == 1: mf.append(mfma(d, ar(XF(buf, tb)), vr(WFA(buf, f)), c))
                else: mf.append(mfma(d, vr(WFA(buf, f)), ar(XF(buf, tb)), c))
        return mf
    for T in range(8):
        for tb in range(4):
            d = (ar if t == 'V' else vr)(ACCV + (T * 4 + tb) * 4); c = d if ks else '0'
            if t == 'V': mf.append(mfma(d, ar(XF(buf, tb)), vr(WF(buf, T)), c))
            else: mf.append(mfma(d, vr(WF(buf, T)), ar(XF(buf, tb)), c))
    return mf

def drain(dt, k):
    pk = V_PK
    if dt == 'K':
        tb, s = k >> 2, k & 3
        lo = ACCV + ((2 * s) * 4 + tb) * 4; hi = lo + 16
        va = [f"v_mul_f32 v{r}, s{S_KS}, v{r}" for r in list(range(lo, lo + 4)) + list(range(hi, hi + 4))]
        src = [lo, lo + 2, hi, hi + 2]
        off = (tb >> 1) * 16384 + ((tb & 1) * 4 + s) * 1024
    elif dt == 'V':
        p, T = k >> 3, k & 7
        lo = ACCV + (T * 4 + 2 * p) * 4
        va = [f"v_accvgpr_read_b32 v{V_TMP+r}, a{lo+r}" for r in range(8)]
        src = [V_TMP + 2 * r for r in range(4)]
        off = (p + 1) * 16384 + 8192 + T * 1024
    else:
        tb, s = k >> 2, k & 3
        lo = ACCV + ((2 * s) * 4 + tb) * 4; hi = lo + 16
        src = [lo, lo + 2, hi, hi + 2]
        va = [f"v_cvt_pk_bf16_f32 v{pk+i}, v{x}, v{x+1}" for i, x in enumerate(src)]
        va += [f"v_accvgpr_write_b32 a{QF(tb, s)+i}, v{pk+i}" for i in range(4)]
        z = [lo, hi] if tb else []
        if 10 <= k < 14: z += [ACCV + 32 * (k - 10), ACCV + 32 * (k - 10) + 16]
        va += [f"v_mov_b32 v{x+i}, 0" for x in z for i in range(4)]
        return va, [], []
    va += [f"v_cvt_pk_bf16_f32 v{pk+i}, v{x}, v{x+1}" for i, x in enumerate(src)]
    return va, [f"s_add_u32 s{S_KVO}, s{S_KVS}, {off}"], [f"buffer_store_dwordx4 {vr(pk)}, v{V_L16}, {sr(R_WS)}, s{S_KVO} offen {opt('KVST', ST)} ; @ST{dt}"]

def dma_plan():
    A = [(P, h) for P in range(2, NST // 2) for h in range(2)]; Wq = list(range(4, NST))
    plan = {}
    for G in range(NST):
        cap = 8 if G < 8 else 6
        items = []; n = 0
        while True:
            ca = A and max(2 * A[0][0] - 5 + (A[0][1] if G >= 8 else 0), 0) <= G
            cw = Wq and max((2 * (Wq[0] // 2) - 7) if G < 8 else Wq[0] - 7, 0) <= G
            pick = None
            if ca and n + 4 <= cap and (not cw or A[0][0] <= Wq[0] // 2): pick = 'A'
            elif cw and n + 2 <= cap: pick = 'W'
            elif ca and n + 4 <= cap: pick = 'A'
            if pick is None: break
            if pick == 'A': items.append(('A',) + A.pop(0)); n += 4
            else: items.append(('W', Wq.pop(0))); n += 2
        plan[G] = items
    return plan
PLAN = dma_plan()

def step(G, hooks):
    t = ptype(G); ks = G % 16; dr = PASSES[G // 16][1]
    g = Gaps(mfmas(G))
    nxt = G + 1 < NST
    big = t != 'A'; odd = G % 2 == 1
    rd = reads(G + 1) if nxt else []
    dl = []
    for it in PLAN[G]: dl += act_dma(it[1], it[2]) if it[0] == 'A' else w_dma(it[1])
    dl += hooks.get(('dma', G), [])
    va, dsal, dst = drain(dr, ks) if dr else ([], [], [])
    tags = ([f"X{(G+1)//2}", f"W{(G+1)//2}"] if odd and nxt else []) + hooks.get(('wait', G), [])
    full = [f"@wait {','.join(tags)} lgkmcnt(0)" if tags else "s_waitcnt lgkmcnt(0)"] + (["s_barrier"] if odd and nxt else [])
    if big:
        g.put(-1, "s_waitcnt lgkmcnt(12)")
        dgap = [6, 10, 14, 18, 22, 26] if len(dl) <= 6 else [6, 9, 12, 15, 19, 22, 25, 28]; sgap = 30
        if odd or len(rd) != 20:
            g.front(3, *full); r0 = 4
        else:
            r0 = 0
        rgap = [x for x in range(r0, 32) if x not in dgap]
        vgap = [0, 1, 2, 4, 5, 7, 8, 9, 11, 12, 13, 15, 16, 17]
    else:
        g.put(-1, "s_waitcnt lgkmcnt(4)")
        g.front(1, *full)
        dgap = [3, 5, 7, 9, 11, 13] if len(dl) <= 6 else [3, 4, 6, 7, 9, 10, 12, 13]; sgap = 13
        rgap = [2, 4, 6, 8, 10, 12, 3, 5, 7, 9, 11]
        rgap = sorted(rgap)
        vgap = [0, 0, 2, 3, 4, 5, 6, 7, 8, 9, 10, 11, 12, 13, 13, 13] + [13] * 8
    for x, gp in zip(rd, rgap): g.put(gp, x)
    if big and not (odd or len(rd) != 20):
        n7 = sum(1 for x in rgap[:20] if x < 7)
        g.front(7, *([f"@wait {','.join(tags)} lgkmcnt({n7})"] if tags else [f"s_waitcnt lgkmcnt({n7})"]))
    assert len(dl) <= len(dgap)
    for (sal, x), gp in zip(dl, dgap):
        for k, y in enumerate(sal):
            q = max(gp - len(sal) + k, 0)
            pos = max([i + 1 for i, z in enumerate(g.g[q]) if z.startswith('buffer_load') or z.startswith('s_')] + [0])
            g.g[q].insert(pos, y)
        g.put(gp, x)
    for x, gp in zip(va, vgap): g.put(gp, x)
    for x in dsal: g.front(sgap - 2, x)
    for x in dst: g.put(sgap, x)
    for gp, x in hooks.get(('seq', G), []): g.front(gp, x) if x.startswith('s_') else g.put(gp, x)
    for gp, x in hooks.get(('misc', G), []): g.front(gp, x) if x.startswith('s_') and '\n' not in x else g.put(gp, x)
    return g.lines()

def setup():
    a = f"""v_and_b32 v1, 63, v0
    v_lshlrev_b32 v{V_L16}, 4, v1
    v_lshrrev_b32 v26, 3, v1
    v_lshrrev_b32 v24, 4, v1
    v_and_b32 v28, 7, v1
    v_xor_b32 v27, v24, v28
    v_lshlrev_b32 v27, 4, v27
    v_lshl_add_u32 v{V_AD}, v26, 10, v27
    v_xor_b32 v27, 64, v{V_AD}
    v_add_u32 v{V_AD+1}, {8192-1024}, v27
    v_add_u32 v{V_AD+2}, {2*(8192-1024)}, v{V_AD}
    v_add_u32 v{V_AD+3}, {3*(8192-1024)}, v27
    s_and_b32 s{S_T}, s{S_W}, 1
    s_lshl_b32 s{S_T}, s{S_T}, 2
    v_or_b32 v25, s{S_T}, v24
    v_lshlrev_b32 v25, 1, v25
    v_and_b32 v26, 15, v1
    v_xor_b32 v25, v25, v26
    v_lshlrev_b32 v25, 4, v25
    v_lshl_add_u32 v25, v24, 13, v25
    s_lshl_b32 s{S_T}, s{S_W}, 16
    v_add_u32 v{V_WD}, s{S_T}, v25
    v_add_u32 v{V_WD+1}, {4*8192-1024}, v{V_WD}
    s_lshl_b32 s{S_CK}, s{S_I}, 18
    s_add_u32 s{S_CK}, s{S_CK}, s{S_T}
    s_lshl_b32 s{S_WC}, s{S_H}, 8
    s_mul_i32 s{S_AR}, s{S_W}, 24576
    s_add_u32 s{S_AR}, s{S_AR}, 65536
    s_lshl_b32 s{S_WL}, s{S_W}, 11
    s_add_u32 s{S_KA}, s{S_I}, s{S_H}
    s_and_b32 s{S_KA}, s{S_KA}, {7 if ROT else 0}
    s_lshl_b32 s{S_KA}, s{S_KA}, 7
    s_mov_b32 s{S_KB}, s{S_KA}""".split('\n')
    b = f"""v_and_b32 v24, 15, v1
    v_lshrrev_b32 v25, 4, v1
    v_lshrrev_b32 v26, 1, v24
    v_xor_b32 v26, v26, v25
    v_lshlrev_b32 v26, 4, v26
    v_lshl_add_u32 v{V_AX}, v24, 7, v26
    v_xor_b32 v{V_AX+1}, 64, v{V_AX}
    v_add_u32 v{V_AR}, s{S_AR}, v{V_AX}
    v_xor_b32 v{V_AR+1}, 64, v{V_AR}
    v_bfe_u32 v26, v1, 2, 2
    v_lshl_add_u32 v27, v25, 3, v26
    v_and_b32 v28, 1, v25
    v_lshl_or_b32 v29, v28, 2, v26
    v_lshlrev_b32 v29, 5, v29
    v_lshl_add_u32 v29, v27, 8, v29
    v_and_b32 v30, 3, v1
    v_lshl_add_u32 v{V_TR}, v30, 3, v29
    @split
    v_lshrrev_b32 v25, 4, v1
    v_bfe_u32 v26, v1, 2, 2
    v_and_b32 v28, 1, v25
    v_and_b32 v30, 3, v1
    v_lshl_add_u32 v27, v28, 3, v26
    v_lshlrev_b32 v27, 7, v27
    v_lshl_add_u32 v27, v30, 3, v27
    v_lshrrev_b32 v26, 1, v26
    v_lshl_or_b32 v26, v28, 1, v26
    v_xor_b32 v26, s{S_W}, v26
    v_lshl_add_u32 v27, v26, 5, v27
    v_lshrrev_b32 v26, 5, v1
    v_mul_u32_u24 v26, 24576, v26
    v_add_u32 v27, v27, v26
    v_add_u32 v{V_TA}, 0x10000, v27
    v_add_u32 v{V_TA+1}, {65536 + 49152}, v27
    v_lshrrev_b32 v26, 3, v1
    v_and_b32 v27, 2, v26
    v_and_b32 v28, 7, v1
    v_xor_b32 v27, v27, v28
    v_lshlrev_b32 v27, 4, v27
    v_mul_u32_u24 v26, 3072, v26
    v_add_u32 v{V_WA}, v26, v27
    v_xor_b32 v27, 64, v27
    v_add_u32 v26, v26, v27
    v_add_u32 v{V_WT}, {8*3072-1024}, v26
    s_and_b32 s{S_T}, s{S_W}, 1
    s_lshl_b32 s{S_T}, s{S_T}, 6
    v_xor_b32 v{V_A3}, s{S_T}, v{V_AD}
    v_xor_b32 v{V_A3+1}, 64, v{V_A3}
    s_lshl_b32 s{S_T}, s{S_I}, 2
    s_add_u32 s{S_QS}, s{S_T}, s{S_W}
    s_sub_u32 s{S_QL}, s{S_W}, s{S_T}
    s_add_u32 s{S_QL}, s{S_QL}, 60
    s_lshl_b32 s{S_QL}, s{S_QL}, 15
    s_lshl_b32 s{S_QS}, s{S_QS}, 15
    s_mul_i32 s{S_KVS}, s{S_H}, {HS}
    s_lshl_b32 s{S_T}, s{S_I}, 17
    s_add_u32 s{S_KVS}, s{S_KVS}, s{S_T}
    s_lshl_b32 s{S_T}, s{S_W}, 15
    s_add_u32 s{S_KVS}, s{S_KVS}, s{S_T}
    s_mov_b32 s{S_KS}, {KSCALE}
    s_mov_b32 s{S_AC}, {ASC}
    s_lshr_b32 s{S_TT}, s{S_X}, 1
    s_lshl_b32 s{S_TT}, s{S_TT}, 3
    s_add_u32 s{S_TT}, s{S_TT}, s{S_I}
    s_and_b32 s{S_OA}, s{S_H}, 7
    s_lshl_b32 s{S_AW}, s{S_OA}, 7
    s_mul_i32 s{S_T}, s{S_W}, {16*3072}
    s_add_u32 s{S_AW}, s{S_AW}, s{S_T}
    s_mul_i32 s{S_AL}, s{S_W}, 3072
    s_lshl_b32 s{S_T}, s{S_TT}, 16
    s_lshl_b32 s{S_KVO}, s{S_AL}, 3
    s_add_u32 s{S_T}, s{S_T}, s{S_KVO}
    s_sub_u32 s{S_AG}, s{S_T}, 16384
    s_cselect_b32 s{S_AG}, {OOB}, s{S_AG}
    s_sub_u32 s{S_AG+1}, s{S_T}, 8192
    s_cselect_b32 s{S_AG+1}, {OOB}, s{S_AG+1}
    s_mov_b32 s{S_AG+2}, s{S_T}
    s_cmp_eq_u32 s{S_W}, 3
    s_cselect_b32 s{S_AG+1}, {OOB}, s{S_AG+1}
    s_cselect_b32 s{S_AG+2}, {OOB}, s{S_AG+2}
    s_lshl_b32 s{S_OA}, s{S_OA}, 11
    s_lshl_b32 s{S_T}, s{S_TT}, 16
    s_add_u32 s{S_OA}, s{S_OA}, s{S_T}
    s_lshr_b32 s{S_T}, s{S_W}, 1
    s_lshl_b32 s{S_T}, s{S_T}, 10
    s_add_u32 s{S_OA}, s{S_OA}, s{S_T}
    s_add_u32 s{S_OA}, s{S_OA}, {WS_OA}
    s_and_b32 s{S_T}, s{S_W}, 1
    s_lshl_b32 s{S_T}, s{S_T}, 3
    v_add_u32 v{V_OD}, s{S_T}, v{V_L16}""".split('\n')
    b = [x.strip() for x in b]
    k = b.index('@split')
    b1 = b[:k] + [f"v_xor_b32 v{V_TR+T}, {32*T}, v{V_TR}" for T in range(1, 8)]
    b2 = [x.replace(f"s{S_T},", "s100,").replace(f"s{S_T}", "s100") for x in b[k+1:]]
    return [x.strip() for x in a], b1, b2

def a_masks():
    b = [f"v_and_b32 v124, 15, v1\nv_lshrrev_b32 v125, 4, v1\nv_lshlrev_b32 v125, 2, v125\nv_sub_u32 v124, v124, v125\nv_mov_b32 v125, {NEG_BIG:#x}\n" +
         "\n".join(f"v_mov_b32 v{V_ONE+r}, 0x3f803f80" for r in range(4))]
    for r in range(4):
        b.append(f"""v_subrev_u32 v126, {r}, v124
        v_and_b32 v127, -15, v126
        v_cmp_ne_u32 vcc, 0, v127
        v_add_u32 v126, 16, v126
        v_and_b32 v127, -15, v126
        v_cndmask_b32 v{V_MC+r}, 0, v125, vcc
        v_cmp_ne_u32 vcc, 0, v127
        s_nop 1
        v_cndmask_b32 v{V_MP+r}, 0, v125, vcc""")
    b.append(f"s_cmp_eq_u32 s{S_TT}, 0\ns_cselect_b32 s100, 0, {0x7f7fffff}\ns_cselect_b32 s100, {NEG_BIG}, s100\n" + "\n".join(f"v_min_f32 v{V_MP1+r}, s100, v{V_MP+r}" for r in range(4)))
    return b

def a_attention():
    r = ["s_nop 4"]
    pk = lambda f, tb: AAC + (AACC(f, tb) - AAC) // 2
    for i in range(28): r.append(f"v_cvt_pk_bf16_f32 v{AAC+i}, v{AAC+2*i}, v{AAC+2*i+1}")
    SS = lambda i: 88 + i * 8
    M = 36; U = 40; OO = lambda i: 44 + i * 4
    r.append("s_nop 0")
    for i in range(4):
        mp = V_MP1 if i == 0 else V_MP
        r.append(f"v_mfma_f32_16x16x16_bf16 {vr(SS(i))}, {vr(pk(0, i), 2)}, {vr(pk(2, i+1), 2)}, {vr(mp)}")
        r.append(f"v_mfma_f32_16x16x16_bf16 {vr(SS(i)+4)}, {vr(pk(0, i+1), 2)}, {vr(pk(2, i+1), 2)}, {vr(V_MC)}")
    r.append("s_nop 5")
    for i in range(4):
        s0 = SS(i)
        r += [f"v_max3_f32 v{M+i}, v{s0}, v{s0+1}, v{s0+2}", f"v_max3_f32 v{M+i}, v{M+i}, v{s0+3}, v{s0+4}",
              f"v_max3_f32 v{M+i}, v{M+i}, v{s0+5}, v{s0+6}", f"v_max_f32 v{M+i}, v{M+i}, v{s0+7}", f"v_mov_b32 v{U+i}, v{M+i}"]
    for sw in ('32', '16'):
        r.append("s_nop 1")
        r += [f"v_permlane{sw}_swap_b32 v{M+i}, v{U+i}" for i in range(4)]
        for i in range(4):
            r.append(f"v_max_f32 v{M+i}, v{M+i}, v{U+i}")
            if sw == '32': r.append(f"v_mov_b32 v{U+i}, v{M+i}")
    r += [f"v_mul_f32 v{M+i}, s{S_AC}, v{M+i}" for i in range(4)]
    for i in range(4):
        r += [f"v_fma_f32 v{SS(i)+k}, v{SS(i)+k}, s{S_AC}, -v{M+i}" for k in range(8)]
        r += [f"v_exp_f32 v{SS(i)+k}, v{SS(i)+k}" for k in range(8)]
    for i in range(4):
        r += [f"v_cvt_pk_bf16_f32 v{SS(i)+k}, v{SS(i)+2*k}, v{SS(i)+2*k+1}" for k in range(4)]
    r.append("s_nop 1")
    for i in range(4):
        r.append(mfma(vr(SS(i) + 4), vr(V_ONE), vr(SS(i)), '0'))
        r.append(mfma(vr(OO(i)), vr(pk(1, i)), vr(SS(i)), '0'))
    r.append("s_nop 5")
    r += [f"v_rcp_f32 v{M+i}, v{SS(i)+4}" for i in range(4)]
    for i in range(4): r += [f"v_mul_f32 v{OO(i)+k}, v{M+i}, v{OO(i)+k}" for k in range(4)]
    for i in range(4):
        d = 88 + i * 2
        r += [f"v_cvt_pk_bf16_f32 v{d}, v{OO(i)}, v{OO(i)+1}", f"v_cvt_pk_bf16_f32 v{d+1}, v{OO(i)+2}, v{OO(i)+3}", f"s_add_u32 s{S_KVO}, s{S_OA}, {i*16384}",
              f"buffer_store_dwordx2 {vr(d, 2)}, v{V_OD}, {sr(R_WS)}, s{S_KVO} offen {ST} ; @STO"]
    return r

def publish_nonce():
    return ["s_lshl_b32 s100, s2, 2", f"s_or_b32 s100, s100, s{S_W}", "s_cmp_lg_u32 s100, 0", "s_cbranch_scc1 L_nononce", "s_memrealtime s[100:101]", "s_waitcnt lgkmcnt(0)",
            "s_or_b32 s100, s100, 1", "v_mov_b32 v14, s100", "v_mov_b32 v15, 0", "s_mov_b64 exec, 1",
            f"buffer_store_dword v14, v15, {sr(R_X)}, 0 offen sc1 ; @skip", "s_mov_b64 exec, -1", "L_nononce:"]

def engine(hooks):
    a, b, b2 = setup()
    r = list(a) + ["s_waitcnt lgkmcnt(0)"]
    r += srd(R_A0, P_CKV, 2 << 20) + srd(R_W0, P_WUK, 4 << 20)
    for G in range(4):
        for sal, x in act_dma(G // 2, G % 2): r += sal + (["s_nop 0"] if sal else []) + [x]
        for sal, x in w_dma(G): r += sal + (["s_nop 0"] if sal else []) + [x]
    r += b
    b2 += srd(R_A1, P_XB, 2 << 20) + srd(R_W1, P_WUV, 4 << 20) + srd(R_WS, P_WS, WS_END) + srd(R_X, P_DBG, 256)
    r += ["@wait X0,W0", "s_barrier"] + stamp('go') + reads(0)
    hk = dict(hooks)
    def add(G, gp, lines): hk[('misc', G)] = hk.get(('misc', G), []) + [(gp + i, x) for i, x in enumerate(lines)]
    m = []
    for x in b2:
        if x.startswith('s_cselect'): m[-1] += '\n' + x
        else: m.append(x)
    b2 = m
    slots = [(G, gp) for G in range(2, 8) for gp in range(0, 32) if gp not in (3, 6, 9, 12, 15, 19, 22, 25, 28)]
    for x, (G, gp) in zip(b2, slots): hk[('seq', G)] = hk.get(('seq', G), []) + [(gp, x)]
    assert len(b2) <= len(slots)
    add(8, 30, ['\n'.join(publish_nonce())])
    add(10, 23, srd(R_W0, P_WQ, 4 << 20)[:2])
    add(28, 23, srd(R_A0, P_XA, 2 << 20)[:2])
    add(29, 23, srd(R_W1, P_WQKV, 1536 * 1024)[:3])
    for G in range(NST):
        r += step(G, hk)
        r += stamp(f'g{G}')
    return r
```

```python
from common import *
import eng
from eng import V_L16, V_AD, S_AR, ST
V_OUT = 15; V_RR = 16
def ACC(T, tb): return 64 + (T * 4 + tb) * 4
def ACA(T, tb): return 192 + (T * 4 + tb) * 4
NW = 12; NC = 8
def WB(kk, T): return (kk % NW) * 16 + T * 4
def CX(kk, tb): return 128 + (kk % NC) * 16 + tb * 4
S_CB = 34; S_WB = 35; S_T = 37; S_GC = 40; S_GW = 41; S_ROT = 44; S_OAB = 45; S_WAB = 46; S_OUT = 47
R_OUT = R_A0
LD = opt('LD_POL', 'sc1')

def RX(i): return 128 + 16 * i
def relayout_loads():
    r = srd(R_W0, P_WO_A, 512 * 1024)[:3] + [f"s_and_b32 s100, s{S_H}, 7", "s_cmp_lg_u32 s100, 0", "s_cbranch_scc1 RL_a",
         f"s_lshr_b32 s100, s{S_H}, 1", f"s_add_u32 s100, s100, s{S_W}", "s_lshl_b32 s100, s100, 15", f"s_lshl_b32 s101, s{S_I}, 7", "s_add_u32 s100, s100, s101",
         f"s_lshl_b32 s101, s{S_W}, 14", "s_add_u32 m0, s101, 12288", "s_nop 0"]
    r += [f"buffer_load_dwordx4 v{V_AD+k}, {sr(R_W0)}, s100 offen offset:{k*1024} lds ; @skip" for k in range(4)]
    r += ["RL_a:"] + srd(R_W0, P_WO, 4 << 20)[:3]
    r += [f"s_lshl2_add_u32 s100, s{S_H}, s{S_W}", "s_lshl_b32 s100, s100, 15", f"s_lshl_b32 s101, s{S_I}, 7", "s_add_u32 s100, s100, s101", f"s_add_u32 m0, s{S_AR}, 6144", "s_nop 0"]
    r += [f"buffer_load_dwordx4 v{V_AD+k}, {sr(R_W0)}, s100 offen offset:{k*1024} lds ; @WO" for k in range(2)]
    r += [f"s_add_u32 m0, s{S_AR}, {8192 + 6144 - 2048}", "s_nop 0"]
    r += [f"buffer_load_dwordx4 v{V_AD+k}, {sr(R_W0)}, s100 offen offset:{k*1024} lds ; @WO" for k in range(2, 4)]
    return r
def relayout_reads():
    a = 124; V_X = 126
    r = [f"v_lshrrev_b32 v{a}, 2, v1", f"v_lshrrev_b32 v{a+1}, 3, v1", f"v_and_b32 v{V_X}, 3, v1", f"v_xor_b32 v{a+1}, v{a+1}, v{V_X}", f"v_lshlrev_b32 v{a+1}, 4, v{a+1}",
         f"v_lshl_add_u32 v{a+1}, v{a}, 7, v{a+1}", f"s_and_b32 s100, s{S_H}, 7", "s_cmp_lg_u32 s100, 0", "s_cbranch_scc1 RL_b",
         f"s_lshl_b32 s101, s{S_W}, 14", f"v_add_u32 v{a}, s101, v{a+1}", f"v_xor_b32 v{V_X}, 64, v{a}"]
    for T in range(4):
        for e in range(2):
            r.append(f"ds_read_b64_tr_b16 {vr(RX(4 + T) + 2*e, 2)}, v{a if T < 2 else V_X} offset:{12288 + e * 2048 + (T & 1) * 8}")
    r += ["RL_b:", f"v_add_u32 v{a}, s{S_AR}, v{a+1}", f"v_xor_b32 v{a+1}, 64, v{a}"]
    for T in range(4):
        for e in range(2):
            r.append(f"ds_read_b64_tr_b16 {vr(RX(T) + 2*e, 2)}, v{a + (T >> 1)} offset:{6144 + e * 8192 + (T & 1) * 8}")
    return r
def relayout_stores():
    r = [f"s_lshr_b32 s100, s{S_H}, 3", "s_lshl_b32 s100, s100, 2", f"s_lshr_b32 s101, s{S_I}, 1", "s_add_u32 s100, s100, s101", "s_lshl_b32 s100, s100, 3", f"s_and_b32 s101, s{S_H}, 7",
         "s_add_u32 s100, s100, s101", f"s_lshl2_add_u32 s100, s100, s{S_W}", f"s_and_b32 s101, s{S_I}, 1", "s_lshl1_add_u32 s100, s100, s101", "s_lshl_b32 s100, s100, 12", f"s_add_u32 s100, s100, {WS_WO}"]
    r += [f"buffer_store_dwordx4 {vr(RX(T))}, v{V_L16}, {sr(R_WS)}, s100 offen offset:{T*1024} {ST} ; @STW" for T in range(4)]
    r += [f"s_and_b32 s100, s{S_H}, 7", "s_cmp_lg_u32 s100, 0", "s_cbranch_scc1 RL_c",
          f"s_lshl_b32 s100, s{S_I}, 4", f"s_lshr_b32 s101, s{S_H}, 1", "s_add_u32 s100, s100, s101", f"s_add_u32 s100, s100, s{S_W}", "s_lshl_b32 s100, s100, 12", f"s_add_u32 s100, s100, {WS_WA}"]
    r += [f"buffer_store_dwordx4 {vr(RX(4 + T))}, v{V_L16}, {sr(R_WS)}, s100 offen offset:{T*1024} {ST} ; @skip" for T in range(4)]
    return r + ["RL_c:"]

V_PP = 80
V_CD = 4; V_WD = 6; V_CR = 8; V_WR = 12; V_PC = 13
def WFR(buf, e, T): return 128 + buf * 32 + e * 16 + T * 4
def CFR(buf, e, u): return 192 + buf * 32 + e * 16 + u * 4
def AW(k, T): return 64 + k * 16 + T * 4
def AC(k, tb): return 128 + k * 16 + tb * 4
S_Q = 32; S_TL = 33; S_M = 36; S_XS = 38; S_XR = 39; S_OB = 42
def polls(): return poll_issue('OA', V_PP, 'PA') + poll_issue('WO', V_PP + 2, 'PA') + poll_issue('WA', V_PP + 4, 'PA')
def w_dma(p):
    return [([f"s_add_u32 s{S_GW}, s{S_WB}, {p * 16384}", f"s_add_u32 m0, s{S_M}, {(p % 4) * 16384}"] if k == 0 else [],
             f"buffer_load_dwordx4 v{V_WD}, {sr(R_WS)}, s{S_GW} offen offset:{k*1024} {LD} lds ; @W{p}") for k in range(4)]
def c_dma(p):
    return [([f"s_add_u32 s{S_GC}, s{S_CB}, {p * 2048}", f"s_add_u32 m0, s{S_M}, {65536 + (p % 4) * 16384}"] if k == 0 else [],
             f"buffer_load_dwordx4 v{V_CD + (k >> 1)}, {sr(R_WS)}, s{S_GC} offen offset:{k*1024} {LD} lds ; @C{p}") for k in range(4)]
def flat(items):
    r = []
    for sal, x in items: r += sal + (["s_nop 0"] if sal else []) + [x]
    return r
def rds(p):
    b = p & 1; o = (p % 4) * 16384
    r = []
    for T in range(4):
        r += [f"ds_read_b128 {vr(WFR(b, e, T))}, v{V_WR} offset:{o + e * 8192 + T * 1024}" for e in range(2)]
        r += [f"ds_read_b128 {vr(CFR(b, e, T))}, v{V_CR + T} offset:{o + e * 1024}" for e in range(2)]
    return r
def a_loads():
    r = []
    for k in range(4):
        r += [([f"s_add_u32 s{S_T}, s{S_WAB}, {k * 4096}"] if T == 0 else [], f"buffer_load_dwordx4 {ar(AW(k, T))}, v{V_L16}, {sr(R_WS)}, s{S_T} offen offset:{T*1024} {LD} ; @A{k}") for T in range(4)]
        r += [([f"s_add_u32 s{S_T}, s{S_OAB}, {tb * 16384}"], f"buffer_load_dwordx4 {ar(AC(k, tb))}, v{V_L16}, {sr(R_WS)}, s{S_T} offen offset:{k*1024} {LD} ; @A{k}") for tb in range(4)]
    return r

def pre_join():
    r = f"""s_lshr_b32 s{S_Q}, s{S_X}, 1
    s_sub_u32 s{S_TL}, 15, s{S_I}
    s_bitcmp1_b32 s{S_X}, 0
    s_cselect_b32 s{S_TL}, s{S_TL}, s{S_I}
    s_lshl_b32 s{S_M}, s{S_W}, 12
    s_and_b32 s{S_T}, s{S_H}, 3
    s_lshl2_add_u32 s{S_WB}, s{S_Q}, s{S_T}
    s_lshl_b32 s{S_WB}, s{S_WB}, 18
    s_add_u32 s{S_WB}, s{S_WB}, {WS_WO}
    v_add_u32 v{V_WD}, s{S_M}, v{V_L16}
    s_lshl_b32 s{S_CB}, s{S_TL}, 20
    s_lshl_b32 s{S_GC}, s{S_Q}, 15
    s_add_u32 s{S_CB}, s{S_CB}, s{S_GC}
    s_add_u32 s{S_CB}, s{S_CB}, {WS_C}
    s_lshl_b32 s{S_GC}, s{S_W}, 18
    v_add_u32 v{V_CD}, s{S_GC}, v{V_L16}
    v_add_u32 v{V_CD+1}, {131072 - 2048}, v{V_CD}
    s_lshl2_add_u32 s{S_XS}, s{S_TL}, s{S_T}
    s_lshl_b32 s{S_XS}, s{S_XS}, 18
    s_add_u32 s{S_XS}, s{S_XS}, s{S_M}
    s_add_u32 s{S_XS}, s{S_XS}, {WS_XB}
    s_lshl_b32 s{S_GC}, s{S_Q}, 16
    s_add_u32 s{S_XR}, s{S_XS}, s{S_GC}
    s_lshl_b32 s{S_OB}, s{S_TL}, 18
    s_lshl_b32 s{S_GC}, s{S_Q}, 15
    s_add_u32 s{S_OB}, s{S_OB}, s{S_GC}
    s_lshl_b32 s{S_GC}, s{S_T}, 8
    s_add_u32 s{S_OB}, s{S_OB}, s{S_GC}
    s_lshr_b32 s{S_GC}, s{S_W}, 1
    s_lshl_b32 s{S_GW}, s{S_GC}, 17
    s_add_u32 s{S_OB}, s{S_OB}, s{S_GW}
    s_lshl_b32 s{S_GC}, s{S_GC}, 13
    s_add_u32 s{S_GC}, s{S_GC}, 65536
    s_and_b32 s{S_GW}, s{S_W}, 1
    s_lshl_b32 s{S_T}, s{S_GW}, 7
    s_add_u32 s{S_OB}, s{S_OB}, s{S_T}
    s_add_u32 s{S_OB}, s{S_OB}, 1024
    s_lshl_b32 s{S_T}, s{S_GW}, 12
    v_add_u32 v{V_WR}, s{S_T}, v{V_L16}""".split('\n')
    for u in range(4):
        r += [f"s_add_u32 s{S_T}, s{S_Q}, {u}", f"s_and_b32 s{S_T}, s{S_T}, 3", f"s_lshl_b32 s{S_T}, s{S_T}, 11", f"s_add_u32 s{S_T}, s{S_T}, s{S_GC}", f"v_add_u32 v{V_CR+u}, s{S_T}, v{V_L16}"]
    r += f"""s_lshl_b32 s{S_T}, s{S_W}, 14
    v_add_u32 v{V_RR}, s{S_T}, v{V_L16}
    s_lshl_b32 s{S_WAB}, s{S_I}, 16
    s_add_u32 s{S_WAB}, s{S_WAB}, s{S_T}
    s_add_u32 s{S_WAB}, s{S_WAB}, {WS_WA}
    s_lshl_b32 s{S_OAB}, s{S_H}, 16
    s_add_u32 s{S_OAB}, s{S_OAB}, s{S_M}
    s_add_u32 s{S_OAB}, s{S_OAB}, {WS_OA}
    s_lshl_b32 s{S_OUT}, s{S_H}, 17
    s_lshl_b32 s{S_T}, s{S_W}, 15
    s_add_u32 s{S_OUT}, s{S_OUT}, s{S_T}
    s_lshl_b32 s{S_T}, s{S_I}, 7
    s_add_u32 s{S_OUT}, s{S_OUT}, s{S_T}
    v_and_b32 v{V_OUT}, 15, v1
    v_lshlrev_b32 v{V_OUT}, 11, v{V_OUT}
    v_lshrrev_b32 v20, 4, v1
    v_lshl_add_u32 v{V_OUT}, v20, 4, v{V_OUT}""".split('\n')
    r += srd(R_OUT, P_OUT, 4 << 20) + ["@wait PA"]
    for k in range(3): r += poll_check(V_PP + 2 * k, S_T)
    return [x.strip() for x in r]

def outproj():
    r = poll_issue('CTX', V_PC, 'PC')
    for p in range(4): r += flat(w_dma(p))
    r += stamp('a2') + ["@wait PC"] + poll_check(V_PC, S_T) + stamp('pc')
    for p in range(4): r += flat(c_dma(p))
    r += ["@wait C0,W0", "s_barrier"] + rds(0)
    al = a_loads()
    for p in range(16):
        b = p & 1
        mf = []
        for T in range(4):
            for u in range(4):
                for e in range(2):
                    mf.append(mfma(vr(ACC(T, u)), vr(WFR(b, e, T)), vr(CFR(b, e, u)), vr(ACC(T, u)) if (p or e) else '0'))
        g = Gaps(mf)
        g.put(-1, "s_waitcnt lgkmcnt(0)")
        if p + 1 < 16:
            g.front(0, f"@wait C{p+1},W{p+1}", "s_barrier")
            rg = [1, 2, 4, 5, 7, 8, 10, 11, 13, 14, 16, 17, 19, 20, 22, 23]
            for x, gp in zip(rds(p + 1), rg): g.put(gp, x)
        dl = (c_dma(p + 4) + w_dma(p + 4)) if p + 4 < 16 else al[(p - 12) * 8:(p - 11) * 8]
        for (sal, x), gp in zip(dl, [3, 6, 9, 12, 15, 18, 21, 24]):
            for k, y in enumerate(sal): g.front(gp - len(sal) + k, y)
            g.put(gp, x)
        r += g.lines()
    r += stamp('opl') + ["s_nop 6"]
    for d in range(1, 4):
        r += [f"s_add_u32 s{S_T}, s{S_Q}, {d}", f"s_and_b32 s{S_T}, s{S_T}, 3", f"s_lshl_b32 s{S_T}, s{S_T}, 16", f"s_add_u32 s{S_T}, s{S_T}, s{S_XS}", f"s_add_u32 s{S_T}, s{S_T}, {d * 16384}"]
        r += [f"buffer_store_dwordx4 {vr(ACC(T, d))}, v{V_L16}, {sr(R_WS)}, s{S_T} offen offset:{T*1024} {ST} ; @XS" for T in range(4)]
    for k in range(4):
        r += [f"@wait A{k}"] + [mfma(ar(ACA(T, tb)), ar(AW(k, T)), ar(AC(k, tb)), ar(ACA(T, tb)) if k else '0') for T in range(4) for tb in range(4)]
    r += ["@wait XS", "s_barrier"] + signal('XB', 20) + poll_issue('XB', V_PC, 'PX')
    r += [f"ds_write_b128 v{V_WD}, {ar(ACA(T, tb))} offset:{tb * 16384 + T * 1024}" for tb in range(4) for T in range(4)]
    r += ["s_waitcnt lgkmcnt(0)", "s_barrier"]
    r += [f"ds_read_b128 {vr(128 + (s * 4 + T) * 4)}, v{V_RR} offset:{s * 4096 + T * 1024}" for s in range(4) for T in range(4)]
    r += ["s_waitcnt lgkmcnt(0)"] + red(128, S_OUT)
    r += ["@wait PX"] + poll_check(V_PC, S_T) + stamp('px')
    for d in range(1, 4):
        r += [f"s_add_u32 s{S_T}, s{S_XR}, {d * 16384}"]
        r += [f"buffer_load_dwordx4 {vr(192 + d * 16 + T * 4)}, v{V_L16}, {sr(R_WS)}, s{S_T} offen offset:{T*1024} {LD} ; @XL" for T in range(4)]
    r += [f"v_mov_b32 v{192 + T * 4 + i}, v{ACC(T, 0) + i}" for T in range(4) for i in range(4)]
    r += ["@wait XL"] + red(192, S_OB)
    return [x.strip() for x in r]

def red(b, so):
    r = []
    for i in range(16): r += [f"v_add_f32 v{b+i}, v{b+i}, v{b+16+i}", f"v_add_f32 v{b+32+i}, v{b+32+i}, v{b+48+i}"]
    r += [f"v_add_f32 v{b+i}, v{b+i}, v{b+32+i}" for i in range(16)]
    r += [f"v_cvt_pk_bf16_f32 v{b+i}, v{b+2*i}, v{b+2*i+1}" for i in range(8)]
    r += [f"buffer_store_dwordx4 {vr(b + 4*p)}, v{V_OUT}, {sr(R_OUT)}, s{so} offen offset:{p*64}" for p in range(2)]
    return r
```

```python
import re, sys
import numpy as np

M32 = 0xFFFFFFFF
TRANS = {'v_exp_f32','v_log_f32','v_rcp_f32','v_rsq_f32','v_sqrt_f32','v_sin_f32','v_cos_f32'}

class Ins:
    __slots__ = ('op','args','mods','line','text','rd','wr','kind','true')

def regs_of(tok):
    tok = tok.strip()
    neg = tok.lstrip('-')
    if neg.startswith('abs(') : neg = neg[4:-1]
    if neg.startswith('|'): neg = neg.strip('|')
    m = re.fullmatch(r'([vas])(\d+)', neg)
    if m: return [(m.group(1), int(m.group(2)))]
    m = re.fullmatch(r'([vas])\[(\d+):(\d+)\]', neg)
    if m: return [(m.group(1), i) for i in range(int(m.group(2)), int(m.group(3)) + 1)]
    if neg == 'vcc': return [('s', 106), ('s', 107)]
    if neg == 'exec': return [('s', 126), ('s', 127)]
    if neg == 'm0': return [('s', 124)]
    return []

def parse(text):
    ins = []; labels = {}
    for ln, raw in enumerate(text.split('\n'), 1):
        s = raw.split(';')[0].strip()
        if not s or s.startswith('.'):
            continue
        m = re.fullmatch(r'([\w.$]+):', s)
        if m:
            labels[m.group(1)] = len(ins); continue
        parts = s.split(None, 1)
        op = parts[0]
        for suf in ('_e32', '_e64'):
            if op.endswith(suf): op = op[:-4]
        rest = parts[1] if len(parts) > 1 else ''
        toks = [t.strip() for t in re.split(r',(?![^\[]*\])', rest)] if rest else []
        mods = {}
        if toks:
            last = toks[-1].split()
            if op == 's_waitcnt':
                for t in rest.replace(',', ' ').split():
                    mm = re.fullmatch(r'(\w+)\((\d+)\)', t); mods[mm.group(1)] = int(mm.group(2))
                toks = []
            else:
                toks[-1] = last[0]
                for t in last[1:]:
                    if ':' in t:
                        k, v = t.split(':', 1); mods[k] = int(v, 0) if re.fullmatch(r'-?(0x)?[0-9a-fA-F]+', v) else v
                    else: mods[t] = True
        I = Ins(); I.op = op; I.args = toks; I.mods = mods; I.line = ln; I.text = s; I.true = '@true' in raw or '@taken' in raw
        classify(I); ins.append(I)
    return ins, labels

def classify(I):
    op = I.op; A = I.args; rd = []; wr = []
    R = lambda i: regs_of(A[i])
    if op.startswith('v_mfma'):
        I.kind = 'mfma'; wr = R(0); rd = R(1) + R(2) + R(3)
    elif op.startswith('v_cmp'):
        I.kind = 'valu'; wr = R(0); rd = R(1) + R(2)
    elif op in ('v_readfirstlane_b32',):
        I.kind = 'valu'; wr = R(0); rd = R(1)
    elif op.startswith('v_permlane'):
        I.kind = 'valu'; wr = R(0) + R(1); rd = R(0) + R(1)
    elif op in ('v_fmac_f32',):
        I.kind = 'valu'; wr = R(0); rd = R(0) + R(1) + R(2)
    elif op == 'v_cndmask_b32':
        I.kind = 'valu'; wr = R(0); rd = R(1) + R(2) + R(3)
    elif op == 'v_nop':
        I.kind = 'valu'
    elif op.startswith('v_') and op not in ('v_add_co_u32', 'v_addc_co_u32'):
        I.kind = 'valu'; wr = R(0)
        for i in range(1, len(A)): rd += R(i)
    elif op.startswith('ds_read'):
        I.kind = 'ds'; wr = R(0); rd = R(1)
    elif op.startswith('ds_write'):
        I.kind = 'ds'; rd = R(0) + R(1)
    elif op.startswith('ds_bpermute') or op.startswith('ds_swizzle'):
        I.kind = 'ds'; wr = R(0)
        for i in range(1, len(A)): rd += R(i)
    elif op.startswith('buffer_load'):
        I.kind = 'vmem'
        if 'lds' in I.mods: rd = R(0) + R(1) + R(2) + [('s', 124)]
        else: wr = R(0); rd = R(1) + R(2) + R(3)
    elif op.startswith('buffer_store') or op.startswith('buffer_atomic'):
        I.kind = 'vmem'; rd = R(0) + R(1) + R(2) + R(3)
        if op.startswith('buffer_atomic') and 'sc0' in I.mods: wr = R(0)
    elif op.startswith('global_load'):
        I.kind = 'gld'; wr = R(0); rd = R(1)
    elif op == 's_getpc_b64':
        I.kind = 'pc'; wr = R(0)
    elif op in ('v_add_co_u32', 'v_addc_co_u32'):
        I.kind = 'valu'; wr = R(0) + R(1); rd = R(2) + R(3) + (R(4) if len(A) > 4 else [])
    elif op.startswith('s_load') or op in ('s_memtime', 's_memrealtime'):
        I.kind = 'smem'; wr = R(0); rd = R(1) if len(A) > 1 else []
    elif op.startswith('s_cmp') or op.startswith('s_bitcmp'):
        I.kind = 'salu'; rd = R(0) + R(1)
    elif op in ('s_waitcnt', 's_barrier', 's_nop', 's_endpgm', 's_branch', 's_setprio', 's_sleep', 'buffer_inv', 'buffer_wbl2') or op.startswith('s_cbranch'):
        I.kind = 'ctl'
    elif op in ('s_addk_i32',):
        I.kind = 'salu'; wr = R(0); rd = R(0)
    elif op.endswith('saveexec_b64'):
        I.kind = 'salu'; wr = R(0) + regs_of('exec'); rd = R(1) + regs_of('exec')
    elif op.startswith('s_'):
        I.kind = 'salu'; wr = R(0)
        for i in range(1, len(A)): rd += R(i)
    else:
        raise Exception('unknown op ' + I.text)
    I.rd = rd; I.wr = wr

def f2u(x): return int(np.float32(x).view(np.uint32))
INL = {'0.5': f2u(.5), '1.0': f2u(1), '2.0': f2u(2), '4.0': f2u(4), '-0.5': f2u(-.5), '-1.0': f2u(-1), '-2.0': f2u(-2), '-4.0': f2u(-4)}

class Err(Exception): pass

class Wave:
    def __init__(self, ins, labels, entry, wg, wave, arg_sizes, lds_size, policy=None, maxsteps=400000):
        self.ins = ins; self.labels = labels; self.pc = labels[entry]
        self.s = {}; self.v = {}
        self.s[0] = 0; self.s[1] = 0x7000; self.s[2] = wg
        self.s[126] = M32; self.s[127] = M32
        self.v[('v', 0)] = (np.arange(64, dtype=np.uint32) + 64 * wave)
        self.scc = None; self.wg = wg; self.wave = wave
        self.arg_sizes = arg_sizes; self.lds_size = lds_size
        self.policy = policy or {}
        self.errors = []; self.hist = []
        self.t = 0
        self.vm = []; self.lg = []
        self.epoch = 0; self.lds_ev = []; self.gl_ev = []
        self.src = {}
        self.maxsteps = maxsteps; self.nins = 0; self.counts = {}
        self.written = set([('s',0),('s',1),('s',2),('v',0),('s',126),('s',127)])
    def err(self, I, msg):
        e = f"wg{self.wg} w{self.wave} line {I.line}: {I.text} :: {msg}"
        if e not in self.errors: self.errors.append(e)
    def sval(self, tok):
        tok = tok.strip()
        r = regs_of(tok)
        if r and r[0][0] == 's': return self.s.get(r[0][1])
        if tok in INL: return INL[tok]
        try: return int(tok, 0) & M32
        except: return None
    def sval64(self, tok):
        r = regs_of(tok)
        if r:
            lo = self.s.get(r[0][1]); hi = self.s.get(r[1][1])
            if lo is None or hi is None: return None
            return lo | (hi << 32)
        try: return int(tok, 0) & 0xFFFFFFFFFFFFFFFF
        except: return None
    def vval(self, tok):
        r = regs_of(tok)
        if tok.startswith('-') and r: return None
        if r and r[0][0] in 'va': return self.v.get(r[0])
        x = self.sval(tok)
        return None if x is None else np.full(64, x, dtype=np.uint32)
    def hazards(self, I):
        rd = set(I.rd); wr = set(I.wr)
        for (P, tp) in reversed(self.hist):
            d = self.t - tp - 1
            if d >= 20: break
            pw = set(P.wr)
            need = 0; why = ''
            def req(n, w):
                nonlocal need, why
                if n > need: need = n; why = w
            pv = {x for x in pw if x[0] in 'va'}; ps = {x for x in pw if x[0] == 's'}
            if P.kind == 'valu':
                if I.kind == 'mfma' and pv & rd: req(2, 'valu->mfma')
                if P.op in TRANS and I.kind == 'valu' and I.op not in TRANS and pv & rd: req(1, 'trans->valu')
                if P.op in TRANS and I.kind in ('ds','vmem') and pv & rd: req(1, 'trans->mem(pad)')
                if I.op.startswith('v_permlane') and pv & rd: req(2, 'valu->permlane')
                if I.op == 'v_readfirstlane_b32' and pv & rd: req(1, 'valu->readfirstlane')
                if ps & rd:
                    if I.kind == 'valu': req(2, 'valu sgpr->valu')
                    if I.kind == 'vmem': req(5, 'valu sgpr->vmem')
                    if I.kind == 'mfma': req(4, 'valu sgpr->mfma')
                if any(k.startswith('row_') or k.startswith('quad_perm') for k in I.mods) and pv & rd: req(2, 'valu->dpp')
            if P.kind == 'mfma':
                np_ = 8 if '32x32' in P.op else 4
                T = {4: (6, 8, 3), 8: (10, 12, 7)}[np_]
                if I.kind == 'mfma':
                    c = regs_of(I.args[3]); ab = set(regs_of(I.args[1]) + regs_of(I.args[2]))
                    if pv & set(c):
                        if not (c == P.wr and (('32x32' in I.op) == ('32x32' in P.op))): req(T[0], 'mfma D->C overlap')
                    if pv & ab: req(T[1], 'mfma D->AB')
                    if pv & wr and not (c == P.wr): req(T[0], 'mfma D->D waw')
                elif I.kind == 'valu':
                    if pv & (rd | wr): req(T[1], 'mfma D->valu')
                    pc = set(regs_of(P.args[3]))
                    if pc & wr: req(T[2], 'mfma C war')
                elif I.kind in ('ds', 'vmem'):
                    if pv & (rd | wr): req(T[1], 'mfma D->mem')
            if P.kind == 'salu' and ('s', 124) in pw and I.kind == 'vmem' and 'lds' in I.mods: req(1, 'm0->dma')
            if P.kind in ('vmem',) and ('store' in P.op) and ('x4' in P.op or 'x3' in P.op):
                data = set(regs_of(P.args[0]))
                if data & wr: req(2 if I.kind in ('valu','mfma') else 1, 'store data war')
            if P.kind == 'ds' and P.op in ('ds_write_b128','ds_write_b96'):
                data = set(regs_of(P.args[1]))
                if data & wr and I.kind in ('valu','mfma'): req(2, 'ds_write data war(pad)')
            if d < need: self.err(I, f"hazard {why}: need {need} have {d} after line {P.line}: {P.text}")
    def check_pending(self, I):
        touched = set(I.rd) | set(I.wr)
        for q, nm in ((self.vm, 'vm'), (self.lg, 'lgkm')):
            for o in q:
                if o['regs'] & touched:
                    self.err(I, f"touches reg with pending {nm} load from line {o['line']}")
    def run(self):
        U = np.uint32
        while True:
            I = self.ins[self.pc]; self.pc += 1; self.nins += 1
            if self.nins > self.maxsteps: raise Err('too many steps')
            self.counts[I.kind] = self.counts.get(I.kind, 0) + 1
            op = I.op; A = I.args
            self.hazards(I); self.check_pending(I)
            for r in I.rd:
                if r not in self.written: self.err(I, f"reads never-written {r}")
            for r in I.rd:
                if r in self.src: self.src[r]['used'] = True
            for r in I.wr:
                self.written.add(r); self.src.pop(r, None)
            n_states = 1
            if op == 's_endpgm':
                for o in self.vm + self.lg:
                    if o.get('ev') is not None: o['ev']['done'] = (self.epoch, self.t)
                return
            elif op == 's_nop': n_states = int(A[0], 0) + 1
            elif op == 's_waitcnt':
                for q, key in ((self.vm, 'vmcnt'), (self.lg, 'lgkmcnt')):
                    if key in I.mods:
                        n = I.mods[key]
                        if key == 'lgkmcnt' and n > 0 and any(o.get('smem') for o in q): self.err(I, 'counted lgkm with smem pending')
                        while len(q) > n:
                            o = q.pop(0)
                            if o.get('ev') is not None: o['ev']['done'] = (self.epoch, self.t)
            elif op == 's_barrier': self.epoch += 1
            elif op == 's_branch': self.pc = self.labels[A[0]]
            elif op.startswith('s_cbranch'):
                c = op[10:]
                if c in ('scc0', 'scc1'):
                    if self.scc is None: raise Err(f'unknown scc at line {I.line}')
                    tk = self.scc == (c == 'scc1')
                elif c in ('execz', 'execnz'):
                    e = self.sval64('exec')
                    if e is None: tk = self.policy.get(A[0], False)
                    else: tk = (e == 0) == (c == 'execz')
                else:
                    e = self.sval64('vcc')
                    if e is None: tk = I.true or self.policy.get(A[0], False)
                    else: tk = (e == 0) == (c == 'vccz')
                if tk: self.pc = self.labels[A[0]]
            elif I.kind == 'smem':
                if op.startswith('s_load'):
                    n = len(I.wr); off = int(A[2], 0)
                    for j in range(n):
                        w = off // 4 + j
                        self.s[I.wr[j][1]] = 0 if w % 2 == 0 else (0x100 + w // 2)
                else:
                    for r in I.wr: self.s[r[1]] = None
                self.lg.append(dict(regs=set(I.wr), line=I.line, smem=True));
            elif I.kind == 'pc':
                for r in I.wr: self.s[r[1]] = None
            elif I.kind == 'gld':
                for r in I.wr: self.v[r] = None
                self.vm.append(dict(regs=set(I.wr), line=I.line, ev=None))
            elif I.kind == 'salu': self.salu(I)
            elif I.kind == 'valu': self.valu(I)
            elif I.kind == 'mfma':
                for r in I.wr: self.v[r] = None
            elif I.kind == 'ds':
                ev = None
                if op.startswith('ds_read') or op.startswith('ds_write'):
                    a = self.vval(A[1] if op.startswith('ds_read') else A[0])
                    sz = {'b128': 16, 'b64': 8, 'b32': 4, 'b16': 8}[op.split('_')[-1]]
                    if op == 'ds_read_b64_tr_b16': sz = 8
                    if a is None: self.err(I, 'unknown LDS address')
                    else:
                        a = a.astype(np.int64) + I.mods.get('offset', 0)
                        if a.max() + sz > self.lds_size: self.err(I, f'LDS OOB {a.max()}')
                        if (a % (16 if sz == 16 else sz)).any(): self.err(I, 'LDS misaligned')
                        ev = dict(w=self.wave, wr=op.startswith('ds_write'), a=a, sz=sz, lo=int(a.min()), hi=int(a.max()) + sz, iss=(self.epoch, self.t), done=None, line=I.line, op=op)
                        self.lds_ev.append(ev)
                        for r in I.wr: self.src[r] = ev
                for r in I.wr: self.v[r] = None
                self.lg.append(dict(regs=set(I.wr), line=I.line, ev=ev))
                if len(self.lg) > 15: pass
            elif I.kind == 'vmem':
                lds = 'lds' in I.mods
                vo, sr, so = (A[0], A[1], A[2]) if lds else (A[1], A[2], A[3])
                a = self.vval(vo); s0 = regs_of(sr)[0][1]
                srd = [self.s.get(s0 + j) for j in range(4)]
                sz = {'dwordx4': 16, 'dwordx2': 8, 'dword': 4, 'add': 4}[op.split('_')[-1]]
                sof = self.sval(so); ev = None
                if a is None or sof is None or None in srd: self.err(I, 'unknown global address')
                else:
                    g = a.astype(np.int64) + sof + I.mods.get('offset', 0)
                    arg = srd[1] - 0x100
                    ex = self.sval64('exec')
                    act = np.array([(ex >> l) & 1 for l in range(64)], dtype=bool) if ex is not None else np.ones(64, bool)
                    inb = (g + sz <= srd[2]) & act
                    if srd[0] + srd[2] > self.arg_sizes[arg]: self.err(I, f'SRD window exceeds buffer arg{arg}: {srd[0]:#x}+{srd[2]:#x}')
                    if (g % sz).any(): self.err(I, 'global misaligned')
                    self.gl_ev.append(dict(arg=arg, st='store' in op, a=(g + srd[0])[inb], sz=sz, line=I.line, oob=int((~inb & act).sum())))
                    if lds:
                        m0 = self.s.get(124)
                        if m0 is None: self.err(I, 'unknown m0')
                        else:
                            la = m0 + I.mods.get('offset', 0) + np.arange(64, dtype=np.int64) * sz
                            if la.max() + sz > self.lds_size: self.err(I, 'DMA LDS OOB')
                            ev = dict(w=self.wave, wr=True, a=la, sz=sz, lo=int(la.min()), hi=int(la.max()) + sz, iss=(self.epoch, self.t), done=None, line=I.line, op='dma')
                            self.lds_ev.append(ev)
                for r in I.wr: self.v[r] = None
                self.vm.append(dict(regs=set(I.wr), line=I.line, ev=ev))
                if len(self.vm) > 63: self.err(I, 'vmcnt overflow (>63 outstanding)')
            self.hist.append((I, self.t + n_states - 1 if op == 's_nop' else self.t))
            if len(self.hist) > 40: self.hist.pop(0)
            self.t += n_states
    def salu(self, I):
        op = I.op; A = I.args
        def setd(x, n=1):
            if n == 1: self.s[I.wr[0][1]] = None if x is None else x & M32
            else:
                self.s[I.wr[0][1]] = None if x is None else x & M32
                self.s[I.wr[1][1]] = None if x is None else (x >> 32) & M32
        if op.startswith('s_cmp') or op.startswith('s_bitcmp'):
            if op.endswith('u64'): a, b = self.sval64(A[0]), self.sval64(A[1])
            elif op.endswith('b64'): a, b = self.sval64(A[0]), self.sval(A[1])
            else: a, b = self.sval(A[0]), self.sval(A[1])
            if a is None or b is None: self.scc = True if I.true else None; return
            if op.startswith('s_bitcmp'): self.scc = bool((a >> b) & 1) == (op[8] == '1'); return
            c = op.split('_')[2]
            if op.endswith('i32'):
                a = a - (1 << 32) if a >> 31 else a; b = b - (1 << 32) if b >> 31 else b
            self.scc = {'eq': a == b, 'lg': a != b, 'lt': a < b, 'le': a <= b, 'gt': a > b, 'ge': a >= b}[c]; return
        if op in ('s_mov_b32', 's_movk_i32'): return setd(self.sval(A[1]))
        if op == 's_mov_b64': return setd(self.sval64(A[1]), 2)
        if op == 's_addk_i32':
            a = self.sval(A[0]); return setd(None if a is None else a + int(A[1], 0))
        if op == 's_and_saveexec_b64':
            e = self.sval64('exec'); m = self.sval64(A[1]); setd(e, 2)
            x = None if (e is None or m is None) else e & m
            self.s[126] = None if x is None else x & M32; self.s[127] = None if x is None else x >> 32
            self.scc = None if x is None else x != 0; return
        if op in ('s_or_b64', 's_and_b64', 's_andn2_b64'):
            a, b = self.sval64(A[1]), self.sval64(A[2])
            x = None if a is None or b is None else {'s_or_b64': a | b, 's_and_b64': a & b, 's_andn2_b64': a & ~b}[op]
            self.scc = None if x is None else x != 0
            return setd(x, 2)
        if op == 's_bfm_b64':
            a, b = self.sval(A[1]), self.sval(A[2])
            return setd(((1 << (a & 63)) - 1) << (b & 63), 2)
        if op == 's_cselect_b32':
            if self.scc is None: return setd(None)
            return setd(self.sval(A[1] if self.scc else A[2]))
        a, b = self.sval(A[1]), self.sval(A[2]) if len(A) > 2 else None
        if op == 's_addc_u32':
            if a is None or b is None or self.scc is None: self.scc = None; return setd(None)
            x = a + b + int(self.scc); self.scc = x > M32; return setd(x)
        if a is None or b is None:
            if op != 's_mul_i32': self.scc = None
            return setd(None)
        if op == 's_add_u32': x = a + b; self.scc = x > M32
        elif op == 's_sub_u32': x = a - b; self.scc = x < 0
        elif op == 's_add_i32': x = a + b; self.scc = None
        elif op == 's_sub_i32': x = a - b; self.scc = None
        elif op == 's_mul_i32': x = a * b
        elif op == 's_lshl_b32': x = (a << (b & 31)) & M32; self.scc = x != 0
        elif op == 's_lshr_b32': x = a >> (b & 31); self.scc = x != 0
        elif op == 's_and_b32': x = a & b; self.scc = x != 0
        elif op == 's_or_b32': x = a | b; self.scc = x != 0
        elif op == 's_xor_b32': x = a ^ b; self.scc = x != 0
        elif op == 's_min_u32': x = min(a, b); self.scc = a < b
        elif op == 's_max_u32': x = max(a, b); self.scc = a > b
        elif op == 's_lshl1_add_u32': x = (a << 1) + b; self.scc = None
        elif op == 's_lshl2_add_u32': x = (a << 2) + b; self.scc = None
        elif op == 's_bfe_u32': x = (a >> (b & 31)) & ((1 << ((b >> 16) & 127)) - 1); self.scc = x != 0
        else: raise Err('salu ' + I.text)
        setd(x)
    def valu(self, I):
        op = I.op; A = I.args; U = np.uint32
        if op == 'v_nop': return
        if op == 'v_readfirstlane_b32':
            x = self.vval(A[1]); self.s[I.wr[0][1]] = None if x is None else int(x[0]); return
        if op.startswith('v_cmp'):
            r = None
            if op.endswith('u32') or op.endswith('i32'):
                a, b = self.vval(A[1]), self.vval(A[2])
                if a is not None and b is not None:
                    if op.endswith('i32'): a = a.view(np.int32); b = b.view(np.int32)
                    c = op.split('_')[2]
                    m = {'eq': a == b, 'ne': a != b, 'lt': a < b, 'le': a <= b, 'gt': a > b, 'ge': a >= b}[c]
                    r = sum(1 << l for l in range(64) if m[l])
            self.s[I.wr[0][1]] = None if r is None else r & M32
            self.s[I.wr[1][1]] = None if r is None else r >> 32
            return
        x = None
        if op in ('v_add_co_u32', 'v_addc_co_u32'):
            self.v[I.wr[0]] = None; self.s[106] = None; self.s[107] = None; return
        src = [self.vval(t) for t in A[1:]]
        ok = all(t is not None for t in src)
        dpp = any(k.startswith('row_') or k.startswith('quad_perm') for k in I.mods)
        with np.errstate(over='ignore'):
            if not ok or dpp: x = None
            elif op in ('v_mov_b32', 'v_accvgpr_write_b32', 'v_accvgpr_read_b32'): x = src[0]
            elif op == 'v_add_u32': x = src[0] + src[1]
            elif op == 'v_sub_u32': x = src[0] - src[1]
            elif op == 'v_subrev_u32': x = src[1] - src[0]
            elif op == 'v_lshlrev_b32': x = src[1] << (src[0] & U(31))
            elif op == 'v_lshrrev_b32': x = src[1] >> (src[0] & U(31))
            elif op == 'v_and_b32': x = src[0] & src[1]
            elif op == 'v_or_b32': x = src[0] | src[1]
            elif op == 'v_xor_b32': x = src[0] ^ src[1]
            elif op == 'v_bfe_u32': x = (src[0] >> src[1]) & ((U(1) << src[2]) - U(1))
            elif op == 'v_lshl_add_u32': x = (src[0] << src[1]) + src[2]
            elif op == 'v_lshl_or_b32': x = (src[0] << src[1]) | src[2]
            elif op == 'v_and_or_b32': x = (src[0] & src[1]) | src[2]
            elif op == 'v_add_lshl_u32': x = (src[0] + src[1]) << src[2]
            elif op == 'v_add3_u32': x = src[0] + src[1] + src[2]
            elif op in ('v_mul_u32_u24', 'v_mul_lo_u32'): x = src[0] * src[1]
            elif op == 'v_mad_u32_u24': x = src[0] * src[1] + src[2]
            elif op == 'v_max_i32': x = np.maximum(src[0].view(np.int32), src[1].view(np.int32)).view(U)
        if op == 'v_cndmask_b32':
            m = self.sval64(A[3]); a, b = self.vval(A[1]), self.vval(A[2])
            x = None
            if m is not None and a is not None and b is not None:
                mm = np.array([(m >> l) & 1 for l in range(64)], dtype=bool); x = np.where(mm, b, a).astype(U)
        ex = self.sval64('exec')
        for r in I.wr:
            if r[0] in 'va':
                if x is not None and len(I.wr) == 1 and ex == 0xFFFFFFFFFFFFFFFF: self.v[r] = x.astype(U)
                else: self.v[r] = None

def lds_races(waves):
    errs = []
    evs = [e for w in waves for e in w.lds_ev]
    wrs = [e for e in evs if e['wr']]
    wrs.sort(key=lambda e: e['lo'])
    def overlap(a, b):
        if a['hi'] <= b['lo'] or b['hi'] <= a['lo']: return False
        sa = set((a['a'][:, None] // 4 + np.arange(a['sz'] // 4)[None]).ravel().tolist())
        sb = set((b['a'][:, None] // 4 + np.arange(b['sz'] // 4)[None]).ravel().tolist())
        return bool(sa & sb)
    from collections import defaultdict
    bk = defaultdict(list)
    for e in wrs:
        for b in range(e['lo'] // 1024, (e['hi'] - 1) // 1024 + 1): bk[b].append(e)
    seen = set()
    for e in evs:
        if not e['wr'] and not e.get('used'): continue
        cands = {}
        for b in range(e['lo'] // 1024, (e['hi'] - 1) // 1024 + 1):
            for w in bk[b]: cands[id(w)] = w
        for w in cands.values():
            if w is e: continue
            if w['w'] == e['w']:
                a, b = (w, e) if w['iss'][1] < e['iss'][1] else (e, w)
                if a['op'] != 'dma' and b['op'] != 'dma': continue
                if a['op'] == 'dma' and b['op'] == 'dma': continue
                ok = a['done'] is not None and a['done'][1] < b['iss'][1]
            else:
                ok = (w['done'][0] < e['iss'][0]) or (e['done'][0] < w['iss'][0])
            if not ok:
                key = (w['line'], e['line'])
                if key in seen: continue
                if overlap(w, e):
                    seen.add(key)
                    errs.append(f"LDS race: wave{w['w']} line {w['line']} iss{w['iss']} done{w['done']} [{w['lo']},{w['hi']}) vs wave{e['w']} line {e['line']} iss{e['iss']} done{e['done']} [{e['lo']},{e['hi']})")
    return errs

def bank_conflicts(waves):
    G128 = [list(range(0,4))+list(range(12,16))+list(range(20,28)), list(range(4,12))+list(range(16,20))+list(range(28,32))]
    G128 += [[x+32 for x in g] for g in G128]
    out = {}
    for w in waves:
        for e in w.lds_ev:
            if e['op'] == 'ds_read_b128': groups = G128; nb = 64
            elif e['op'] in ('ds_read_b64_tr_b16', 'ds_read_b64'): groups = [list(range(32)), list(range(32, 64))]; nb = 64
            elif e['op'] == 'ds_write_b128': groups = [list(range(8*i, 8*i+8)) for i in range(8)]; nb = 32
            else: continue
            worst = 1
            for g in groups:
                cnt = {}
                for l in g:
                    for j in range(e['sz'] // 4):
                        d = int(e['a'][l]) // 4 + j
                        cnt.setdefault(d % nb, set()).add(d)
                worst = max(worst, max(len(x) for x in cnt.values()))
            if worst > 1: out[e['line']] = max(out.get(e['line'], 1), worst)
    return out

ARGS = [2<<20, 1536*1024, 512*1024, 2<<20, 2<<20, 4<<20, 4<<20, 4<<20, 4<<20, 4<<20, 256, 256<<20]

def check_wg(ins, labels, entry, wg, nw, lds, policy=None, verbose=False):
    ws = []
    for w in range(nw):
        W = Wave(ins, labels, entry, wg, w, ARGS, lds, policy); W.run(); ws.append(W)
    errs = [e for W in ws for e in W.errors] + lds_races(ws)
    bc = bank_conflicts(ws)
    if bc: errs.append(f"bank conflicts (line:way): {bc}")
    if verbose:
        print(f"wg{wg}: epochs {[W.epoch for W in ws]} nins {[W.nins for W in ws]} counts {ws[0].counts} oob {[sum(e['oob'] for e in W.gl_ev) for W in ws]}")
    return ws, errs
```

```python
import sys
import common
from common import *
NAME = "concat_heads__sliding_local_dilated__compressed_kv_cla__prompt"
KN = NAME + "_kernel"
def build():
    import eng, att, op
    o = Out()
    hdr = open(f"cdna_kernels/{NAME}.s.ref").read().split('\n')
    o.l += [l for l in hdr if l.startswith(';') and '@launch' not in l]
    o("; @launch grid=(256,1,1) block=(256,1,1) lds=163840")
    o('.amdgcn_target "amdgcn-amd-amdhsa--gfx950"\n.text')
    o(head(KN))
    r = ["s_cmp_ge_u32 s2, 256", "s_cbranch_scc1 L_end", "s_load_dwordx16 s[56:71], s[0:1], 0", "s_load_dwordx8 s[72:79], s[0:1], 64"] + stamp_init()
    r += f"""v_lshrrev_b32 v1, 6, v0
    s_and_b32 s{S_X}, s2, 7
    v_readfirstlane_b32 s{S_W}, v1
    s_lshr_b32 s{S_I}, s2, 3
    s_and_b32 s{S_H}, s{S_I}, 3
    s_lshl2_add_u32 s{S_H}, s{S_X}, s{S_H}
    s_lshr_b32 s{S_I}, s{S_I}, 2""".split('\n')
    if not opt('NOCPF'):
        r += ["s_getpc_b64 s[100:101]", "L_pc:", "s_lshr_b32 s3, s2, 3", f"s_lshl2_add_u32 s3, s3, s{S_W}", "s_lshl_b32 s3, s3, 9", "v_and_b32 v4, 3, v0", "v_lshlrev_b32 v4, 7, v4",
              "v_add_u32 v4, s3, v4", "v_min_u32 v4, CODE_LEN, v4", "v_mov_b32 v5, s101", "v_add_co_u32 v4, vcc, s100, v4", "s_nop 1", "v_addc_co_u32 v5, vcc, 0, v5, vcc",
              "s_mov_b64 exec, 15", "global_load_dword v13, v[4:5], off", "s_mov_b64 exec, -1"]
    hooks = {('wait', 49): ['STV', 'STK'], ('wait', 45): ['NON']}
    J = '\n'.join
    hooks[('misc', 40)] = [(2, J(["v_mov_b32 v15, 0", f"buffer_load_dword v14, v15, {sr(R_X)}, 0 offen sc1 ; @NON"]))]
    hooks[('misc', 45)] = [(30, J(poll_check(14, 100, R_X, "v_cmp_eq_u32 vcc, 0, v14") + [f"v_readfirstlane_b32 s{S_NON}, v14"]))]
    hooks[('misc', 49)] = [(3, J(signal('KV', 124)))]
    hooks[('misc', 50)] = [(1, x) for x in reversed(att.early_setup()[:6])] + [(3, att.early_setup()[6])]
    hooks[('misc', 52)] = [(3, J(poll_issue('KV', 14, 'PKV')))]
    hooks[('wait', 56)] = ['PKV']
    hooks[('misc', 56)] = [(3, J(poll_check(14, 100))), (10, J(op.relayout_stores()))]
    hooks[('misc', 48)] = [(1, J(op.relayout_loads()))]
    hooks[('wait', 55)] = ['WO']
    hooks[('misc', 55)] = [(1, J(op.relayout_reads()))]
    for k, x in enumerate(eng.a_masks()): hooks[('misc', 57 + k)] = [(1, x)]
    for c in range(3): hooks[('dma', 57 + 2 * c)] = att.chunk_dma(c)
    r += eng.engine(hooks) + stamp('eng')
    stop = opt('STOP')
    r += ["s_barrier"] + att.chunks(3, 5) + att.prologue1() + stamp('j1')
    r += eng.a_attention() + stamp('aa') + att.chunks(5, 7) + ["@wait C1", "s_barrier"] + stamp('c1') + att.prologue2() + ["@wait STO"] + stamp('att')
    r += att.main_loop(signal('OA', 116) + signal('WO', 116) + signal('WA', 116, [f"s_and_b32 s100, s{S_H}, 7", "s_cmp_lg_u32 s100, 0"]), op.polls())
    r += stamp('epi') + op.pre_join() + ["@wait CST"] + stamp('vm0') + ["s_barrier"] + signal('CTX', 20) + stamp('op0')
    r += op.outproj()
    r += stamp_end(0)
    lines = []
    for x in r: lines += [y.strip() for y in x.split('\n')]
    lines = VmQ().scan(lines)
    import align
    clen = sum(align.size(x.replace('CODE_LEN', '1000')) for x in lines) - 256
    o.ext([x.replace('CODE_LEN', str(clen)) for x in lines])
    o("L_end:\ns_endpgm")
    o(kd(KN, 512, 256))
    return o.text()
if __name__ == '__main__':
    common.INSTR = len(sys.argv) > 2 and sys.argv[2] == 'instr'
    t = build()
    open(sys.argv[1], 'w').write(t)
    import sim
    ins, labels = sim.parse(t)
    bad = 0
    for wg in ([0, 37, 131, 255] if not opt('QUICK') else [0]):
        ws, errs = sim.check_wg(ins, labels, KN, wg, 4, 163840, verbose=True)
        for e in errs[:12]: print("  ERR", e)
        bad += len(errs)
    print("errors:", bad)
```

```python
from common import *
from eng import QF, V_L16, ST
A_, B_, C_, D_ = 0, 1, 2, 3
def Q(b, s): return ar(QF(b, s))
def K(t, s): return ar((t * 4 + s) * 4)
def V(dt): return ar(32 + dt * 4)
def S(b, t): return 16 + b * 8 + t * 4
V_E = 48
def P(b): return 64 + b * 4
def CI(b, t): return 80 + b * 8 + t * 4
V_M = 112; V_T = 116; V_L = 124
def O(b, dt): return 128 + b * 32 + dt * 4
V_DMA = 13; V_RA = 14; V_THR = 15
S_N = 64; S_US = 65; S_UL = 66; S_USM = 67; S_ULM = 68; S_RA = 69; S_SOFF = 55; S_BM = 56
S_T = 62; S_CL = 70; S_CS = 71; S_FL = 58
R_KV = R_A1

def exps(b, e0): return [f"v_exp_f32 v{e0+i}, v{S(b,0)+i}" for i in range(8)]
def cvts(b, e0): return [f"v_cvt_pk_bf16_f32 v{P(b)+i}, v{e0+2*i}, v{e0+2*i+1}" for i in range(4)]
V_L2 = 120
def adds(b, e0):
    if opt('X_NOADD'): return []
    if opt('X_ACC2'): return [f"v_add_f32 v{(V_L2 if i & 1 else V_L)+b}, v{(V_L2 if i & 1 else V_L)+b}, v{e0+i}" for i in range(8)]
    return [f"v_add_f32 v{V_L+b}, v{V_L+b}, v{e0+i}" for i in range(8)]
def qk(b, first=False):
    return [mfma(vr(S(b, t)), K(t, s), Q(b, s), ('0' if first else vr(CI(b, t))) if s == 0 else vr(S(b, t))) for t in range(2) for s in range(4)]
def pv(b): return [mfma(vr(O(b, dt)), V(dt), vr(P(b)), vr(O(b, dt))) for dt in range(8)]
def vreads(): return [f"ds_read_b128 {V(dt)}, v{V_RA} offset:{8192 + dt*1024}" for dt in range(8)]
def kreads(): return [f"ds_read_b128 {K(i>>2, i&3)}, v{V_RA} offset:{i*1024}" for i in range(8)]
def dmas(tag='KV'): return [f"buffer_load_dwordx4 v{V_L16}, {sr(R_KV)}, s{S_SOFF} offen offset:{j*1024} {opt('LD_POL','sc1')} lds ; @{tag}" for j in range(4)]
uid = [0]
def barblk(mode, vm=8, lg=0):
    if mode == 'odd': return [f"s_waitcnt lgkmcnt({lg})"] if lg == 0 else []
    if mode == 'even': return [f"s_waitcnt vmcnt({vm}) lgkmcnt({lg})", "s_barrier"]
    uid[0] += 1; l = f"AT_nb{uid[0]}"
    return [f"s_waitcnt lgkmcnt({lg})", *barbit(), f"s_cbranch_scc0 {l}", f"s_waitcnt vmcnt({vm})", "s_barrier", f"{l}:"]
S_DM = 72; S_DX = 73
V_XC = 12
UPD = [f"s_add_u32 s{S_SOFF}, s{S_SOFF}, 16384", f"s_and_b32 s{S_DM}, s{S_SOFF}, 0x1ffff", f"s_cmp_lt_u32 s{S_SOFF}, s{R_KV+2}", f"s_cselect_b32 m0, s{S_DM}, s{S_DX}"]
RADDR = f"v_xor_b32 v{V_RA}, s{S_DM}, v{V_XC}"
def barbit(): return [f"s_lshr_b32 s{S_N}, s{S_SOFF}, 14", f"s_sub_u32 s{S_N}, s{S_N}, 6", f"s_bitcmp1_b64 s[{S_BM}:{S_BM+1}], s{S_N}"]

def spread(g, lst, gaps):
    gaps = list(gaps)
    assert len(lst) <= len(gaps), (len(lst), len(gaps))
    for x, gp in zip(lst, gaps): g.put(gp, x)

V_EB = 8
def ex(b, t, e): return [f"v_exp_f32 v{e+i}, v{S(b,t)+i}" for i in range(4)]
def cv(b, t, e): return [f"v_cvt_pk_bf16_f32 v{P(b)+2*t+i}, v{e+2*i}, v{e+2*i+1}" for i in range(2)]
def ad(b, e, n=4): return [] if opt('X_NOADD') else [f"v_add_f32 v{V_L+b}, v{V_L+b}, v{e+i}" for i in range(n)]

def place(g, items, cap):
    used = {k: 0 for k in cap}
    for x, lo, hi in items:
        win = [k for k in cap if lo <= k <= hi]
        free = [k for k in win if used[k] < cap[k]]
        k = free[0] if free else min(win, key=lambda q: (used[q] - cap[q], q))
        used[k] += 1; g.put(k, x)

ONES = ar(128)
def LM(b): return 132 + 4 * b
def msum(b): return mfma(ar(LM(b)), ONES, vr(P(b)), ar(LM(b)))
def MS(): return {'abcd'.index(c) for c in opt('MSUM', 'ab')}

def period(typ, mode, extra=()):
    E0, E1, EB = V_E, V_E + 8, V_EB
    ms = MS()
    dm = dmas(); kr = kreads(); vr_ = vreads()
    W = lambda lst, lo, hi: [(x, lo, hi) for x in lst]
    AD = lambda b, e, lo, hi, n=4: [] if b in ms else W(ad(b, e, n), lo, hi)
    if typ == 'F':
        g = Gaps(pv(A_) + ([msum(A_)] if A_ in ms else []) + pv(B_) + ([msum(B_)] if B_ in ms else []))
        g.put(-1, *vr_[4:]); g.put(-1, *ex(B_, 1, E0 + 4)); g.put(-1, *barblk(mode, 0))
        for i, (sal, x) in enumerate(extra):
            for k, y in enumerate(sal): g.put(i - 1, y)
            g.put(i, x)
        spread(g, cv(B_, 0, EB) + cv(B_, 1, E0 + 4) + ([] if B_ in ms else ad(B_, EB) + ad(B_, E0 + 4)), range(12))
        return g.lines()
    if typ == 'D':
        order = [A_, C_, B_, D_]; nq = 32; kb = 24
        g = Gaps(qk(A_) + qk(C_) + qk(B_) + qk(D_) + pv(A_) + pv(C_) + pv(B_) + pv(D_))
        e = ex(B_, 1, E0 + 4) + ex(D_, 0, E1) + ex(D_, 1, E1 + 4) + ex(A_, 0, E0) + ex(A_, 1, E0 + 4) + ex(C_, 0, E1) + ex(C_, 1, E1 + 4) + ex(B_, 0, EB)
        dg = [43, 51, 41, 49]
        it = W(cv(B_, 0, EB), 1, 23) + AD(B_, EB, 1, 23) + W(cv(B_, 1, E0 + 4), 9, 23) + AD(B_, E0 + 4, 9, 23) + AD(D_, E1, 15, 39) + W(cv(D_, 0, E1), 15, 39)
        it += W(cv(D_, 1, E1 + 4), 23, 39) + AD(D_, E1 + 4, 23, 39) + AD(A_, E0, 31, 63) + W(cv(A_, 0, E0) + cv(A_, 1, E0 + 4), 41, 63) + AD(A_, E0 + 4, 39, 63)
        it += AD(C_, E1, 47, 63) + W(cv(C_, 0, E1), 49, 63) + W(cv(C_, 1, E1 + 4), 55, 63) + AD(C_, E1 + 4, 55, 63)
        lp = 'AT_D'; lim = S_USM
    elif typ == 'S':
        order = [A_, B_]; nq = 16; kb = 8
        g = Gaps(qk(A_) + qk(B_) + pv(A_) + pv(B_))
        e = ex(B_, 1, E0 + 4) + ex(A_, 0, E1) + ex(A_, 1, E1 + 4) + ex(B_, 0, EB)
        dg = eval(opt('SDG', '[15, 19, 27, 13]'))
        it = W(cv(B_, 0, EB), 1, 21) + AD(B_, EB, 1, 21) + W(cv(B_, 1, E0 + 4), 5, 21)[:1] + W(cv(B_, 1, E0 + 4), 7, 21)[1:] + AD(B_, E0 + 4, 7, 31) + AD(A_, E1, 15, 31)
        it += W(cv(A_, 0, E1) + cv(A_, 1, E1 + 4), 25, 31) + AD(A_, E1 + 4, 23, 31)
        lp = 'AT_S'; lim = S_ULM
    else:
        order = [A_, C_, B_, D_]; nq = 16; kb = 8
        g = Gaps(qk(A_) + qk(B_) + pv(A_) + pv(C_) + pv(B_) + pv(D_))
        e = ex(B_, 1, E0 + 4) + ex(D_, 0, E1) + ex(D_, 1, E1 + 4) + ex(A_, 0, E0) + ex(A_, 1, E0 + 4) + ex(B_, 0, EB)
        dg = [27, 35, 25, 33]
        it = W(cv(B_, 0, EB), 1, 23) + AD(B_, EB, 1, 23) + W(cv(B_, 1, E0 + 4), 7, 23) + AD(B_, E0 + 4, 7, 23) + W(cv(D_, 0, E1), 15, 37) + W(cv(D_, 1, E1 + 4), 23, 37)
        it += AD(D_, E1, 23, 47, 8) + W(cv(A_, 0, E0), 31, 47) + AD(A_, E0, 31, 47) + W(cv(A_, 1, E0 + 4), 39, 47) + AD(A_, E0 + 4, 39, 47)
    n = len(g.mf)
    g.put(-1, "s_waitcnt lgkmcnt(4)")
    spread(g, e, range(0, n, 2))
    ds = list(zip(vr_[4:], (1, 3, 5, 7))) + list(zip(kr, range(kb + 1, kb + 17, 2))) + list(zip(vr_[:4], range(n - 7, n, 2)))
    for x, gp in ds: g.put(gp, x)
    g.put(7, RADDR)
    sums = [(nq + 8 * k + 7, b) for k, b in enumerate(order) if b in ms]
    tail = [z for z in sums if z[0] == n - 1 and not opt('TAILDMA')]
    sums = [z for z in sums if z not in tail]
    dg = sorted(dg[:4 - min(len(sums), 4)])
    cap = {k: 2 for k in range(1, n, 2)}
    for _, gp in ds: cap[gp] -= 1
    for gp in dg: cap[gp] -= 1
    cap[7] -= 1
    ev = sorted([(gp, None) for gp in dg] + sums, key=lambda z: z[0])
    late = []
    for (gp, b), x in zip(ev, dm):
        if b is None: g.put(gp, x)
        else: late.append((gp, [msum(b), x]))
    place(g, it, cap)
    for gp, x in late: g.put(gp, *x)
    for gp, b in tail: g.put(gp, msum(b))
    g.front(kb, *barblk(mode, lg=0 if typ == 'D' else 4))
    for i, x in enumerate(UPD): g.front(kb + 1 + i, x)
    if typ != 'D': g.front(15, "s_waitcnt lgkmcnt(3)")
    if typ == 'T': return g.lines()
    g.front(kb + 6, f"s_cmp_lt_u32 s{S_SOFF}, s{lim}")
    if mode == 'even': g.put(n - 1, f"s_cbranch_scc0 {lp}x")
    else: g.put(n - 1, f"s_cbranch_scc1 {lp}e")
    return g.lines()

def epilogue():
    ms = MS(); r = []
    vb = [b for b in range(4) if b not in ms]
    for sw in ('32', '16'):
        if not vb: break
        r += [f"v_mov_b32 v{V_T+b}, v{V_L+b}" for b in vb] + ["s_nop 1"]
        r += [f"v_permlane{sw}_swap_b32 v{V_L+b}, v{V_T+b}" for b in vb]
        r += [f"v_add_f32 v{V_L+b}, v{V_L+b}, v{V_T+b}" for b in vb]
    r += [f"v_accvgpr_read_b32 v{V_L+b}, a{LM(b)}" for b in sorted(ms)]
    for b in (C_, D_, A_, B_):
        fl = S_FL + (2 if b >= 2 else 0)
        r += [f"v_cmp_nle_f32 vcc, v{V_L+b}, v{V_THR}", f"v_rcp_f32 v{V_E+2*b}, v{V_L+b}", f"s_or_b64 s[{fl}:{fl+1}], s[{fl}:{fl+1}], vcc"]
    for b in (C_, D_, A_, B_):
        sc = S_CS if b >= 2 else S_CL
        if b & 1: r.append(f"s_add_u32 s{S_T}, s{sc}, 131072")
        r += norm_store(b, S_T if b & 1 else sc, 'CST')
    r += [f"s_or_b64 vcc, s[{S_FL}:{S_FL+1}], s[{S_FL+2}:{S_FL+3}]", "s_cbranch_vccnz AT_fb", "AT_fbx:"]
    return r

def norm_store(b, so, tag):
    r = []
    for s in range(4):
        base = O(b, 2 * s)
        r += [f"v_pk_mul_f32 {vr(base+2*i, 2)}, {vr(base+2*i, 2)}, {vr(V_E+2*b, 2)} op_sel_hi:[1,0]" for i in range(4)]
        r += [f"v_cvt_pk_bf16_f32 v{base+i}, v{base+2*i}, v{base+2*i+1}" for i in range(4)]
        r.append(f"buffer_store_dwordx4 {vr(base)}, v{V_L16}, {sr(R_WS)}, s{so} offen offset:{s*1024} {ST} ; @{tag}")
    return r

def fallback():
    S_U = S_N; S_K = S_RA; S_LIM = S_USM; S_DST = S_ULM
    M = V_T; AL = V_T + 2; TM = CI(0, 0)
    r = ["AT_fb:", "s_waitcnt vmcnt(0) lgkmcnt(0)", f"s_cmp_eq_u64 s[{S_FL}:{S_FL+1}], 0 ; @fb", "s_cbranch_scc1 AT_fb2",
         f"s_mov_b64 s[{S_FL}:{S_FL+1}], 0", f"s_mov_b32 s{S_LIM}, s{S_UL}", f"s_mov_b32 s{S_DST}, s{S_CL}", "s_branch AT_fbgo",
         "AT_fb2:", f"s_cmp_eq_u64 s[{S_FL+2}:{S_FL+3}], 0 ; @fb2", "s_cbranch_scc1 AT_fbx",
         f"s_mov_b64 s[{S_FL+2}:{S_FL+3}], 0", f"s_mov_b32 s{S_LIM}, s{S_US}", f"s_mov_b32 s{S_DST}, s{S_CS}"]
    r += [f"v_accvgpr_mov_b32 a{QF(0,0)+i}, a{QF(2,0)+i}" for i in range(32)]
    r += ["AT_fbgo:", f"s_lshr_b32 s{S_LIM}, s{S_LIM}, 14", f"s_sub_u32 s{S_LIM}, s{S_LIM}, 6", f"s_mov_b32 s{S_U}, 0", f"s_mov_b32 s{S_K}, 0"]
    r += [f"v_mov_b32 v{O(0,0)+i}, 0" for i in range(64)]
    r += [f"v_mov_b32 v{M+b}, {NEG_BIG:#x}" for b in range(2)] + [f"v_mov_b32 v{V_L+b}, 0" for b in range(2)]
    r += ["AT_fbl:"]
    for i in range(16):
        if i % 4 == 0: r.append(f"s_add_u32 s{S_T}, s{S_K}, {i * 1024 + (16384 if i >= 8 else 0)}")
        r.append(f"buffer_load_dwordx4 {ar(i * 4)}, v{V_L16}, {sr(R_KV)}, s{S_T} offen offset:{(i & 3) * 1024} sc1 ; @skip")
    r += ["s_waitcnt vmcnt(0)"] + qk(A_, 1) + qk(B_, 1) + ["s_nop 7", f"s_cmp_lg_u32 s{S_U}, s{S_LIM}", "s_cbranch_scc1 AT_fbn"] + maskblk(A_, S) + ["AT_fbn:"]
    for b in range(2):
        s0 = S(b, 0); t = TM + b
        r += [f"v_max3_f32 v{t}, v{s0}, v{s0+1}, v{s0+2}", f"v_max3_f32 v{t}, v{t}, v{s0+3}, v{s0+4}", f"v_max3_f32 v{t}, v{t}, v{s0+5}, v{s0+6}",
              f"v_max3_f32 v{t}, v{t}, v{s0+7}, v{M+b}"]
    for sw in ('32', '16'):
        r += [f"v_mov_b32 v{TM+2+b}, v{TM+b}" for b in range(2)] + ["s_nop 1"]
        r += [f"v_permlane{sw}_swap_b32 v{TM+b}, v{TM+2+b}" for b in range(2)]
        r += [f"v_max_f32 v{TM+b}, v{TM+b}, v{TM+2+b}" for b in range(2)]
    for b in range(2):
        r += [f"v_sub_f32 v{AL+b}, v{M+b}, v{TM+b}", f"v_exp_f32 v{AL+b}, v{AL+b}", f"v_mov_b32 v{M+b}, v{TM+b}"]
        r += [f"v_sub_f32 v{S(b,0)+i}, v{S(b,0)+i}, v{M+b}" for i in range(8)] + exps(b, V_E + 8 * b)
        r += [f"v_mul_f32 v{V_L+b}, v{V_L+b}, v{AL+b}"] + [f"v_mul_f32 v{O(b,0)+i}, v{O(b,0)+i}, v{AL+b}" for i in range(32)]
        r += cvts(b, V_E + 8 * b) + [f"v_add_f32 v{V_L+b}, v{V_L+b}, v{V_E+8*b+i}" for i in range(8)]
    r += ["s_nop 1"] + pv(A_) + pv(B_)
    r += [f"s_add_u32 s{S_K}, s{S_K}, 16384", f"s_add_u32 s{S_U}, s{S_U}, 1", f"s_cmp_le_u32 s{S_U}, s{S_LIM}", "s_cbranch_scc1 AT_fbl"]
    for sw in ('32', '16'):
        r += [f"v_mov_b32 v{TM+b}, v{V_L+b}" for b in range(2)] + ["s_nop 1"]
        r += [f"v_permlane{sw}_swap_b32 v{V_L+b}, v{TM+b}" for b in range(2)]
        r += [f"v_add_f32 v{V_L+b}, v{V_L+b}, v{TM+b}" for b in range(2)]
    r += [f"v_rcp_f32 v{V_E+2*b}, v{V_L+b}" for b in range(2)] + [f"s_add_u32 s{S_T}, s{S_DST}, 131072"]
    for b in range(2): r += norm_store(b, S_T if b else S_DST, 'skip')
    return r + ["s_branch AT_fb"]

def maskblk(b0, CI=CI):
    r = []
    for i in range(4):
        r += [f"v_min_f32 v{CI(b0,0)+i}, v{CI(b0,0)+i}, v{V_M+i}", f"v_mov_b32 v{CI(b0,1)+i}, {NEG_BIG:#x}",
              f"v_min_f32 v{CI(b0+1,1)+i}, v{CI(b0+1,1)+i}, v{V_M+i}"]
    return r

def early_setup():
    return [f"s_mul_i32 s{S_SOFF}, s{S_H}, {HS}", f"s_add_u32 s{R_KV}, s{P_WS}, s{S_SOFF}", f"s_addc_u32 s{R_KV+1}, s{P_WS+1}, 0",
            f"s_lshl_b32 s{S_SOFF}, s{S_I}, 16", f"s_sub_u32 s{R_KV+2}, {HS}, s{S_SOFF}", f"s_lshl_b32 s0, s{S_W}, 12",
            f"v_add_u32 v{V_DMA}, s0, v{V_L16}"]
def chunk_dma(c):
    d = dmas(f"C{c}")
    return [([f"s_add_u32 s{S_SOFF}, s0, {c*16384}", f"s_add_u32 m0, s0, {c*16384}"], d[0])] + [([], x) for x in d[1:]]

def chunks(c0, c1):
    r = []
    for c in range(c0, c1):
        for sal, x in chunk_dma(c): r += sal + (["s_nop 0"] if sal else []) + [x]
    return r
def prologue1():
    r = f"""
    s_lshl_b32 s{S_T}, s{S_I}, 2
    s_add_u32 s{S_US}, s{S_T}, s{S_W}
    s_sub_u32 s{S_UL}, s{S_W}, s{S_T}
    s_add_u32 s{S_UL}, s{S_UL}, 60
    s_sub_u32 s{S_T}, 61, s{S_T}
    s_bfm_b64 s[{S_BM}:{S_BM+1}], s{S_T}, 0
    s_and_b32 s{S_BM}, s{S_BM}, 0x55555555
    s_and_b32 s{S_BM+1}, s{S_BM+1}, 0x55555555
    s_lshl_b32 s{S_T}, s{S_H}, 12
    s_add_u32 s{S_T}, s{S_T}, {WS_C}
    s_lshl_b32 s{S_CL}, s{S_UL}, 18
    s_add_u32 s{S_CL}, s{S_CL}, s{S_T}
    s_lshl_b32 s{S_CS}, s{S_US}, 18
    s_add_u32 s{S_CS}, s{S_CS}, s{S_T}
    s_mov_b64 s[{S_FL}:{S_FL+1}], 0
    s_mov_b64 s[{S_FL+2}:{S_FL+3}], 0
    s_add_u32 s{S_DM}, s0, {6*16384}
    s_lshl_b32 s{S_US}, s{S_US}, 14
    s_add_u32 s{S_US}, s{S_US}, s{S_DM}
    s_lshl_b32 s{S_UL}, s{S_UL}, 14
    s_add_u32 s{S_UL}, s{S_UL}, s{S_DM}
    s_sub_u32 s{S_USM}, s{S_US}, 16384
    s_sub_u32 s{S_ULM}, s{S_UL}, 16384
    s_add_u32 s{S_DX}, s0, {9*16384}""".split('\n')
    return [x.strip() for x in r if x.strip()]

def k0reads(): return [x.replace(f"v{V_RA} ", f"v{V_L16} ") for x in kreads()]
def prologue2(sal):
    r = [f"v_add_u32 v{V_RA}, 16384, v{V_L16}", "s_waitcnt lgkmcnt(0)"]
    va = f"""v_mov_b32 v{V_THR}, {f2u(2.0**32):#x}
    v_xor_b32 v{V_XC}, 0x10000, v{V_DMA}
    v_and_b32 v7, 15, v1
    v_lshrrev_b32 v8, 4, v1
    v_lshlrev_b32 v8, 2, v8
    v_mov_b32 v9, 0x7f7fffff
    v_mov_b32 v10, {NEG_BIG:#x}""".split('\n')
    for i in range(4):
        va += [f"v_add_u32 v11, {i}, v8", "v_cmp_gt_u32 vcc, v11, v7", f"v_mov_b32 v{V_L+i}, 0\ns_nop 0", f"v_cndmask_b32 v{V_M+i}, v9, v10, vcc"]
    va += ["v_mov_b32 v11, 0x3f803f80"]
    va2 = [f"v_accvgpr_write_b32 a{128+i}, v11" for i in range(4)] + [f"v_accvgpr_write_b32 a{LM(0)+i}, 0" for i in range(16)]
    g = Gaps(qk(C_, 1) + qk(D_, 1) + qk(A_, 1) + qk(B_, 1))
    for i, x in enumerate(va): g.put(i, x)
    for i, x in enumerate(va2): g.put(23 + i // 3, x)
    for i, x in enumerate(kreads()): g.front(24 + i, x)
    per = -(-len(sal) // 32)
    for i in range(32): g.front(i, *sal[i * per:(i + 1) * per])
    r += g.lines() + vreads()[:4] + stamp('qk0')
    r += [f"s_cmp_lg_u32 s{S_US}, s{S_SOFF}", "s_cbranch_scc1 AT_nm0"] + maskblk(C_, S) + ["AT_nm0:"]
    for b in (C_, D_, A_, B_):
        s0 = S(b, 0); t = V_T + b; u = V_E + b
        r += [f"v_max3_f32 v{t}, v{s0}, v{s0+1}, v{s0+2}", f"v_max3_f32 v{t}, v{t}, v{s0+3}, v{s0+4}",
              f"v_max3_f32 v{t}, v{t}, v{s0+5}, v{s0+6}", f"v_max_f32 v{t}, v{t}, v{s0+7}", f"v_mov_b32 v{u}, v{t}"]
    r.append("s_nop 1")
    r += [f"v_permlane32_swap_b32 v{V_T+b}, v{V_E+b}" for b in range(4)]
    for b in range(4): r += [f"v_max_f32 v{V_T+b}, v{V_T+b}, v{V_E+b}", f"v_mov_b32 v{V_E+b}, v{V_T+b}"]
    r.append("s_nop 1")
    r += [f"v_permlane16_swap_b32 v{V_T+b}, v{V_E+b}" for b in range(4)]
    r += [f"v_max_f32 v{V_T+b}, v{V_T+b}, v{V_E+b}" for b in range(4)]
    for b in (A_, C_, B_, D_): r += [f"v_sub_f32 v{S(b,0)+i}, v{S(b,0)+i}, v{V_T+b}" for i in range(8)]
    r += exps(A_, V_E) + exps(C_, V_E + 8) + ex(B_, 0, V_EB)
    for b in range(4): r += [f"v_sub_f32 v{CI(b,0)+i}, 0, v{V_T+b}" for i in range(8)]
    r += cvts(A_, V_E) + cvts(C_, V_E + 8) + ([] if A_ in MS() else adds(A_, V_E)) + ([] if C_ in MS() else adds(C_, V_E + 8))
    return [x.strip() for x in r]

def main_loop(after_t, at_ma, at_f, in_f):
    par = lambda l: barbit() + [f"s_cbranch_scc1 {l}e", f"s_branch {l}o"]
    r = [f"s_cmp_lt_u32 s{S_SOFF}, s{S_USM}", "s_cbranch_scc0 AT_Dx", ".p2align 6", "AT_De:"]
    r += period('D', 'even') + ["AT_Do:"] + period('D', 'odd')
    r += ["AT_Dx:", f"s_cmp_lg_u32 s{S_SOFF}, s{S_US}", "s_cbranch_scc1 AT_mc"]
    r += period('T', 'dyn') + after_t
    r += barbit() + ["s_cbranch_scc0 AT_So", "s_branch AT_Se"]
    r += ["AT_mc:"] + maskblk(C_) + par('AT_D') + ["AT_ma:"] + maskblk(A_) + at_ma + par('AT_S')
    r += [".p2align 6", "AT_Se:"] + period('S', 'even') + ["AT_So:"] + period('S', 'odd')
    r += ["AT_Sx:", f"s_cmp_lg_u32 s{S_SOFF}, s{S_UL}", "s_cbranch_scc1 AT_ma"]
    r += at_f + period('F', 'dyn', in_f) + stamp('f') + epilogue()
    return [x.strip() for x in r]
```

```python
import math, os, struct
def opt(k, d=''): return os.environ.get(k, d)
HS = 65 * 16384
WS_KV = 0
WS_C = 36 << 20
WS_OA = 52 << 20
WS_WO = 56 << 20
WS_WA = 60 << 20
WS_XB = 64 << 20
WS_END = 80 << 20
OOB = 0x40000000
NEG_BIG = 0xf149f2ca
def f2u(x): return struct.unpack('<I', struct.pack('<f', x))[0]
def vr(b, n=4): return f"v[{b}:{b+n-1}]" if n > 1 else f"v{b}"
def ar(b, n=4): return f"a[{b}:{b+n-1}]" if n > 1 else f"a{b}"
def sr(b, n=4): return f"s[{b}:{b+n-1}]" if n > 1 else f"s{b}"

class Out:
    def __init__(self): self.l = []
    def __call__(self, s):
        for x in s.split('\n'):
            x = x.strip()
            if not x: continue
            if x.endswith(':') or x.startswith('.') or x.startswith(';'): self.l.append(x)
            else: self.l.append('    ' + x)
    def ext(self, lst):
        for x in lst: self(x)
    def text(self): return '\n'.join(self.l) + '\n'

class Gaps:
    def __init__(self, mf):
        self.mf = mf; self.g = {i: [] for i in range(-1, len(mf))}
    def put(self, i, *ins):
        i = min(i, len(self.mf) - 1); self.g[i] += list(ins)
    def front(self, i, *ins):
        i = min(i, len(self.mf) - 1); self.g[i] = list(ins) + self.g[i]
    def lines(self):
        r = list(self.g[-1])
        for i, m in enumerate(self.mf): r += [m] + self.g[i]
        return r
    def emit(self, o): o.ext(self.lines())

def mfma(d, a, b, c): return f"v_mfma_f32_16x16x32_bf16 {d}, {a}, {b}, {c}"

P_XA, P_WQKV, P_WO_A, P_XB, P_CKV, P_WQ, P_WUK, P_WUV, P_WO, P_OUT, P_DBG, P_WS = [56 + 2 * i for i in range(12)]
def srd(base, ptr, nrec, add=None):
    if opt('NOACT') and ptr in (P_XA, P_XB, P_CKV): nrec = 0
    if opt('NOW') and ptr in (P_WQ, P_WUK, P_WUV, P_WQKV): nrec = 0
    if add is None: r = [f"s_mov_b32 s{base}, s{ptr}", f"s_mov_b32 s{base+1}, s{ptr+1}"]
    else: r = [f"s_add_u32 s{base}, s{ptr}, {add}", f"s_addc_u32 s{base+1}, s{ptr+1}, 0"]
    return r + [f"s_mov_b32 s{base+2}, {nrec}", f"s_mov_b32 s{base+3}, 0x20000"]
R_A0, R_A1, R_W0, R_W1, R_WS, R_X = 4, 8, 12, 16, 20, 24
S_W = 28; S_H = 29; S_I = 30
S_X = 31

def kd(name, vgpr, acc, sgpr=102):
    return f""".section .rodata,"a"
.p2align 6
.amdhsa_kernel {name}
  .amdhsa_next_free_vgpr {vgpr}
  .amdhsa_next_free_sgpr {sgpr}
  .amdhsa_accum_offset {acc}
  .amdhsa_group_segment_fixed_size 0
  .amdhsa_kernarg_size 96
  .amdhsa_user_sgpr_count 2
  .amdhsa_user_sgpr_kernarg_segment_ptr 1
  .amdhsa_system_sgpr_workgroup_id_x 1
.end_amdhsa_kernel
.text
"""
def head(name): return f".globl {name}\n.p2align 8\n.type {name},@function\n{name}:\n"

class VmQ:
    def __init__(self): self.q = []
    def scan(self, lines):
        out = []
        for x in lines:
            if x.startswith('@wait'):
                p = x.split()
                n = min(self.need(t) for t in p[1].split(','))
                extra = ' '.join(p[2:])
                out.append(f"s_waitcnt vmcnt({min(n, 63)}) {extra}".strip())
                continue
            if x.startswith('buffer_') or x.startswith('global_'):
                tag = x.split('@')[1].strip() if '@' in x else '-'
                if tag != 'skip': self.q.append(tag)
            out.append(x)
        return out
    def need(self, tag):
        idx = [i for i, t in enumerate(self.q) if t == tag]
        if not idx: return 63
        return len(self.q) - 1 - idx[-1]

INSTR = False
def stamp(name):
    names = opt('STAMPS', 'go,k,eng,att,f,pc').split(',')
    if name not in names: return []
    i = names.index(name) + 1
    return [f"{'s_memtime' if opt('CYC') else 's_memrealtime'} s[{84+2*i}:{85+2*i}]", "s_waitcnt lgkmcnt(0)"] if globals()["INSTR"] else []
def stamp_init():
    if not globals()["INSTR"]: return []
    return [("s_memtime" if opt('CYC') else "s_memrealtime") + " s[84:85]", "s_memtime s[80:81]"] + [f"s_mov_b32 s{84+2*i}, 0" for i in range(1, 8)]
def stamp_end(kidx):
    if not globals()["INSTR"]: return []
    r = f"""s_waitcnt vmcnt(0) lgkmcnt(0)
    {'s_memtime' if opt('CYC') else 's_memrealtime'} s[98:99]
    s_memtime s[82:83]
    s_add_u32 s4, s{P_WS}, {(128 << 20) + kidx * 65536}
    s_addc_u32 s5, s{P_WS+1}, 0
    s_mov_b32 s6, 65536
    s_mov_b32 s7, 0x20000
    s_waitcnt lgkmcnt(0)
    s_sub_u32 s82, s82, s80
    s_lshl_b32 s80, s2, 8
    s_lshl_b32 s81, s{S_W}, 6
    s_add_u32 s80, s80, s81
    v_mov_b32 v253, s80
    v_mov_b32 v252, s82""".split('\n')
    for i in range(8): r.append(f"v_mov_b32 v{244+i}, s{84+2*i}")
    r += ["s_mov_b64 exec, 1", "buffer_store_dwordx4 v[244:247], v253, s[4:7], 0 offen", "buffer_store_dwordx4 v[248:251], v253, s[4:7], 0 offen offset:16",
          "buffer_store_dword v252, v253, s[4:7], 0 offen offset:32"]
    return [x.strip() for x in r]

WS_MB = 55 << 20
MB = {'CTX': (0, 8), 'KV': (32, 8), 'OA': (64, 8), 'WA': (112, 4), 'WO': (128, 16), 'XB': (192, 16)}
S_NON = 3
uidc = [0]
def signal(kind, v, cond=()):
    uidc[0] += 1; l = f"SG{uidc[0]}"
    r = ([f"s_cmp_lg_u32 s{S_W}, 0", f"s_cbranch_scc1 {l}"] if kind != 'XB' else []) + list(cond) + ([f"s_cbranch_scc1 {l}"] if cond else [])
    X, Jv = v, v + 1
    if kind == 'KV':
        r += [f"v_mov_b32 v{X}, s{S_X}", f"s_and_b32 s100, s{S_H}, 3", f"v_lshl_add_u32 v{Jv}, v1, 2, s100"]; n = 8
        word = [f"s_mov_b32 s100, s{S_I}"]
    elif kind == 'OA':
        r += [f"s_lshr_b32 s100, s53, 2", f"v_mov_b32 v{X}, s100", f"s_and_b32 s100, s53, 3", f"v_lshl_add_u32 v{Jv}, v1, 2, s100"]; n = 8
        word = [f"s_and_b32 s100, s{S_H}, 7"]
    elif kind == 'WA':
        r += [f"v_lshrrev_b32 v{X}, 2, v1", f"v_and_b32 v{Jv}, 3, v1", f"s_lshl_b32 s100, s{S_I}, 2", f"v_add_u32 v{Jv}, s100, v{Jv}"]; n = 32
        word = [f"s_lshr_b32 s100, s{S_H}, 3"]
    elif kind == 'WO':
        r += [f"s_and_b32 s100, s{S_X}, 6", f"v_and_b32 v{X}, 1, v1", f"v_add_u32 v{X}, s100, v{X}", f"v_lshrrev_b32 v{Jv}, 1, v1", f"s_lshr_b32 s100, s{S_I}, 1",
              f"v_lshl_add_u32 v{Jv}, v{Jv}, 2, s100"]; n = 16
        word = [f"s_and_b32 s100, s{S_H}, 7", "s_lshl_b32 s100, s100, 1", f"s_and_b32 s101, s{S_I}, 1", "s_add_u32 s100, s100, s101"]
    elif kind == 'CTX':
        r += [f"s_and_b32 s100, s{S_X}, 6", f"v_and_b32 v{X}, 1, v1", f"v_add_u32 v{X}, s100, v{X}", f"v_lshrrev_b32 v{Jv}, 1, v1", f"s_lshl_b32 s100, s{S_I}, 2",
              f"v_add_u32 v{Jv}, s100, v{Jv}"]; n = 8
        word = [f"s_and_b32 s100, s{S_H}, 7"]
    else:
        r += [f"v_lshl_add_u32 v{X}, v1, 1, s{S_X}", f"v_and_b32 v{X}, 7, v{X}", "s_lshr_b32 s100, s2, 3", f"v_mov_b32 v{Jv}, s100"]; n = 4
        word = [f"s_mov_b32 s100, s{S_W}"]
    r += [f"v_lshl_add_u32 v{v+2}, v{Jv}, 3, v{X}", f"v_lshlrev_b32 v{v+2}, 9, v{v+2}"]
    if kind == 'XB': r += [f"v_lshl_add_u32 v{v+2}, v1, 4, v{v+2}"]
    r += word + ["s_lshl_b32 s100, s100, 2", f"s_add_u32 s100, s100, {WS_MB + MB[kind][0]}", f"v_mov_b32 v{v}, s{S_NON}", f"s_mov_b64 exec, {(1 << n) - (2 if kind == 'XB' else 1):#x}",
          f"buffer_store_dword v{v}, v{v+2}, {sr(R_WS)}, s100 offen sc1 ; @skip", "s_mov_b64 exec, -1", f"{l}:"]
    return r
def poll_issue(kind, vd, tag):
    off, n = MB[kind]
    if kind == 'XB':
        return [f"s_lshl_b32 s100, s2, 7", f"s_add_u32 s100, s100, s{S_W}", "s_lshl_b32 s100, s100, 2", f"s_add_u32 s100, s100, {WS_MB + off}", f"v_and_b32 v{vd+1}, 3, v1",
                f"v_max_u32 v{vd+1}, 1, v{vd+1}", f"v_lshl_add_u32 v{vd+1}, v{vd+1}, 4, s100", f"buffer_load_dword v{vd}, v{vd+1}, {sr(R_WS)}, 0 offen sc1 ; @{tag}"]
    return [f"s_lshl_b32 s100, s2, 9", f"s_add_u32 s100, s100, {WS_MB + off}", f"v_and_b32 v{vd+1}, {n-1}, v1", f"v_lshl_add_u32 v{vd+1}, v{vd+1}, 2, s100",
            f"buffer_load_dword v{vd}, v{vd+1}, {sr(R_WS)}, 0 offen sc1 ; @{tag}"]
def poll_check(vd, st, R=None, cmp=None):
    uidc[0] += 1; l = f"PL{uidc[0]}"
    R = R_WS if R is None else R
    return [f"s_mov_b32 s{st}, 0x20000", f"{l}:", cmp or f"v_cmp_ne_u32 vcc, s{S_NON}, v{vd}", f"s_cbranch_vccz {l}x ; @taken",
            f"s_sub_u32 s{st}, s{st}, 1", f"s_cbranch_scc1 {l}x", "s_sleep 4",
            f"buffer_load_dword v{vd}, v{vd+1}, {sr(R)}, 0 offen sc1 ; @skip", "s_waitcnt vmcnt(0)", f"s_branch {l}", f"{l}x:"]
```

```python
from common import *
KSCALE = f2u(math.log2(math.e) / math.sqrt(128.0))
ASC = f2u(0.25 * math.log2(math.e))
V_L16 = 2; V_AD = 4; V_WD = 8; V_WV = 10; V_AR = 12
V_TR = 16; V_PK = 24; V_TV = 28
def WF(buf, T): return 32 + buf * 32 + T * 4
def WFV(buf, T): return 32 + buf * 16 + T * 4
def WFA(buf, f): return 32 + buf * 12 + f * 4
AAC = 60
def XF(buf, tb): return buf * 20 + tb * 4
def XP(tb, ks): return (ks * 4 + tb) * 4
V_MP = 16; V_MC = 20; V_MP1 = 28; V_ONE = 56
V_WA = 116; V_WT = 117; V_AX = 118; V_A3 = 120; V_OD = 122; V_TA = 8
ACCV = 128
def VAC(hf, T, tb): return (64 if hf == 0 else 128) + (T * 4 + tb) * 4
def QF(b, s): return 64 + (b * 4 + s) * 4
S_CK = 32; S_QL = 33; S_QS = 34; S_KA = 35; S_KW = 36; S_WC = 37; S_AR = 38; S_WL = 39
S_AG = 40; S_AL = 43; S_AW = 44; S_KB = 45; S_KVS = 46; S_T = 47; S_T2 = 48; S_T3 = 49; S_KS = 50; S_AC = 51; S_OA = 52; S_TT = 53; S_KVO = 54
PASSES = [('K', None), ('V', None), ('Q', None), ('A', None)]
NST = 64
ST = 'sc1'
ROT = not opt('NOROT')
def ptype(G): return PASSES[G // 16][0]

def adv(s): return [f"s_add_u32 s{s}, s{s}, 128", f"s_and_b32 s{s}, s{s}, 1023"]

def act_dma(P, half):
    t = ptype(2 * P); base = (AP(P) % 3) * 8192
    pre = adv(S_KA) if half == 0 and P > 0 else []
    if t == 'A':
        r = []
        for k in range(3 * half, 3 * half + 3):
            sect, j = k >> 1, k & 1
            sal = []
            if k == 0: sal += pre + [f"s_mul_i32 s{S_T2}, s{S_KA}, 1536", f"s_add_u32 s{S_T2}, s{S_T2}, s{S_AW}"]
            if j == 0 or k == 3: sal += [f"s_add_u32 s{S_T}, s{S_T2}, {sect * 1024}", f"s_add_u32 m0, s{S_AR}, {base + sect * 2048}"]
            r.append((sal, f"buffer_load_dwordx4 v{V_WA if j == 0 else V_WT}, {sr(R_W1)}, s{S_T} offen offset:{j*1024} lds ; @X{P}"))
        return r
    R = R_A1 if t == 'Q' else R_A0
    src = (S_QS if half else S_QL) if t == 'Q' else S_CK
    sal = pre + [f"s_add_u32 s{S_T}, s{src}, s{S_KA}"]
    if t != 'Q' and half: sal += [f"s_add_u32 s{S_T}, s{S_T}, 32768"]
    sal += [f"s_add_u32 m0, s{S_AR}, {base + half * 4096}"]
    return [(sal if k == 0 else [], f"buffer_load_dwordx4 v{V_AD+k}, {sr(R)}, s{S_T} offen offset:{k*1024} lds ; @X{P}") for k in range(4)]

def w_dma(G):
    t = ptype(G); tag = f"W{G//2}"
    pre = adv(S_KB) if G % 2 == 0 and G > 0 else []
    if t == 'V':
        sal = adv(S_KB) + [f"s_lshl_b32 s{S_KW}, s{S_KB}, 12", f"s_add_u32 s{S_KW}, s{S_KW}, s{S_WC}"] + ([f"s_add_u32 s{S_KW}, s{S_KW}, 128"] if G >= 24 else [])
        sal += [f"s_add_u32 m0, s{S_WL}, {(G % 8) * 8192}"]
        return [(sal, f"buffer_load_dwordx4 v{V_WV}, {sr(R_W1)}, s{S_KW} offen lds ; @{tag}"),
                ([], f"buffer_load_dwordx4 v{V_WV+1}, {sr(R_W1)}, s{S_KW} offen offset:1024 lds ; @{tag}")]
    if t != 'A':
        R = R_W0
        sal = pre + ([f"s_lshl_b32 s{S_KW}, s{S_KB}, 12", f"s_add_u32 s{S_KW}, s{S_KW}, s{S_WC}"] if G % 2 == 0 else [f"s_add_u32 s{S_KW}, s{S_KW}, 262144"])
        sal += [f"s_add_u32 m0, s{S_WL}, {(G % 8) * 8192}"]
        return [(sal, f"buffer_load_dwordx4 v{V_WD}, {sr(R)}, s{S_KW} offen lds ; @{tag}"),
                ([], f"buffer_load_dwordx4 v{V_WD+1}, {sr(R)}, s{S_KW} offen offset:1024 lds ; @{tag}")]
    r = []
    for k in ((0, 1) if G % 2 == 0 else (2,)):
        r.append(((pre if k == 0 else []) + [f"s_add_u32 s{S_T3}, s{S_AG+k}, s{S_KB}", f"s_add_u32 m0, s{S_AL}, {((G // 2) % 4) * 16384 + k * 1024}"],
                  f"buffer_load_dwordx4 v{V_A3 + (k & 1)}, {sr(R_A0)}, s{S_T3} offen lds ; @{tag}"))
    return r

def AP(P): return P if P < 8 else P - 8
def vreads(G, e2):
    return [f"ds_read_b64_tr_b16 {vr(WFV(e2, T) + 2*e, 2)}, v{V_TV+T} offset:{(G % 8) * 8192 + e2 * 4096 + e * 512}" for T in range(4) for e in range(2)]
def reads(G):
    t = ptype(G); buf = G & 1; P = G // 2
    if t == 'A':
        r = [f"ds_read_b128 {ar(XF(buf, tb))}, v{V_AX + (G & 1)} offset:{(P % 4) * 16384 + tb * 2048}" for tb in range(5)]
        for f, sect in enumerate((1, 2, 0)):
            r += [f"ds_read_b64_tr_b16 {vr(WFA(buf, f) + 2*e, 2)}, v{V_TA + (G & 1)} offset:{(AP(P) % 3) * 8192 + sect * 2048 + e * 512}" for e in range(2)]
        return r
    if t == 'V': return vreads(G, 0)
    r = [f"ds_read_b128 {ar(XP(tb, G) if t == 'K' else XF(buf, tb))}, v{V_AR + (G & 1)} offset:{(AP(P) % 3) * 8192 + tb * 2048}" for tb in range(4)]
    for T in range(8):
        r += [f"ds_read_b64_tr_b16 {vr(WF(buf, T) + 2*e, 2)}, v{V_TR+T} offset:{(G % 8) * 8192 + e * 1024}" for e in range(2)]
    return r

def AACC(f, tb): return AAC + (f * 5 + tb - (1 if f == 2 else 0)) * 4
def mfmas(G):
    t = ptype(G); ks = G % 16; buf = G & 1; mf = []
    if t == 'A':
        for f in range(3):
            for tb in range(1 if f == 2 else 0, 5):
                d = vr(AACC(f, tb)); c = d if ks else '0'
                if f == 1: mf.append(mfma(d, ar(XF(buf, tb)), vr(WFA(buf, f)), c))
                else: mf.append(mfma(d, vr(WFA(buf, f)), ar(XF(buf, tb)), c))
        return mf
    if t == 'V':
        hf = ks >> 3
        for e2 in range(2):
            kk = 2 * (ks & 7) + e2
            for T in range(4):
                for tb in range(4):
                    d = vr(VAC(hf, T, tb)); mf.append(mfma(d, ar(XP(tb, kk)), vr(WFV(e2, T)), d if kk else '0'))
        return mf
    for T in range(8):
        for tb in range(4):
            d = (ar if t == 'Q' else vr)(ACCV + (T * 4 + tb) * 4); c = d if ks else '0'
            mf.append(mfma(d, vr(WF(buf, T)), ar(XP(tb, ks) if t == 'K' else XF(buf, tb)), c))
    return mf

def drain(dt, k):
    pk = V_PK
    if dt == 'Z': return [f"v_mov_b32 v{k+i}, 0" for i in range(4)]
    if dt == 'K':
        s, tb = k >> 2, k & 3
        lo = ACCV + ((2 * s) * 4 + tb) * 4; hi = lo + 16
        va = [f"v_mul_f32 v{r}, s{S_KS}, v{r}" for r in list(range(lo, lo + 4)) + list(range(hi, hi + 4))]
        src = [lo, lo + 2, hi, hi + 2]
        off = (tb >> 1) * 16384 + ((tb & 1) * 4 + s) * 1024
    elif dt == 'V':
        hf, T, p = k >> 3, (k >> 1) & 3, k & 1
        lo = VAC(hf, T, 2 * p); va = []
        src = [lo + 2 * r for r in range(4)]
        off = (p + 1) * 16384 + 8192 + (hf * 4 + T) * 1024
    else:
        tb, s = k >> 2, k & 3
        va = []
        for h in range(2):
            a = ACCV + ((2 * s + h) * 4 + tb) * 4
            va += [f"v_accvgpr_read_b32 v{pk+i}, a{a+i}" for i in range(4)] + [f"v_cvt_pk_bf16_f32 v{pk+2*i}, v{pk+2*i}, v{pk+2*i+1}" for i in range(2)]
            va += [f"v_accvgpr_write_b32 a{QF(tb, s)+2*h+i}, v{pk+2*i}" for i in range(2)]
        return va
    va += [f"v_cvt_pk_bf16_f32 v{pk+i}, v{x}, v{x+1}" for i, x in enumerate(src)]
    if opt('NOKVST'): return va
    return va + [f"s_add_u32 s{S_KVO}, s{S_KVS}, {off}", f"buffer_store_dwordx4 {vr(pk)}, v{V_L16}, {sr(R_WS)}, s{S_KVO} offen {opt('KVST', ST)} ; @ST{dt}"]

def drain_plan():
    d = {G: [] for G in range(NST)}
    q = [('K', k) for k in range(12)]
    for G in range(16, 24): d[G] = [q.pop(0) for _ in range(1 + G % 2)]
    q = [('V', k) for k in range(8)] + [('K', k) for k in range(12, 16)]
    for G in range(24, 32): d[G] = [q.pop(0) for _ in range(2 - G % 2 if G < 30 else 1 + (G == 30) * 2 - (G == 31))]
    assert not q, q
    for G in range(32, 40): d[G] = [('V', 8 + G - 32), ('Z', 192 + 8 * (G - 32)), ('Z', 196 + 8 * (G - 32))]
    for G in range(40, 48): d[G] = [('Z', 128 + 8 * (G - 40)), ('Z', 132 + 8 * (G - 40))]
    for G in range(48, 64): d[G] = [('Q', G - 48)]
    for G in range(58, 62): d[G] += [('Z', ACCV + 32 * (G - 58)), ('Z', ACCV + 32 * (G - 58) + 16)]
    return d
DRAIN = drain_plan()

def dma_plan():
    plan = {0: [('A', 2, 0), ('A', 2, 1)], 1: [('W', 4), ('W', 5), ('A', 3, 0)], 2: [('A', 3, 1), ('W', 6), ('W', 7)], 3: [('A', 4, 0), ('A', 4, 1)],
            4: [('W', 8), ('W', 9), ('W', 10), ('W', 11)]}
    for G in range(5, NST):
        P = (G + 5) // 2
        if G % 2: plan[G] = [('A', P, h) for h in range(2)] if (P < 8 or 19 <= P < NST // 2) else []
        else: plan[G] = [('W', k) for k in (G + 6, G + 7) if k < NST]
    for k, G in enumerate(eval(opt('XBS', '(17, 19, 21, 23, 25, 27)'))): plan[G] = [('A', 16 + k // 2, k % 2)]
    return plan
PLAN = dma_plan()

def step(G, hooks):
    t = ptype(G)
    g = Gaps(mfmas(G)); n = len(g.mf)
    nxt = G + 1 < NST
    odd = G % 2 == 1
    rd = reads(G + 1) if nxt else []
    dl = []
    for it in PLAN[G]: dl += act_dma(it[1], it[2]) if it[0] == 'A' else w_dma(it[1])
    dl += hooks.get(('dma', G), [])
    tags = ([f"X{(G+1)//2}", f"W{(G+1)//2}"] if odd and nxt else []) + hooks.get(('wait', G), [])
    full = [f"@wait {','.join(tags)} lgkmcnt(0)" if tags else "s_waitcnt lgkmcnt(0)"] + (["s_barrier"] if odd and nxt else [])
    v0 = 0
    if t == 'V':
        g.put(-1, "s_waitcnt lgkmcnt(0)")
        dgap = [4, 10, 20, 26] if len(dl) <= 4 else [4, 7, 10, 13, 19, 22, 25, 28]
        fr = [x for x in range(32) if x not in dgap[:len(dl)]]
        for x, gp in zip(vreads(G, 1), [x for x in fr if x < 12]): g.put(gp, x)
        g.front(15, *full)
        late = [x for x in fr if x >= 16]
        for k, x in enumerate(rd): g.put(31 if k >= 18 else late[k * len(late) // max(len(rd), len(late))] if len(rd) > len(late) else late[k], x)
        v0 = 2
    elif t != 'A':
        g.put(-1, "s_waitcnt lgkmcnt(12)")
        dgap = [6, 10, 14, 18, 22, 26] if len(dl) <= 6 else [6, 9, 12, 15, 18, 21, 24, 27]
        early = not odd and len(rd) == 20
        if not early: g.front(3, *full)
        rgap = [x for x in range(0 if early else 4, 32) if x not in dgap[:len(dl)]]
        for x, gp in zip(rd, rgap): g.put(gp, x)
        if early:
            n7 = sum(1 for x in rgap[:20] if x < 7)
            g.front(7, *([f"@wait {','.join(tags)} lgkmcnt({n7})"] if tags else [f"s_waitcnt lgkmcnt({n7})"]))
        v0 = 2
    else:
        g.put(-1, "s_waitcnt lgkmcnt(4)")
        g.front(1, *full)
        dgap = [3, 5, 7, 9, 11, 13] if len(dl) <= 6 else [3, 4, 6, 7, 9, 10, 12, 13]
        for x, gp in zip(rd, range(2, 13)): g.put(gp, x)
    assert len(dl) <= len(dgap)
    for (sal, x), gp in zip(dl, dgap):
        for k, y in enumerate(sal):
            q = max(gp - len(sal) + k, 0)
            pos = max([i + 1 for i, z in enumerate(g.g[q]) if z.startswith('buffer_load') or z.startswith('s_') or z.startswith('@')] + [0])
            g.g[q].insert(pos, y)
        g.put(gp, x)
    load = lambda q: sum(1 for z in g.g[q] if not z.startswith('s_') and not z.startswith('@'))
    seq = [x for dt, k in DRAIN[G] for x in drain(dt, k)]
    cap = 2 if t != 'A' else max(2, -(-(len(seq) + 20) // n))
    gp = v0
    for k, x in enumerate(seq):
        if x.startswith('s_'): g.front(gp, x); continue
        if x.startswith('buffer'):
            q = gp + 1
            while q < n - 1 and load(q) > 0 and q < gp + 4: q += 1
            gp = min(q, n - 1); g.put(gp, x); gp = min(gp + 1, n - 1); continue
        while gp < n - 1 and load(gp) >= cap: gp += 1
        g.put(gp, x)
    for gp, x in hooks.get(('seq', G), []): g.front(gp, x) if x.startswith('s_') else g.put(gp, x)
    for gp, x in hooks.get(('misc', G), []): g.front(gp, x) if x.startswith('s_') and '\n' not in x else g.put(gp, x)
    return g.lines()

def setup():
    a = f"""v_and_b32 v1, 63, v0
    v_lshlrev_b32 v{V_L16}, 4, v1
    v_lshrrev_b32 v26, 3, v1
    v_lshrrev_b32 v24, 4, v1
    v_and_b32 v28, 7, v1
    v_xor_b32 v27, v24, v28
    v_lshlrev_b32 v27, 4, v27
    v_lshl_add_u32 v{V_AD}, v26, 10, v27
    v_xor_b32 v27, 64, v{V_AD}
    v_add_u32 v{V_AD+1}, {8192-1024}, v27
    v_add_u32 v{V_AD+2}, {2*(8192-1024)}, v{V_AD}
    v_add_u32 v{V_AD+3}, {3*(8192-1024)}, v27
    s_and_b32 s{S_T}, s{S_W}, 1
    s_lshl_b32 s{S_T}, s{S_T}, 2
    v_or_b32 v25, s{S_T}, v24
    v_lshlrev_b32 v25, 1, v25
    v_and_b32 v26, 15, v1
    v_xor_b32 v25, v25, v26
    v_lshlrev_b32 v25, 4, v25
    v_lshl_add_u32 v25, v24, 13, v25
    s_lshl_b32 s{S_T}, s{S_W}, 16
    v_add_u32 v{V_WD}, s{S_T}, v25
    v_add_u32 v{V_WD+1}, {4*8192-1024}, v{V_WD}
    s_lshl_b32 s{S_CK}, s{S_I}, 18
    s_add_u32 s{S_CK}, s{S_CK}, s{S_T}
    s_lshl_b32 s{S_WC}, s{S_H}, 8
    s_mul_i32 s{S_AR}, s{S_W}, 24576
    s_add_u32 s{S_AR}, s{S_AR}, 65536
    s_lshl_b32 s{S_WL}, s{S_W}, 11
    s_add_u32 s{S_KA}, s{S_I}, s{S_H}
    s_and_b32 s{S_KA}, s{S_KA}, {int(opt('ROTK', '3'))}
    s_lshl_b32 s{S_KA}, s{S_KA}, 7
    s_mov_b32 s{S_KB}, s{S_KA}""".split('\n')
    b = f"""v_and_b32 v24, 15, v1
    v_lshrrev_b32 v25, 4, v1
    v_lshrrev_b32 v26, 1, v24
    v_xor_b32 v26, v26, v25
    v_lshlrev_b32 v26, 4, v26
    v_lshl_add_u32 v26, v24, 7, v26
    v_add_u32 v{V_AR}, s{S_AR}, v26
    v_xor_b32 v{V_AR+1}, 64, v{V_AR}
    v_bfe_u32 v26, v1, 2, 2
    v_lshl_add_u32 v27, v25, 3, v26
    v_and_b32 v28, 1, v25
    v_lshl_or_b32 v29, v28, 2, v26
    v_lshlrev_b32 v29, 5, v29
    v_lshl_add_u32 v29, v27, 8, v29
    v_and_b32 v30, 3, v1
    v_lshl_add_u32 v{V_TR}, v30, 3, v29
    @split
    v_lshrrev_b32 v25, 4, v1
    v_bfe_u32 v26, v1, 2, 2
    v_lshl_add_u32 v27, v25, 3, v26
    v_lshlrev_b32 v27, 7, v27
    v_and_b32 v24, 3, v1
    v_lshl_add_u32 v27, v24, 3, v27
    v_and_b32 v25, 1, v25
    v_lshrrev_b32 v26, 1, v26
    v_lshl_or_b32 v26, v25, 1, v26
    v_lshl_add_u32 v{V_TV}, v26, 5, v27
    v_xor_b32 v{V_TV+1}, 32, v{V_TV}
    v_xor_b32 v{V_TV+2}, 64, v{V_TV}
    v_xor_b32 v{V_TV+3}, 96, v{V_TV}
    v_lshrrev_b32 v26, 3, v1
    v_and_b32 v27, 2, v26
    v_and_b32 v24, 7, v1
    v_xor_b32 v27, v27, v24
    v_lshlrev_b32 v27, 4, v27
    v_lshl_add_u32 v27, v26, 13, v27
    s_lshl_b32 s{S_T}, s{S_W}, 17
    v_add_u32 v{V_WV}, s{S_T}, v27
    v_xor_b32 v27, 64, v{V_WV}
    v_add_u32 v{V_WV+1}, {8*8192-1024}, v27
    s_lshl_b32 s{S_T}, s{S_I}, 2
    s_add_u32 s{S_QS}, s{S_T}, s{S_W}
    s_sub_u32 s{S_QL}, s{S_W}, s{S_T}
    s_add_u32 s{S_QL}, s{S_QL}, 60
    s_lshl_b32 s{S_QL}, s{S_QL}, 15
    s_lshl_b32 s{S_QS}, s{S_QS}, 15
    s_mul_i32 s{S_KVS}, s{S_H}, {HS}
    s_lshl_b32 s{S_T}, s{S_I}, 17
    s_add_u32 s{S_KVS}, s{S_KVS}, s{S_T}
    s_lshl_b32 s{S_T}, s{S_W}, 15
    s_add_u32 s{S_KVS}, s{S_KVS}, s{S_T}
    s_mov_b32 s{S_KS}, {KSCALE}
    s_mov_b32 s{S_AC}, {ASC}
    s_lshr_b32 s{S_TT}, s{S_X}, 1
    s_lshl_b32 s{S_TT}, s{S_TT}, 3
    s_add_u32 s{S_TT}, s{S_TT}, s{S_I}
    s_and_b32 s{S_OA}, s{S_H}, 7
    s_lshl_b32 s{S_AW}, s{S_OA}, 7
    s_mul_i32 s{S_T}, s{S_W}, {16*3072}
    s_add_u32 s{S_AW}, s{S_AW}, s{S_T}
    s_mul_i32 s{S_AL}, s{S_W}, 3072
    s_lshl_b32 s{S_T}, s{S_TT}, 16
    s_lshl_b32 s{S_KVO}, s{S_AL}, 3
    s_add_u32 s{S_T}, s{S_T}, s{S_KVO}
    s_sub_u32 s{S_AG}, s{S_T}, 16384
    s_cselect_b32 s{S_AG}, {OOB}, s{S_AG}
    s_sub_u32 s{S_AG+1}, s{S_T}, 8192
    s_cselect_b32 s{S_AG+1}, {OOB}, s{S_AG+1}
    s_mov_b32 s{S_AG+2}, s{S_T}
    s_cmp_eq_u32 s{S_W}, 3
    s_cselect_b32 s{S_AG+1}, {OOB}, s{S_AG+1}
    s_cselect_b32 s{S_AG+2}, {OOB}, s{S_AG+2}
    s_lshl_b32 s{S_OA}, s{S_OA}, 11
    s_lshl_b32 s{S_T}, s{S_TT}, 16
    s_add_u32 s{S_OA}, s{S_OA}, s{S_T}
    s_lshr_b32 s{S_T}, s{S_W}, 1
    s_lshl_b32 s{S_T}, s{S_T}, 10
    s_add_u32 s{S_OA}, s{S_OA}, s{S_T}
    s_add_u32 s{S_OA}, s{S_OA}, {WS_OA}""".split('\n')
    b = [x.strip() for x in b]
    k = b.index('@split')
    b1 = b[:k] + [f"v_xor_b32 v{V_TR+T}, {32*T}, v{V_TR}" for T in range(1, 8)]
    b2 = [x.replace(f"s{S_T},", "s100,").replace(f"s{S_T}", "s100") for x in b[k+1:]]
    return [x.strip() for x in a], b1, b2

def a_setup():
    r = f"""v_subrev_u32 v{V_AX}, s{S_AR}, v{V_AR}
    v_xor_b32 v{V_AX+1}, 64, v{V_AX}
    v_lshrrev_b32 v124, 3, v1
    v_and_b32 v125, 2, v124
    v_and_b32 v126, 7, v1
    v_xor_b32 v125, v125, v126
    v_lshlrev_b32 v125, 4, v125
    v_mul_u32_u24 v124, 3072, v124
    v_add_u32 v{V_WA}, v124, v125
    v_xor_b32 v125, 64, v125
    v_add_u32 v124, v124, v125
    v_add_u32 v{V_WT}, {8*3072-1024}, v124
    s_and_b32 s100, s{S_W}, 1
    s_lshl_b32 s101, s100, 6
    v_xor_b32 v{V_A3}, s101, v{V_AD}
    v_xor_b32 v{V_A3+1}, 64, v{V_A3}
    s_lshl_b32 s101, s100, 3
    v_add_u32 v{V_OD}, s101, v{V_L16}
    v_and_b32 v124, 0x7ff, v{V_TV}
    s_lshl_b32 s101, s{S_W}, 5
    v_xor_b32 v124, s101, v124
    v_lshrrev_b32 v125, 5, v1
    v_mul_u32_u24 v125, 24576, v125
    v_add_u32 v124, v124, v125""".split('\n')
    return [x.strip() for x in r], [f"v_add_u32 v{V_TA}, 0x10000, v124", f"v_add_u32 v{V_TA+1}, {65536 + 49152}, v124"]

def a_masks():
    b = [f"v_and_b32 v124, 15, v1\nv_lshrrev_b32 v125, 4, v1\nv_lshlrev_b32 v125, 2, v125\nv_sub_u32 v124, v124, v125\nv_mov_b32 v125, {NEG_BIG:#x}\n" +
         "\n".join(f"v_mov_b32 v{V_ONE+r}, 0x3f803f80" for r in range(4))]
    for r in range(4):
        b.append(f"""v_subrev_u32 v126, {r}, v124
        v_and_b32 v127, -15, v126
        v_cmp_ne_u32 vcc, 0, v127
        v_add_u32 v126, 16, v126
        v_and_b32 v127, -15, v126
        v_cndmask_b32 v{V_MC+r}, 0, v125, vcc
        v_cmp_ne_u32 vcc, 0, v127
        s_nop 1
        v_cndmask_b32 v{V_MP+r}, 0, v125, vcc""")
    b.append(f"s_cmp_eq_u32 s{S_TT}, 0\ns_cselect_b32 s100, 0, {0x7f7fffff}\ns_cselect_b32 s100, {NEG_BIG}, s100\n" + "\n".join(f"v_min_f32 v{V_MP1+r}, s100, v{V_MP+r}" for r in range(4)))
    return b

def a_attention():
    r = ["s_nop 4"]
    pk = lambda f, tb: AAC + (AACC(f, tb) - AAC) // 2
    for i in range(28): r.append(f"v_cvt_pk_bf16_f32 v{AAC+i}, v{AAC+2*i}, v{AAC+2*i+1}")
    SS = lambda i: 88 + i * 8
    M = 32; U = 36; OO = lambda i: 40 + i * 4
    r.append("s_nop 0")
    for i in range(4):
        mp = V_MP1 if i == 0 else V_MP
        r.append(f"v_mfma_f32_16x16x16_bf16 {vr(SS(i))}, {vr(pk(0, i), 2)}, {vr(pk(2, i+1), 2)}, {vr(mp)}")
        r.append(f"v_mfma_f32_16x16x16_bf16 {vr(SS(i)+4)}, {vr(pk(0, i+1), 2)}, {vr(pk(2, i+1), 2)}, {vr(V_MC)}")
    r.append("s_nop 5")
    for i in range(4):
        s0 = SS(i)
        r += [f"v_max3_f32 v{M+i}, v{s0}, v{s0+1}, v{s0+2}", f"v_max3_f32 v{M+i}, v{M+i}, v{s0+3}, v{s0+4}",
              f"v_max3_f32 v{M+i}, v{M+i}, v{s0+5}, v{s0+6}", f"v_max_f32 v{M+i}, v{M+i}, v{s0+7}", f"v_mov_b32 v{U+i}, v{M+i}"]
    for sw in ('32', '16'):
        r.append("s_nop 1")
        r += [f"v_permlane{sw}_swap_b32 v{M+i}, v{U+i}" for i in range(4)]
        for i in range(4):
            r.append(f"v_max_f32 v{M+i}, v{M+i}, v{U+i}")
            if sw == '32': r.append(f"v_mov_b32 v{U+i}, v{M+i}")
    r += [f"v_mul_f32 v{M+i}, s{S_AC}, v{M+i}" for i in range(4)]
    for i in range(4):
        r += [f"v_fma_f32 v{SS(i)+k}, v{SS(i)+k}, s{S_AC}, -v{M+i}" for k in range(8)]
        r += [f"v_exp_f32 v{SS(i)+k}, v{SS(i)+k}" for k in range(8)]
    for i in range(4):
        r += [f"v_cvt_pk_bf16_f32 v{SS(i)+k}, v{SS(i)+2*k}, v{SS(i)+2*k+1}" for k in range(4)]
    r.append("s_nop 1")
    for i in range(4):
        r.append(mfma(vr(SS(i) + 4), vr(V_ONE), vr(SS(i)), '0'))
        r.append(mfma(vr(OO(i)), vr(pk(1, i)), vr(SS(i)), '0'))
    r.append("s_nop 5")
    r += [f"v_rcp_f32 v{M+i}, v{SS(i)+4}" for i in range(4)]
    for i in range(4): r += [f"v_mul_f32 v{OO(i)+k}, v{M+i}, v{OO(i)+k}" for k in range(4)]
    for i in range(4):
        d = 88 + i * 2
        r += [f"v_cvt_pk_bf16_f32 v{d}, v{OO(i)}, v{OO(i)+1}", f"v_cvt_pk_bf16_f32 v{d+1}, v{OO(i)+2}, v{OO(i)+3}", f"s_add_u32 s{S_KVO}, s{S_OA}, {i*16384}",
              f"buffer_store_dwordx2 {vr(d, 2)}, v{V_OD}, {sr(R_WS)}, s{S_KVO} offen {ST} ; @STO"]
    return r

def touch(kind, R, n=0):
    if kind == 'head':
        r = ["v_bfe_u32 v126, v1, 1, 4", "v_lshlrev_b32 v126, 13, v126", "v_and_b32 v127, 1, v1", "v_lshl_add_u32 v126, v127, 7, v126",
             f"s_lshl2_add_u32 s100, s{S_I}, s{S_W}", "s_lshl_b32 s100, s100, 17", f"s_add_u32 s100, s100, s{S_WC}"]
    else:
        r = [f"v_min_u32 v126, {n-1}, v1", "v_lshlrev_b32 v126, 7, v126", f"s_lshl2_add_u32 s100, s2, s{S_W}", f"s_mul_i32 s100, s100, {n * 128}"]
    return r + [f"buffer_load_dword v3, v126, {sr(R)}, s100 offen ; @PF"]

def publish_nonce():
    return ["s_lshl_b32 s100, s2, 2", f"s_or_b32 s100, s100, s{S_W}", "s_cmp_lg_u32 s100, 0", "s_cbranch_scc1 L_nononce", "s_memrealtime s[100:101]", "s_waitcnt lgkmcnt(0)",
            "s_or_b32 s100, s100, 1", "v_mov_b32 v14, s100", "v_mov_b32 v15, 0", "s_mov_b64 exec, 1",
            f"buffer_store_dword v14, v15, {sr(R_X)}, 0 offen sc1 ; @skip", "s_mov_b64 exec, -1", "L_nononce:"]

def engine(hooks):
    a, b, b2 = setup()
    r = list(a) + ["s_waitcnt lgkmcnt(0)"]
    r += srd(R_A0, P_CKV, 2 << 20) + srd(R_W0, P_WUK, 4 << 20)
    for G in range(4):
        for sal, x in act_dma(G // 2, G % 2): r += sal + (["s_nop 0"] if sal else []) + [x]
        for sal, x in w_dma(G): r += sal + (["s_nop 0"] if sal else []) + [x]
    r += b
    b2 += srd(R_A1, P_XB, 2 << 20) + srd(R_W1, P_WUV, 4 << 20) + srd(R_WS, P_WS, WS_END) + srd(R_X, P_DBG, 256)
    r += ["@wait X0,W0", "s_barrier"] + stamp('go') + reads(0)
    hk = dict(hooks)
    def add(G, gp, lines): hk[('misc', G)] = hk.get(('misc', G), []) + [(gp + i, x) for i, x in enumerate(lines)]
    m = []
    for x in b2:
        if x.startswith('s_cselect'): m[-1] += '\n' + x
        else: m.append(x)
    b2 = m
    slots = [(G, gp) for G in range(2, 9) for gp in range(0, 32) if gp not in (3, 6, 9, 10, 12, 14, 15, 18, 21, 22, 24, 26, 27)]
    for x, (G, gp) in zip(b2, slots): hk[('seq', G)] = hk.get(('seq', G), []) + [(gp, x)]
    assert len(b2) <= len(slots)
    add(9, 30, ['\n'.join(publish_nonce())])
    add(11, 28, srd(R_W0, P_WQ, 4 << 20)[:2])
    add(13, 28, srd(R_A0, P_XA, 2 << 20)[:2])
    add(33, 28, srd(R_W1, P_WQKV, 1536 * 1024)[:3])
    if not opt('NOPF'):
        J = '\n'.join
        add(9, 28, [J(touch('head', R_W1))]); add(10, 28, [J(touch('lin', R_A1, 16))]); add(12, 28, [J(touch('head', R_W0))])
        add(34, 12, [J(touch('lin', R_W1, 12))]); add(35, 12, [J(touch('lin', R_A0, 16))])
    if opt('TLBW'):
        J = '\n'.join
        add(9, 20, [J(["v_min_u32 v126, 39, v1", "v_lshlrev_b32 v126, 21, v126", f"buffer_load_dword v3, v126, {sr(R_WS)}, 0 offen ; @PF"])])
    a1, a2 = a_setup()
    for k, x in enumerate(a1): hk[('seq', 36 + k // 6)] = hk.get(('seq', 36 + k // 6), []) + [(20 + 2 * (k % 6), x)]
    hk[('seq', 41)] = hk.get(('seq', 41), []) + [(20, a2[0]), (22, a2[1])]
    lp = eval(opt('LOOP', '(-1,-1)')); drop = tuple(x for x in opt('DROP').split(',') if x)
    for G in range(NST):
        if G == lp[0]: r += stamp('l0') + ["s_mov_b32 s1, 12", "L_mb:"]
        st = step(G, hk if not lp[0] <= G <= lp[1] else {})
        if lp[0] <= G <= lp[1] and drop: st = [x for x in st if not x.startswith(drop)]
        r += st
        if G == lp[1]: r += ["s_sub_u32 s1, s1, 1", "s_cmp_lg_u32 s1, 0", "s_cbranch_scc1 L_mb"] + stamp('l1') + stamp_end(0) + ["s_endpgm"]
        r += stamp(f'g{G}')
    return r
```

```python
from common import *
import eng
from eng import V_L16, V_AD, S_AR, ST
V_OUT = 15; V_RR = 16
def ACC(T, tb): return 64 + (T * 4 + tb) * 4
def ACA(T, tb): return 192 + (T * 4 + tb) * 4
NW = 12; NC = 8
def WB(kk, T): return (kk % NW) * 16 + T * 4
def CX(kk, tb): return 128 + (kk % NC) * 16 + tb * 4
S_CB = 34; S_WB = 35; S_T = 37; S_GC = 40; S_GW = 41; S_ROT = 44; S_OAB = 45; S_WAB = 46; S_OUT = 47
R_OUT = R_A0
LD = opt('LD_POL', 'sc1')

def RX(i): return 128 + 16 * i
def relayout_loads():
    r = srd(R_W0, P_WO_A, 512 * 1024)[:3] + [f"s_and_b32 s100, s{S_H}, 7", "s_cmp_lg_u32 s100, 0", "s_cbranch_scc1 RL_a",
         f"s_lshr_b32 s100, s{S_H}, 1", f"s_add_u32 s100, s100, s{S_W}", "s_lshl_b32 s100, s100, 15", f"s_lshl_b32 s101, s{S_I}, 7", "s_add_u32 s100, s100, s101",
         f"s_lshl_b32 s101, s{S_W}, 14", "s_add_u32 m0, s101, 12288", "s_nop 0"]
    r += [f"buffer_load_dwordx4 v{V_AD+k}, {sr(R_W0)}, s100 offen offset:{k*1024} lds ; @skip" for k in range(4)]
    r += ["RL_a:"] + srd(R_W0, P_WO, 4 << 20)[:3]
    r += [f"s_lshl2_add_u32 s100, s{S_H}, s{S_W}", "s_lshl_b32 s100, s100, 15", f"s_lshl_b32 s101, s{S_I}, 7", "s_add_u32 s100, s100, s101", f"s_add_u32 m0, s{S_AR}, 6144", "s_nop 0"]
    r += [f"buffer_load_dwordx4 v{V_AD+k}, {sr(R_W0)}, s100 offen offset:{k*1024} lds ; @WO" for k in range(2)]
    r += [f"s_add_u32 m0, s{S_AR}, {8192 + 6144 - 2048}", "s_nop 0"]
    r += [f"buffer_load_dwordx4 v{V_AD+k}, {sr(R_W0)}, s100 offen offset:{k*1024} lds ; @WO" for k in range(2, 4)]
    return r
def relayout_reads():
    a = 124; V_X = 126
    r = [f"v_lshrrev_b32 v{a}, 2, v1", f"v_lshrrev_b32 v{a+1}, 3, v1", f"v_and_b32 v{V_X}, 3, v1", f"v_xor_b32 v{a+1}, v{a+1}, v{V_X}", f"v_lshlrev_b32 v{a+1}, 4, v{a+1}",
         f"v_lshl_add_u32 v{a+1}, v{a}, 7, v{a+1}", f"s_and_b32 s100, s{S_H}, 7", "s_cmp_lg_u32 s100, 0", "s_cbranch_scc1 RL_b",
         f"s_lshl_b32 s101, s{S_W}, 14", f"v_add_u32 v{a}, s101, v{a+1}", f"v_xor_b32 v{V_X}, 64, v{a}"]
    for T in range(4):
        for e in range(2):
            r.append(f"ds_read_b64_tr_b16 {vr(RX(4 + T) + 2*e, 2)}, v{a if T < 2 else V_X} offset:{12288 + e * 2048 + (T & 1) * 8}")
    r += ["RL_b:", f"v_add_u32 v{a}, s{S_AR}, v{a+1}", f"v_xor_b32 v{a+1}, 64, v{a}"]
    for T in range(4):
        for e in range(2):
            r.append(f"ds_read_b64_tr_b16 {vr(RX(T) + 2*e, 2)}, v{a + (T >> 1)} offset:{6144 + e * 8192 + (T & 1) * 8}")
    return r
def relayout_stores():
    r = [f"s_lshr_b32 s100, s{S_H}, 3", "s_lshl_b32 s100, s100, 2", f"s_lshr_b32 s101, s{S_I}, 1", "s_add_u32 s100, s100, s101", "s_lshl_b32 s100, s100, 3", f"s_and_b32 s101, s{S_H}, 7",
         "s_add_u32 s100, s100, s101", f"s_lshl2_add_u32 s100, s100, s{S_W}", f"s_and_b32 s101, s{S_I}, 1", "s_lshl1_add_u32 s100, s100, s101", "s_lshl_b32 s100, s100, 12", f"s_add_u32 s100, s100, {WS_WO}"]
    r += [f"buffer_store_dwordx4 {vr(RX(T))}, v{V_L16}, {sr(R_WS)}, s100 offen offset:{T*1024} {ST} ; @STW" for T in range(4)]
    r += [f"s_and_b32 s100, s{S_H}, 7", "s_cmp_lg_u32 s100, 0", "s_cbranch_scc1 RL_c",
          f"s_lshl_b32 s100, s{S_I}, 4", f"s_lshr_b32 s101, s{S_H}, 1", "s_add_u32 s100, s100, s101", f"s_add_u32 s100, s100, s{S_W}", "s_lshl_b32 s100, s100, 12", f"s_add_u32 s100, s100, {WS_WA}"]
    r += [f"buffer_store_dwordx4 {vr(RX(4 + T))}, v{V_L16}, {sr(R_WS)}, s100 offen offset:{T*1024} {ST} ; @skip" for T in range(4)]
    return r + ["RL_c:"]

V_PP = 96
V_CD = 4; V_WD = 13; V_CR = 8; V_WR = 12; V_PC = 6
def WFR(buf, e, T): return 128 + buf * 32 + e * 16 + T * 4
def CFR(buf, e, u): return 192 + buf * 32 + e * 16 + u * 4
def AW(k, T): return 64 + k * 16 + T * 4
def AC(k, tb): return 128 + k * 16 + tb * 4
S_Q = 32; S_TL = 33; S_MW = 36; S_XS = 38; S_XR = 39; S_OB = 42; S_MC = 43; S_CR = 48; S_WR = 52; S_RR = 53; S_CD = 54
def polls(): return poll_issue('OA', V_PP, 'PA') + poll_issue('WO', V_PP + 2, 'PA') + poll_issue('WA', V_PP + 4, 'PA')
def w_dma(p):
    return [([f"s_add_u32 s{S_GW}, s{S_WB}, {p * 16384}", f"s_add_u32 m0, s{S_MW}, {(p % 4) * 16384}"] if k == 0 else [],
             f"buffer_load_dwordx4 v{V_WD}, {sr(R_WS)}, s{S_GW} offen offset:{k*1024} {LD} lds ; @W{p}") for k in range(4)]
def c_dma(p):
    return [([f"s_add_u32 s{S_GC}, s{S_CB}, {p * 2048}", f"s_add_u32 m0, s{S_MC}, {(p % 4) * 16384}"] if k == 0 else [],
             f"buffer_load_dwordx4 v{V_CD + (k >> 1)}, {sr(R_WS)}, s{S_GC} offen offset:{k*1024} {LD} lds ; @C{p}") for k in range(4)]
def flat(items):
    r = []
    for sal, x in items: r += sal + (["s_nop 0"] if sal else []) + [x]
    return r
def rds(p):
    b = p & 1; o = (p % 4) * 16384
    r = []
    for T in range(4):
        r += [f"ds_read_b128 {vr(WFR(b, e, T))}, v{V_WR} offset:{o + e * 8192 + T * 1024}" for e in range(2)]
        r += [f"ds_read_b128 {vr(CFR(b, e, T))}, v{V_CR + T} offset:{o + e * 1024}" for e in range(2)]
    return r
def a_loads():
    r = []
    for k in range(4):
        r += [([f"s_add_u32 s{S_T}, s{S_WAB}, {k * 4096}"] if T == 0 else [], f"buffer_load_dwordx4 {ar(AW(k, T))}, v{V_L16}, {sr(R_WS)}, s{S_T} offen offset:{T*1024} {LD} ; @A{k}") for T in range(4)]
        r += [([f"s_add_u32 s{S_T}, s{S_OAB}, {tb * 16384}"], f"buffer_load_dwordx4 {ar(AC(k, tb))}, v{V_L16}, {sr(R_WS)}, s{S_T} offen offset:{k*1024} {LD} ; @A{k}") for tb in range(4)]
    return r

def scalars():
    r = f"""s_lshr_b32 s{S_Q}, s{S_X}, 1
    s_sub_u32 s{S_TL}, 15, s{S_I}
    s_bitcmp1_b32 s{S_X}, 0
    s_cselect_b32 s{S_TL}, s{S_TL}, s{S_I}
    s_bitcmp1_b32 s{S_I}, 0
    s_cselect_b32 s{S_WR}, 5, 1
    s_cselect_b32 s{S_GC}, 1, 5
    s_lshl_b32 s{S_WR}, s{S_WR}, 14
    s_lshl_b32 s{S_GC}, s{S_GC}, 14
    s_add_u32 s{S_MW}, s{S_WR}, s0
    s_add_u32 s{S_MC}, s{S_GC}, s0
    s_lshr_b32 s{S_T}, s{S_W}, 1
    s_lshl_b32 s{S_OB}, s{S_T}, 17
    s_lshl_b32 s{S_T}, s{S_T}, 13
    s_add_u32 s{S_GC}, s{S_GC}, s{S_T}
    s_and_b32 s{S_GW}, s{S_W}, 1
    s_lshl_b32 s{S_T}, s{S_GW}, 7
    s_add_u32 s{S_OB}, s{S_OB}, s{S_T}
    s_lshl_b32 s{S_T}, s{S_GW}, 12
    s_add_u32 s{S_WR}, s{S_WR}, s{S_T}""".split('\n')
    for u in range(4):
        r += [f"s_add_u32 s{S_T}, s{S_Q}, {u}", f"s_and_b32 s{S_T}, s{S_T}, 3", f"s_lshl_b32 s{S_T}, s{S_T}, 11", f"s_add_u32 s{S_CR+u}, s{S_T}, s{S_GC}"]
    r += f"""s_and_b32 s{S_T}, s{S_H}, 3
    s_lshl2_add_u32 s{S_WB}, s{S_Q}, s{S_T}
    s_lshl_b32 s{S_WB}, s{S_WB}, 18
    s_add_u32 s{S_WB}, s{S_WB}, {WS_WO}
    s_lshl2_add_u32 s{S_XS}, s{S_TL}, s{S_T}
    s_lshl_b32 s{S_XS}, s{S_XS}, 18
    s_add_u32 s{S_XS}, s{S_XS}, s0
    s_add_u32 s{S_XS}, s{S_XS}, {WS_XB}
    s_lshl_b32 s{S_T}, s{S_T}, 8
    s_add_u32 s{S_OB}, s{S_OB}, s{S_T}
    s_lshl_b32 s{S_T}, s{S_Q}, 16
    s_add_u32 s{S_XR}, s{S_XS}, s{S_T}
    s_lshl_b32 s{S_T}, s{S_Q}, 15
    s_add_u32 s{S_OB}, s{S_OB}, s{S_T}
    s_lshl_b32 s{S_CB}, s{S_TL}, 20
    s_add_u32 s{S_CB}, s{S_CB}, s{S_T}
    s_add_u32 s{S_CB}, s{S_CB}, {WS_C}
    s_lshl_b32 s{S_T}, s{S_TL}, 18
    s_add_u32 s{S_OB}, s{S_OB}, s{S_T}
    s_add_u32 s{S_OB}, s{S_OB}, 1024
    s_lshl_b32 s{S_CD}, s{S_W}, 18
    s_lshl_b32 s{S_T}, s{S_W}, 14
    s_lshl_b32 s{S_WAB}, s{S_I}, 16
    s_add_u32 s{S_WAB}, s{S_WAB}, s{S_T}
    s_add_u32 s{S_WAB}, s{S_WAB}, {WS_WA}
    s_lshl_b32 s{S_OAB}, s{S_H}, 16
    s_add_u32 s{S_OAB}, s{S_OAB}, s0
    s_add_u32 s{S_OAB}, s{S_OAB}, {WS_OA}
    s_lshl_b32 s{S_OUT}, s{S_H}, 17
    s_lshl_b32 s{S_T}, s{S_W}, 15
    s_add_u32 s{S_OUT}, s{S_OUT}, s{S_T}
    s_lshl_b32 s{S_T}, s{S_I}, 7
    s_add_u32 s{S_OUT}, s{S_OUT}, s{S_T}""".split('\n')
    return [x.strip() for x in r] + srd(R_OUT, P_OUT, 4 << 20)
def checks():
    r = ["s_waitcnt vmcnt(4)"]
    for k in range(3): r += poll_check(V_PP + 2 * k, S_T)
    return r
def w_first(): return [x for p in range(4) for x in w_dma(p)]
def pre_join():
    r = [f"v_add_u32 v{V_CD}, s{S_CD}, v{V_L16}", f"v_add_u32 v{V_CD+1}, {131072 - 2048}, v{V_CD}", f"v_add_u32 v{V_WR}, s{S_WR}, v{V_L16}"]
    r += [f"v_add_u32 v{V_CR+u}, s{S_CR+u}, v{V_L16}" for u in range(4)]
    r += [f"s_lshl_b32 s{S_T}, s{S_W}, 14", f"v_add_u32 v{V_RR}, s{S_T}, v{V_L16}", f"v_and_b32 v{V_OUT}, 15, v1", f"v_lshlrev_b32 v{V_OUT}, 11, v{V_OUT}", "v_lshrrev_b32 v20, 4, v1",
          f"v_lshl_add_u32 v{V_OUT}, v20, 4, v{V_OUT}"]
    return r

def outproj():
    r = poll_issue('CTX', V_PC, 'PC')
    r += stamp('a2') + ["@wait PC"] + poll_check(V_PC, S_T) + stamp('pc')
    for p in range(4): r += flat(c_dma(p))
    r += ["@wait C0,W0", "s_barrier"] + rds(0)
    al = a_loads()
    for p in range(16):
        b = p & 1
        mf = []
        for T in range(4):
            for u in range(4):
                for e in range(2):
                    mf.append(mfma(vr(ACC(T, u)), vr(WFR(b, e, T)), vr(CFR(b, e, u)), vr(ACC(T, u)) if (p or e) else '0'))
        g = Gaps(mf)
        g.put(-1, "s_waitcnt lgkmcnt(0)")
        if p + 1 < 16:
            g.front(0, f"@wait C{p+1},W{p+1}", "s_barrier")
            rg = [1, 2, 4, 5, 7, 8, 10, 11, 13, 14, 16, 17, 19, 20, 22, 23]
            for x, gp in zip(rds(p + 1), rg): g.put(gp, x)
        dl = (c_dma(p + 4) + w_dma(p + 4)) if p + 4 < 16 else al[(p - 12) * 8:(p - 11) * 8]
        for (sal, x), gp in zip(dl, [3, 6, 9, 12, 15, 18, 21, 24]):
            for k, y in enumerate(sal): g.front(gp - len(sal) + k, y)
            g.put(gp, x)
        r += g.lines()
    r += stamp('opl') + ["s_nop 6"]
    for d in range(1, 4):
        r += [f"s_add_u32 s{S_T}, s{S_Q}, {d}", f"s_and_b32 s{S_T}, s{S_T}, 3", f"s_lshl_b32 s{S_T}, s{S_T}, 16", f"s_add_u32 s{S_T}, s{S_T}, s{S_XS}", f"s_add_u32 s{S_T}, s{S_T}, {d * 16384}"]
        r += [f"buffer_store_dwordx4 {vr(ACC(T, d))}, v{V_L16}, {sr(R_WS)}, s{S_T} offen offset:{T*1024} {ST} ; @XS" for T in range(4)]
    for k in range(4):
        r += [f"@wait A{k}"] + [mfma(ar(ACA(T, tb)), ar(AW(k, T)), ar(AC(k, tb)), ar(ACA(T, tb)) if k else '0') for T in range(4) for tb in range(4)]
    r += ["@wait XS"] + signal('XB', 20) + poll_issue('XB', V_PC, 'PX') + ["s_barrier"]
    r += [f"ds_write_b128 v{V_WD}, {ar(ACA(T, tb))} offset:{tb * 16384 + T * 1024}" for tb in range(4) for T in range(4)]
    r += ["s_waitcnt lgkmcnt(0)", "s_barrier"]
    r += [f"ds_read_b128 {vr(128 + (s * 4 + T) * 4)}, v{V_RR} offset:{s * 4096 + T * 1024}" for s in range(4) for T in range(4)]
    r += ["s_waitcnt lgkmcnt(0)"] + red(128, S_OUT)
    r += ["@wait PX"] + poll_check(V_PC, S_T) + stamp('px')
    for d in range(1, 4):
        r += [f"s_add_u32 s{S_T}, s{S_XR}, {d * 16384}"]
        r += [f"buffer_load_dwordx4 {vr(192 + d * 16 + T * 4)}, v{V_L16}, {sr(R_WS)}, s{S_T} offen offset:{T*1024} {LD} ; @XL" for T in range(4)]
    r += [f"v_mov_b32 v{192 + T * 4 + i}, v{ACC(T, 0) + i}" for T in range(4) for i in range(4)]
    r += ["@wait XL"] + red(192, S_OB)
    return [x.strip() for x in r]

def red(b, so):
    r = []
    for i in range(16): r += [f"v_add_f32 v{b+i}, v{b+i}, v{b+16+i}", f"v_add_f32 v{b+32+i}, v{b+32+i}, v{b+48+i}"]
    r += [f"v_add_f32 v{b+i}, v{b+i}, v{b+32+i}" for i in range(16)]
    r += [f"v_cvt_pk_bf16_f32 v{b+i}, v{b+2*i}, v{b+2*i+1}" for i in range(8)]
    r += [f"buffer_store_dwordx4 {vr(b + 4*p)}, v{V_OUT}, {sr(R_OUT)}, s{so} offen offset:{p*64} {opt('OUTST')}" for p in range(2)]
    return r
```

```python
import re, sys
import numpy as np

M32 = 0xFFFFFFFF
TRANS = {'v_exp_f32','v_log_f32','v_rcp_f32','v_rsq_f32','v_sqrt_f32','v_sin_f32','v_cos_f32'}

class Ins:
    __slots__ = ('op','args','mods','line','text','rd','wr','kind','true','fb','pf')

def regs_of(tok):
    tok = tok.strip()
    neg = tok.lstrip('-')
    if neg.startswith('abs(') : neg = neg[4:-1]
    if neg.startswith('|'): neg = neg.strip('|')
    m = re.fullmatch(r'([vas])(\d+)', neg)
    if m: return [(m.group(1), int(m.group(2)))]
    m = re.fullmatch(r'([vas])\[(\d+):(\d+)\]', neg)
    if m: return [(m.group(1), i) for i in range(int(m.group(2)), int(m.group(3)) + 1)]
    if neg == 'vcc': return [('s', 106), ('s', 107)]
    if neg == 'exec': return [('s', 126), ('s', 127)]
    if neg == 'm0': return [('s', 124)]
    return []

def parse(text):
    ins = []; labels = {}
    for ln, raw in enumerate(text.split('\n'), 1):
        s = raw.split(';')[0].strip()
        if not s or s.startswith('.'):
            continue
        m = re.fullmatch(r'([\w.$]+):', s)
        if m:
            labels[m.group(1)] = len(ins); continue
        parts = s.split(None, 1)
        op = parts[0]
        for suf in ('_e32', '_e64'):
            if op.endswith(suf): op = op[:-4]
        rest = parts[1] if len(parts) > 1 else ''
        toks = [t.strip() for t in re.split(r',(?![^\[]*\])', rest)] if rest else []
        mods = {}
        if toks:
            last = toks[-1].split()
            if op == 's_waitcnt':
                for t in rest.replace(',', ' ').split():
                    mm = re.fullmatch(r'(\w+)\((\d+)\)', t); mods[mm.group(1)] = int(mm.group(2))
                toks = []
            else:
                toks[-1] = last[0]
                for t in last[1:]:
                    if ':' in t:
                        k, v = t.split(':', 1); mods[k] = int(v, 0) if re.fullmatch(r'-?(0x)?[0-9a-fA-F]+', v) else v
                    else: mods[t] = True
        I = Ins(); I.op = op; I.args = toks; I.mods = mods; I.line = ln; I.text = s; I.true = '@true' in raw or '@taken' in raw; I.fb = '@fb' in raw; I.pf = '@PF' in raw or op.startswith('global_load')
        classify(I)
        if I.pf: I.wr = []
        ins.append(I)
    return ins, labels

def classify(I):
    op = I.op; A = I.args; rd = []; wr = []
    R = lambda i: regs_of(A[i])
    if op.startswith('v_mfma'):
        I.kind = 'mfma'; wr = R(0); rd = R(1) + R(2) + R(3)
    elif op.startswith('v_cmp'):
        I.kind = 'valu'; wr = R(0); rd = R(1) + R(2)
    elif op in ('v_readfirstlane_b32',):
        I.kind = 'valu'; wr = R(0); rd = R(1)
    elif op.startswith('v_permlane'):
        I.kind = 'valu'; wr = R(0) + R(1); rd = R(0) + R(1)
    elif op in ('v_fmac_f32',):
        I.kind = 'valu'; wr = R(0); rd = R(0) + R(1) + R(2)
    elif op == 'v_cndmask_b32':
        I.kind = 'valu'; wr = R(0); rd = R(1) + R(2) + R(3)
    elif op == 'v_nop':
        I.kind = 'valu'
    elif op.startswith('v_') and op not in ('v_add_co_u32', 'v_addc_co_u32'):
        I.kind = 'valu'; wr = R(0)
        for i in range(1, len(A)): rd += R(i)
    elif op.startswith('ds_read'):
        I.kind = 'ds'; wr = R(0); rd = R(1)
    elif op.startswith('ds_write'):
        I.kind = 'ds'; rd = R(0) + R(1)
    elif op.startswith('ds_bpermute') or op.startswith('ds_swizzle'):
        I.kind = 'ds'; wr = R(0)
        for i in range(1, len(A)): rd += R(i)
    elif op.startswith('buffer_load'):
        I.kind = 'vmem'
        if 'lds' in I.mods: rd = R(0) + R(1) + R(2) + [('s', 124)]
        else: wr = R(0); rd = R(1) + R(2) + R(3)
    elif op.startswith('buffer_store') or op.startswith('buffer_atomic'):
        I.kind = 'vmem'; rd = R(0) + R(1) + R(2) + R(3)
        if op.startswith('buffer_atomic') and 'sc0' in I.mods: wr = R(0)
    elif op.startswith('global_load'):
        I.kind = 'gld'; wr = R(0); rd = R(1)
    elif op == 's_getpc_b64':
        I.kind = 'pc'; wr = R(0)
    elif op in ('v_add_co_u32', 'v_addc_co_u32'):
        I.kind = 'valu'; wr = R(0) + R(1); rd = R(2) + R(3) + (R(4) if len(A) > 4 else [])
    elif op.startswith('s_load') or op in ('s_memtime', 's_memrealtime'):
        I.kind = 'smem'; wr = R(0); rd = R(1) if len(A) > 1 else []
    elif op.startswith('s_cmp') or op.startswith('s_bitcmp'):
        I.kind = 'salu'; rd = R(0) + R(1)
    elif op in ('s_waitcnt', 's_barrier', 's_nop', 's_endpgm', 's_branch', 's_setprio', 's_sleep', 'buffer_inv', 'buffer_wbl2') or op.startswith('s_cbranch'):
        I.kind = 'ctl'
    elif op in ('s_addk_i32',):
        I.kind = 'salu'; wr = R(0); rd = R(0)
    elif op.endswith('saveexec_b64'):
        I.kind = 'salu'; wr = R(0) + regs_of('exec'); rd = R(1) + regs_of('exec')
    elif op.startswith('s_'):
        I.kind = 'salu'; wr = R(0)
        for i in range(1, len(A)): rd += R(i)
    else:
        raise Exception('unknown op ' + I.text)
    I.rd = rd; I.wr = wr

def f2u(x): return int(np.float32(x).view(np.uint32))
INL = {'0.5': f2u(.5), '1.0': f2u(1), '2.0': f2u(2), '4.0': f2u(4), '-0.5': f2u(-.5), '-1.0': f2u(-1), '-2.0': f2u(-2), '-4.0': f2u(-4)}

class Err(Exception): pass

class Wave:
    def __init__(self, ins, labels, entry, wg, wave, arg_sizes, lds_size, policy=None, maxsteps=400000):
        self.ins = ins; self.labels = labels; self.pc = labels[entry]
        self.s = {}; self.v = {}
        self.s[0] = 0; self.s[1] = 0x7000; self.s[2] = wg
        self.s[126] = M32; self.s[127] = M32
        self.v[('v', 0)] = (np.arange(64, dtype=np.uint32) + 64 * wave)
        self.scc = None; self.wg = wg; self.wave = wave
        self.arg_sizes = arg_sizes; self.lds_size = lds_size
        self.policy = policy or {}
        self.errors = []; self.hist = []
        self.t = 0
        self.vm = []; self.lg = []
        self.epoch = 0; self.lds_ev = []; self.gl_ev = []
        self.src = {}
        self.maxsteps = maxsteps; self.nins = 0; self.counts = {}
        self.written = set([('s',0),('s',1),('s',2),('v',0),('s',126),('s',127)])
    def err(self, I, msg):
        e = f"wg{self.wg} w{self.wave} line {I.line}: {I.text} :: {msg}"
        if e not in self.errors: self.errors.append(e)
    def sval(self, tok):
        tok = tok.strip()
        r = regs_of(tok)
        if r and r[0][0] == 's': return self.s.get(r[0][1])
        if tok in INL: return INL[tok]
        try: return int(tok, 0) & M32
        except: return None
    def sval64(self, tok):
        r = regs_of(tok)
        if r:
            lo = self.s.get(r[0][1]); hi = self.s.get(r[1][1])
            if lo is None or hi is None: return None
            return lo | (hi << 32)
        try: return int(tok, 0) & 0xFFFFFFFFFFFFFFFF
        except: return None
    def vval(self, tok):
        r = regs_of(tok)
        if tok.startswith('-') and r: return None
        if r and r[0][0] in 'va': return self.v.get(r[0])
        x = self.sval(tok)
        return None if x is None else np.full(64, x, dtype=np.uint32)
    def hazards(self, I):
        rd = set(I.rd); wr = set(I.wr)
        for (P, tp) in reversed(self.hist):
            d = self.t - tp - 1
            if d >= 20: break
            pw = set(P.wr)
            need = 0; why = ''
            def req(n, w):
                nonlocal need, why
                if n > need: need = n; why = w
            pv = {x for x in pw if x[0] in 'va'}; ps = {x for x in pw if x[0] == 's'}
            if P.kind == 'valu':
                if I.kind == 'mfma' and pv & rd: req(2, 'valu->mfma')
                if P.op in TRANS and I.kind == 'valu' and I.op not in TRANS and pv & rd: req(1, 'trans->valu')
                if P.op in TRANS and I.kind in ('ds','vmem') and pv & rd: req(1, 'trans->mem(pad)')
                if I.op.startswith('v_permlane') and pv & rd: req(2, 'valu->permlane')
                if I.op == 'v_readfirstlane_b32' and pv & rd: req(1, 'valu->readfirstlane')
                if ps & rd:
                    if I.kind == 'valu': req(2, 'valu sgpr->valu')
                    if I.kind == 'vmem': req(5, 'valu sgpr->vmem')
                    if I.kind == 'mfma': req(4, 'valu sgpr->mfma')
                if any(k.startswith('row_') or k.startswith('quad_perm') for k in I.mods) and pv & rd: req(2, 'valu->dpp')
            if P.kind == 'mfma':
                np_ = 8 if '32x32' in P.op else 4
                T = {4: (6, 8, 3), 8: (10, 12, 7)}[np_]
                if I.kind == 'mfma':
                    c = regs_of(I.args[3]); ab = set(regs_of(I.args[1]) + regs_of(I.args[2]))
                    if pv & set(c):
                        if not (c == P.wr and (('32x32' in I.op) == ('32x32' in P.op))): req(T[0], 'mfma D->C overlap')
                    if pv & ab: req(T[1], 'mfma D->AB')
                    if pv & wr and not (c == P.wr): req(T[0], 'mfma D->D waw')
                elif I.kind == 'valu':
                    if pv & (rd | wr): req(T[1], 'mfma D->valu')
                    pc = set(regs_of(P.args[3]))
                    if pc & wr: req(T[2], 'mfma C war')
                elif I.kind in ('ds', 'vmem'):
                    if pv & (rd | wr): req(T[1], 'mfma D->mem')
            if P.kind == 'salu' and ('s', 124) in pw and I.kind == 'vmem' and 'lds' in I.mods: req(1, 'm0->dma')
            if P.kind in ('vmem',) and ('store' in P.op) and ('x4' in P.op or 'x3' in P.op):
                data = set(regs_of(P.args[0]))
                if data & wr: req(2 if I.kind in ('valu','mfma') else 1, 'store data war')
            if P.kind == 'ds' and P.op in ('ds_write_b128','ds_write_b96'):
                data = set(regs_of(P.args[1]))
                if data & wr and I.kind in ('valu','mfma'): req(2, 'ds_write data war(pad)')
            if d < need: self.err(I, f"hazard {why}: need {need} have {d} after line {P.line}: {P.text}")
    def check_pending(self, I):
        touched = set(I.rd) | set(I.wr)
        for q, nm in ((self.vm, 'vm'), (self.lg, 'lgkm')):
            for o in q:
                if o['regs'] & touched:
                    self.err(I, f"touches reg with pending {nm} load from line {o['line']}")
    def run(self):
        U = np.uint32
        while True:
            I = self.ins[self.pc]; self.pc += 1; self.nins += 1
            if self.nins > self.maxsteps: raise Err('too many steps')
            self.counts[I.kind] = self.counts.get(I.kind, 0) + 1
            op = I.op; A = I.args
            self.hazards(I); self.check_pending(I)
            for r in I.rd:
                if r not in self.written: self.err(I, f"reads never-written {r}")
            for r in I.rd:
                if r in self.src: self.src[r]['used'] = True
            for r in I.wr:
                self.written.add(r); self.src.pop(r, None)
            n_states = 1
            if op == 's_endpgm':
                for o in self.vm + self.lg:
                    if o.get('ev') is not None: o['ev']['done'] = (self.epoch, self.t)
                return
            elif op == 's_nop': n_states = int(A[0], 0) + 1
            elif op == 's_waitcnt':
                for q, key in ((self.vm, 'vmcnt'), (self.lg, 'lgkmcnt')):
                    if key in I.mods:
                        n = I.mods[key]
                        if key == 'lgkmcnt' and n > 0 and any(o.get('smem') for o in q): self.err(I, 'counted lgkm with smem pending')
                        while len(q) > n:
                            o = q.pop(0)
                            if o.get('ev') is not None: o['ev']['done'] = (self.epoch, self.t)
            elif op == 's_barrier': self.epoch += 1
            elif op == 's_branch': self.pc = self.labels[A[0]]
            elif op.startswith('s_cbranch'):
                c = op[10:]
                if c in ('scc0', 'scc1'):
                    if self.scc is None: raise Err(f'unknown scc at line {I.line}')
                    tk = self.scc == (c == 'scc1')
                elif c in ('execz', 'execnz'):
                    e = self.sval64('exec')
                    if e is None: tk = self.policy.get(A[0], False)
                    else: tk = (e == 0) == (c == 'execz')
                else:
                    e = self.sval64('vcc')
                    if e is None: tk = I.true or self.policy.get(A[0], False)
                    else: tk = (e == 0) == (c == 'vccz')
                if tk: self.pc = self.labels[A[0]]
            elif I.kind == 'smem':
                if op.startswith('s_load'):
                    n = len(I.wr); off = int(A[2], 0)
                    for j in range(n):
                        w = off // 4 + j
                        self.s[I.wr[j][1]] = 0 if w % 2 == 0 else (0x100 + w // 2)
                else:
                    for r in I.wr: self.s[r[1]] = None
                self.lg.append(dict(regs=set(I.wr), line=I.line, smem=True));
            elif I.kind == 'pc':
                for r in I.wr: self.s[r[1]] = None
            elif I.kind == 'gld':
                for r in I.wr: self.v[r] = None
                self.vm.append(dict(regs=set(I.wr), line=I.line, ev=None))
            elif I.kind == 'salu': self.salu(I)
            elif I.kind == 'valu': self.valu(I)
            elif I.kind == 'mfma':
                for r in I.wr: self.v[r] = None
            elif I.kind == 'ds':
                ev = None
                if op.startswith('ds_read') or op.startswith('ds_write'):
                    a = self.vval(A[1] if op.startswith('ds_read') else A[0])
                    sz = {'b128': 16, 'b64': 8, 'b32': 4, 'b16': 8}[op.split('_')[-1]]
                    if op == 'ds_read_b64_tr_b16': sz = 8
                    if a is None: self.err(I, 'unknown LDS address')
                    else:
                        a = a.astype(np.int64) + I.mods.get('offset', 0)
                        if a.max() + sz > self.lds_size: self.err(I, f'LDS OOB {a.max()}')
                        if (a % (16 if sz == 16 else sz)).any(): self.err(I, 'LDS misaligned')
                        ev = dict(w=self.wave, wr=op.startswith('ds_write'), a=a, sz=sz, lo=int(a.min()), hi=int(a.max()) + sz, iss=(self.epoch, self.t), done=None, line=I.line, op=op)
                        self.lds_ev.append(ev)
                        for r in I.wr: self.src[r] = ev
                for r in I.wr: self.v[r] = None
                self.lg.append(dict(regs=set(I.wr), line=I.line, ev=ev))
                if len(self.lg) > 15: pass
            elif I.kind == 'vmem':
                lds = 'lds' in I.mods
                vo, sr, so = (A[0], A[1], A[2]) if lds else (A[1], A[2], A[3])
                a = self.vval(vo); s0 = regs_of(sr)[0][1]
                srd = [self.s.get(s0 + j) for j in range(4)]
                sz = {'dwordx4': 16, 'dwordx2': 8, 'dword': 4, 'add': 4}[op.split('_')[-1]]
                sof = self.sval(so); ev = None
                if a is None or sof is None or None in srd: self.err(I, 'unknown global address')
                else:
                    g = a.astype(np.int64) + sof + I.mods.get('offset', 0)
                    arg = srd[1] - 0x100
                    ex = self.sval64('exec')
                    act = np.array([(ex >> l) & 1 for l in range(64)], dtype=bool) if ex is not None else np.ones(64, bool)
                    inb = (g + sz <= srd[2]) & act
                    if srd[0] + srd[2] > self.arg_sizes[arg]: self.err(I, f'SRD window exceeds buffer arg{arg}: {srd[0]:#x}+{srd[2]:#x}')
                    if (g % sz).any(): self.err(I, 'global misaligned')
                    self.gl_ev.append(dict(arg=arg, st='store' in op, a=(g + srd[0])[inb], sz=sz, line=I.line, oob=int((~inb & act).sum())))
                    if lds:
                        m0 = self.s.get(124)
                        if m0 is None: self.err(I, 'unknown m0')
                        else:
                            la = m0 + I.mods.get('offset', 0) + np.arange(64, dtype=np.int64) * sz
                            if la.max() + sz > self.lds_size: self.err(I, 'DMA LDS OOB')
                            ev = dict(w=self.wave, wr=True, a=la, sz=sz, lo=int(la.min()), hi=int(la.max()) + sz, iss=(self.epoch, self.t), done=None, line=I.line, op='dma')
                            self.lds_ev.append(ev)
                for r in I.wr: self.v[r] = None
                self.vm.append(dict(regs=set(I.wr), line=I.line, ev=ev))
                if len(self.vm) > 63: self.err(I, 'vmcnt overflow (>63 outstanding)')
            self.hist.append((I, self.t + n_states - 1 if op == 's_nop' else self.t))
            if len(self.hist) > 40: self.hist.pop(0)
            self.t += n_states
    def salu(self, I):
        op = I.op; A = I.args
        def setd(x, n=1):
            if n == 1: self.s[I.wr[0][1]] = None if x is None else x & M32
            else:
                self.s[I.wr[0][1]] = None if x is None else x & M32
                self.s[I.wr[1][1]] = None if x is None else (x >> 32) & M32
        if op.startswith('s_cmp') or op.startswith('s_bitcmp'):
            if op.endswith('u64'): a, b = self.sval64(A[0]), self.sval64(A[1])
            elif op.endswith('b64'): a, b = self.sval64(A[0]), self.sval(A[1])
            else: a, b = self.sval(A[0]), self.sval(A[1])
            if a is None or b is None: self.scc = True if I.true else (False if I.fb else None); return
            if op.startswith('s_bitcmp'): self.scc = bool((a >> b) & 1) == (op[8] == '1'); return
            c = op.split('_')[2]
            if op.endswith('i32'):
                a = a - (1 << 32) if a >> 31 else a; b = b - (1 << 32) if b >> 31 else b
            self.scc = {'eq': a == b, 'lg': a != b, 'lt': a < b, 'le': a <= b, 'gt': a > b, 'ge': a >= b}[c]; return
        if op in ('s_mov_b32', 's_movk_i32'): return setd(self.sval(A[1]))
        if op == 's_mov_b64': return setd(self.sval64(A[1]), 2)
        if op == 's_addk_i32':
            a = self.sval(A[0]); return setd(None if a is None else a + int(A[1], 0))
        if op == 's_and_saveexec_b64':
            e = self.sval64('exec'); m = self.sval64(A[1]); setd(e, 2)
            x = None if (e is None or m is None) else e & m
            self.s[126] = None if x is None else x & M32; self.s[127] = None if x is None else x >> 32
            self.scc = None if x is None else x != 0; return
        if op in ('s_or_b64', 's_and_b64', 's_andn2_b64'):
            a, b = self.sval64(A[1]), self.sval64(A[2])
            x = None if a is None or b is None else {'s_or_b64': a | b, 's_and_b64': a & b, 's_andn2_b64': a & ~b}[op]
            self.scc = None if x is None else x != 0
            return setd(x, 2)
        if op == 's_bfm_b64':
            a, b = self.sval(A[1]), self.sval(A[2])
            return setd(((1 << (a & 63)) - 1) << (b & 63), 2)
        if op == 's_cselect_b32':
            if self.scc is None: return setd(None)
            return setd(self.sval(A[1] if self.scc else A[2]))
        a, b = self.sval(A[1]), self.sval(A[2]) if len(A) > 2 else None
        if op == 's_addc_u32':
            if a is None or b is None or self.scc is None: self.scc = None; return setd(None)
            x = a + b + int(self.scc); self.scc = x > M32; return setd(x)
        if a is None or b is None:
            if op != 's_mul_i32': self.scc = None
            return setd(None)
        if op == 's_add_u32': x = a + b; self.scc = x > M32
        elif op == 's_sub_u32': x = a - b; self.scc = x < 0
        elif op == 's_add_i32': x = a + b; self.scc = None
        elif op == 's_sub_i32': x = a - b; self.scc = None
        elif op == 's_mul_i32': x = a * b
        elif op == 's_lshl_b32': x = (a << (b & 31)) & M32; self.scc = x != 0
        elif op == 's_lshr_b32': x = a >> (b & 31); self.scc = x != 0
        elif op == 's_and_b32': x = a & b; self.scc = x != 0
        elif op == 's_or_b32': x = a | b; self.scc = x != 0
        elif op == 's_xor_b32': x = a ^ b; self.scc = x != 0
        elif op == 's_min_u32': x = min(a, b); self.scc = a < b
        elif op == 's_max_u32': x = max(a, b); self.scc = a > b
        elif op == 's_lshl1_add_u32': x = (a << 1) + b; self.scc = None
        elif op == 's_lshl2_add_u32': x = (a << 2) + b; self.scc = None
        elif op == 's_bfe_u32': x = (a >> (b & 31)) & ((1 << ((b >> 16) & 127)) - 1); self.scc = x != 0
        else: raise Err('salu ' + I.text)
        setd(x)
    def valu(self, I):
        op = I.op; A = I.args; U = np.uint32
        if op == 'v_nop': return
        if op == 'v_readfirstlane_b32':
            x = self.vval(A[1]); self.s[I.wr[0][1]] = None if x is None else int(x[0]); return
        if op.startswith('v_cmp'):
            r = None
            if op.endswith('u32') or op.endswith('i32'):
                a, b = self.vval(A[1]), self.vval(A[2])
                if a is not None and b is not None:
                    if op.endswith('i32'): a = a.view(np.int32); b = b.view(np.int32)
                    c = op.split('_')[2]
                    m = {'eq': a == b, 'ne': a != b, 'lt': a < b, 'le': a <= b, 'gt': a > b, 'ge': a >= b}[c]
                    r = sum(1 << l for l in range(64) if m[l])
            self.s[I.wr[0][1]] = None if r is None else r & M32
            self.s[I.wr[1][1]] = None if r is None else r >> 32
            return
        x = None
        if op in ('v_add_co_u32', 'v_addc_co_u32'):
            self.v[I.wr[0]] = None; self.s[106] = None; self.s[107] = None; return
        src = [self.vval(t) for t in A[1:]]
        ok = all(t is not None for t in src)
        dpp = any(k.startswith('row_') or k.startswith('quad_perm') for k in I.mods)
        with np.errstate(over='ignore'):
            if not ok or dpp: x = None
            elif op in ('v_mov_b32', 'v_accvgpr_write_b32', 'v_accvgpr_read_b32', 'v_accvgpr_mov_b32'): x = src[0]
            elif op == 'v_add_u32': x = src[0] + src[1]
            elif op == 'v_sub_u32': x = src[0] - src[1]
            elif op == 'v_subrev_u32': x = src[1] - src[0]
            elif op == 'v_lshlrev_b32': x = src[1] << (src[0] & U(31))
            elif op == 'v_lshrrev_b32': x = src[1] >> (src[0] & U(31))
            elif op == 'v_and_b32': x = src[0] & src[1]
            elif op == 'v_or_b32': x = src[0] | src[1]
            elif op == 'v_xor_b32': x = src[0] ^ src[1]
            elif op == 'v_bfe_u32': x = (src[0] >> src[1]) & ((U(1) << src[2]) - U(1))
            elif op == 'v_lshl_add_u32': x = (src[0] << src[1]) + src[2]
            elif op == 'v_lshl_or_b32': x = (src[0] << src[1]) | src[2]
            elif op == 'v_and_or_b32': x = (src[0] & src[1]) | src[2]
            elif op == 'v_add_lshl_u32': x = (src[0] + src[1]) << src[2]
            elif op == 'v_add3_u32': x = src[0] + src[1] + src[2]
            elif op in ('v_mul_u32_u24', 'v_mul_lo_u32'): x = src[0] * src[1]
            elif op == 'v_mad_u32_u24': x = src[0] * src[1] + src[2]
            elif op == 'v_min_u32': x = np.minimum(src[0], src[1])
            elif op == 'v_max_u32': x = np.maximum(src[0], src[1])
            elif op == 'v_max_i32': x = np.maximum(src[0].view(np.int32), src[1].view(np.int32)).view(U)
        if op == 'v_cndmask_b32':
            m = self.sval64(A[3]); a, b = self.vval(A[1]), self.vval(A[2])
            x = None
            if m is not None and a is not None and b is not None:
                mm = np.array([(m >> l) & 1 for l in range(64)], dtype=bool); x = np.where(mm, b, a).astype(U)
        ex = self.sval64('exec')
        for r in I.wr:
            if r[0] in 'va':
                if x is not None and len(I.wr) == 1 and ex == 0xFFFFFFFFFFFFFFFF: self.v[r] = x.astype(U)
                else: self.v[r] = None

def lds_races(waves):
    errs = []
    evs = [e for w in waves for e in w.lds_ev]
    wrs = [e for e in evs if e['wr']]
    wrs.sort(key=lambda e: e['lo'])
    def overlap(a, b):
        if a['hi'] <= b['lo'] or b['hi'] <= a['lo']: return False
        sa = set((a['a'][:, None] // 4 + np.arange(a['sz'] // 4)[None]).ravel().tolist())
        sb = set((b['a'][:, None] // 4 + np.arange(b['sz'] // 4)[None]).ravel().tolist())
        return bool(sa & sb)
    from collections import defaultdict
    bk = defaultdict(list)
    for e in wrs:
        for b in range(e['lo'] // 1024, (e['hi'] - 1) // 1024 + 1): bk[b].append(e)
    seen = set()
    for e in evs:
        if not e['wr'] and not e.get('used'): continue
        cands = {}
        for b in range(e['lo'] // 1024, (e['hi'] - 1) // 1024 + 1):
            for w in bk[b]: cands[id(w)] = w
        for w in cands.values():
            if w is e: continue
            if w['w'] == e['w']:
                a, b = (w, e) if w['iss'][1] < e['iss'][1] else (e, w)
                if a['op'] != 'dma' and b['op'] != 'dma': continue
                if a['op'] == 'dma' and b['op'] == 'dma': continue
                ok = a['done'] is not None and a['done'][1] < b['iss'][1]
            else:
                ok = (w['done'][0] < e['iss'][0]) or (e['done'][0] < w['iss'][0])
            if not ok:
                key = (w['line'], e['line'])
                if key in seen: continue
                if overlap(w, e):
                    seen.add(key)
                    errs.append(f"LDS race: wave{w['w']} line {w['line']} iss{w['iss']} done{w['done']} [{w['lo']},{w['hi']}) vs wave{e['w']} line {e['line']} iss{e['iss']} done{e['done']} [{e['lo']},{e['hi']})")
    return errs

def bank_conflicts(waves):
    G128 = [list(range(0,4))+list(range(12,16))+list(range(20,28)), list(range(4,12))+list(range(16,20))+list(range(28,32))]
    G128 += [[x+32 for x in g] for g in G128]
    out = {}
    for w in waves:
        for e in w.lds_ev:
            if e['op'] == 'ds_read_b128': groups = G128; nb = 64
            elif e['op'] in ('ds_read_b64_tr_b16', 'ds_read_b64'): groups = [list(range(32)), list(range(32, 64))]; nb = 64
            elif e['op'] == 'ds_write_b128': groups = [list(range(8*i, 8*i+8)) for i in range(8)]; nb = 32
            else: continue
            worst = 1
            for g in groups:
                cnt = {}
                for l in g:
                    for j in range(e['sz'] // 4):
                        d = int(e['a'][l]) // 4 + j
                        cnt.setdefault(d % nb, set()).add(d)
                worst = max(worst, max(len(x) for x in cnt.values()))
            if worst > 1: out[e['line']] = max(out.get(e['line'], 1), worst)
    return out

ARGS = [2<<20, 1536*1024, 512*1024, 2<<20, 2<<20, 4<<20, 4<<20, 4<<20, 4<<20, 4<<20, 256, 256<<20]

def check_wg(ins, labels, entry, wg, nw, lds, policy=None, verbose=False):
    ws = []
    for w in range(nw):
        W = Wave(ins, labels, entry, wg, w, ARGS, lds, policy); W.run(); ws.append(W)
    errs = [e for W in ws for e in W.errors] + lds_races(ws)
    bc = bank_conflicts(ws)
    if bc: errs.append(f"bank conflicts (line:way): {bc}")
    if verbose:
        print(f"wg{wg}: epochs {[W.epoch for W in ws]} nins {[W.nins for W in ws]} counts {ws[0].counts} oob {[sum(e['oob'] for e in W.gl_ev) for W in ws]}")
    return ws, errs
```

```python
import sys
import common
from common import *
NAME = "concat_heads__sliding_local_dilated__compressed_kv_cla__prompt"
KN = NAME + "_kernel"
def build():
    import eng, att, op
    o = Out()
    hdr = open(f"cdna_kernels/{NAME}.s.ref").read().split('\n')
    o.l += [l for l in hdr if l.startswith(';') and '@launch' not in l]
    o("; @launch grid=(256,1,1) block=(256,1,1) lds=163840")
    o('.amdgcn_target "amdgcn-amd-amdhsa--gfx950"\n.text')
    o(head(KN))
    r = ["s_cmp_ge_u32 s2, 256", "s_cbranch_scc1 L_end", "s_load_dwordx16 s[56:71], s[0:1], 0", "s_load_dwordx8 s[72:79], s[0:1], 64"] + stamp_init()
    r += f"""v_lshrrev_b32 v1, 6, v0
    s_and_b32 s{S_X}, s2, 7
    v_readfirstlane_b32 s{S_W}, v1
    s_lshr_b32 s{S_I}, s2, 3
    s_and_b32 s{S_H}, s{S_I}, 3
    s_lshl2_add_u32 s{S_H}, s{S_X}, s{S_H}
    s_lshr_b32 s{S_I}, s{S_I}, 2""".split('\n')
    if not opt('NOCPF'):
        r += ["s_getpc_b64 s[100:101]", "L_pc:", "s_lshr_b32 s3, s2, 3", f"s_lshl2_add_u32 s3, s3, s{S_W}", "s_lshl_b32 s3, s3, 9", "v_and_b32 v4, 3, v0", "v_lshlrev_b32 v4, 7, v4",
              "v_add_u32 v4, s3, v4", "v_min_u32 v4, CODE_LEN, v4", "v_mov_b32 v5, s101", "v_add_co_u32 v4, vcc, s100, v4", "s_nop 1", "v_addc_co_u32 v5, vcc, 0, v5, vcc",
              "s_mov_b64 exec, 15", "global_load_dword v3, v[4:5], off", "s_mov_b64 exec, -1"]
    SG = 49 if opt('DP') == '1' else 43
    hooks = {('wait', SG): ['STV', 'STK'], ('wait', 41): ['NON']}
    J = '\n'.join
    hooks[('misc', 34)] = [(28, J(["v_mov_b32 v15, 0", f"buffer_load_dword v14, v15, {sr(R_X)}, 0 offen sc1 ; @NON"]))]
    hooks[('misc', 41)] = [(30, J(poll_check(14, 100, R_X, "v_cmp_eq_u32 vcc, 0, v14") + [f"v_readfirstlane_b32 s{S_NON}, v14"]))]
    hooks[('misc', SG)] = [(4, J(signal('KV', 124)))]
    hooks[('misc', 50)] = [(1, x) for x in reversed(att.early_setup()[:6])] + [(3, att.early_setup()[6])]
    hooks[('misc', 52)] = [(3, J(poll_issue('KV', 14, 'PKV')))]
    hooks[('wait', 56)] = ['PKV']
    hooks[('misc', 56)] = [(3, J(poll_check(14, 100))), (10, J(op.relayout_stores()))]
    hooks[('misc', 48)] = [(1, J(op.relayout_loads()))]
    hooks[('wait', 55)] = ['WO']
    hooks[('misc', 55)] = [(1, J(op.relayout_reads()))]
    p1 = att.prologue1()
    sl = [(G, gp) for G in range(51, 57) for gp in (2, 4, 6, 8, 10, 12)]
    assert len(p1) <= len(sl)
    for x, (G, gp) in zip(p1, sl): hooks[('seq', G)] = hooks.get(('seq', G), []) + [(gp, x)]
    for k, x in enumerate(eng.a_masks()): hooks[('misc', 57 + k)] = [(1, x)]
    for c, G in enumerate((58, 59, 61)): hooks[('dma', G)] = att.chunk_dma(c)
    r += eng.engine(hooks) + stamp('eng')
    stop = opt('STOP')
    aa = eng.a_attention(); ch = [x for c in range(3, 7) for x in att.chunk_dma(c)]
    mix = []; pos = 30
    for k, x in enumerate(aa):
        mix.append(x)
        if k >= pos and ch and x.startswith('v_') and not x.startswith('v_mfma') and not aa[k + 1].startswith('v_permlane'):
            sal, d = ch.pop(0); mix = mix[:-1] + sal + [x, d]; pos = k + 8
    assert not ch
    r += ["@wait C1", "s_barrier"] + att.k0reads() + stamp('j1') + mix + stamp('aa') + att.prologue2(op.scalars()) + ["@wait STO"] + stamp('att')
    r += att.main_loop(signal('OA', 116) + signal('WO', 116) + signal('WA', 116, [f"s_and_b32 s100, s{S_H}, 7", "s_cmp_lg_u32 s100, 0"]), op.polls(), op.checks(), op.w_first())
    r += stamp('epi') + op.pre_join() + ["@wait CST"] + stamp('vm0') + ["s_barrier"] + signal('CTX', 20) + stamp('op0')
    r += op.outproj()
    r += stamp_end(0) + ["s_endpgm"] + att.fallback()
    lines = []
    for x in r: lines += [y.strip() for y in x.split('\n')]
    lines = VmQ().scan(lines)
    import align
    clen = sum(align.size(x.replace('CODE_LEN', '1000')) for x in lines) - 256
    o.ext([x.replace('CODE_LEN', str(clen)) for x in lines])
    o("L_end:\ns_endpgm")
    o(kd(KN, 512, 256))
    return o.text()
if __name__ == '__main__':
    common.INSTR = len(sys.argv) > 2 and sys.argv[2] == 'instr'
    t = build()
    open(sys.argv[1], 'w').write(t)
    import sim
    ins, labels = sim.parse(t)
    bad = 0
    for wg in ([0, 37, 131, 255] if not opt('QUICK') else [0]):
        ws, errs = sim.check_wg(ins, labels, KN, wg, 4, 163840, verbose=True, policy={'AT_fb': wg in (37, 255)})
        for e in errs[:12]: print("  ERR", e)
        bad += len(errs)
    print("errors:", bad)
```

```python
import math, os, struct
def opt(k, d=''): return os.environ.get(k, d)
HS = 65 * 16384
WS_KV = 0
WS_C = 36 << 20
WS_OA = 52 << 20
WS_WO = 56 << 20
WS_WA = 60 << 20
WS_XB = 64 << 20
WS_END = 80 << 20
OOB = 0x40000000
NEG_BIG = 0xf149f2ca
def f2u(x): return struct.unpack('<I', struct.pack('<f', x))[0]
def vr(b, n=4): return f"v[{b}:{b+n-1}]" if n > 1 else f"v{b}"
def ar(b, n=4): return f"a[{b}:{b+n-1}]" if n > 1 else f"a{b}"
def sr(b, n=4): return f"s[{b}:{b+n-1}]" if n > 1 else f"s{b}"

class Out:
    def __init__(self): self.l = []
    def __call__(self, s):
        for x in s.split('\n'):
            x = x.strip()
            if not x: continue
            if x.endswith(':') or x.startswith('.') or x.startswith(';'): self.l.append(x)
            else: self.l.append('    ' + x)
    def ext(self, lst):
        for x in lst: self(x)
    def text(self): return '\n'.join(self.l) + '\n'

class Gaps:
    def __init__(self, mf):
        self.mf = mf; self.g = {i: [] for i in range(-1, len(mf))}
    def put(self, i, *ins):
        i = min(i, len(self.mf) - 1); self.g[i] += list(ins)
    def front(self, i, *ins):
        i = min(i, len(self.mf) - 1); self.g[i] = list(ins) + self.g[i]
    def lines(self):
        r = list(self.g[-1])
        for i, m in enumerate(self.mf): r += [m] + self.g[i]
        return r
    def emit(self, o): o.ext(self.lines())

def mfma(d, a, b, c): return f"v_mfma_f32_16x16x32_bf16 {d}, {a}, {b}, {c}"

P_XA, P_WQKV, P_WO_A, P_XB, P_CKV, P_WQ, P_WUK, P_WUV, P_WO, P_OUT, P_DBG, P_WS = [56 + 2 * i for i in range(12)]
def srd(base, ptr, nrec, add=None):
    if opt('NOACT') and ptr in (P_XA, P_XB, P_CKV): nrec = 0
    if opt('NOW') and ptr in (P_WQ, P_WUK, P_WUV, P_WQKV): nrec = 0
    if add is None: r = [f"s_mov_b32 s{base}, s{ptr}", f"s_mov_b32 s{base+1}, s{ptr+1}"]
    else: r = [f"s_add_u32 s{base}, s{ptr}, {add}", f"s_addc_u32 s{base+1}, s{ptr+1}, 0"]
    return r + [f"s_mov_b32 s{base+2}, {nrec}", f"s_mov_b32 s{base+3}, 0x20000"]
R_A0, R_A1, R_W0, R_W1, R_WS, R_X = 4, 8, 12, 16, 20, 24
S_W = 28; S_H = 29; S_I = 30
S_X = 31

def kd(name, vgpr, acc, sgpr=102):
    return f""".section .rodata,"a"
.p2align 6
.amdhsa_kernel {name}
  .amdhsa_next_free_vgpr {vgpr}
  .amdhsa_next_free_sgpr {sgpr}
  .amdhsa_accum_offset {acc}
  .amdhsa_group_segment_fixed_size 0
  .amdhsa_kernarg_size 96
  .amdhsa_user_sgpr_count 2
  .amdhsa_user_sgpr_kernarg_segment_ptr 1
  .amdhsa_system_sgpr_workgroup_id_x 1
.end_amdhsa_kernel
.text
"""
def head(name): return f".globl {name}\n.p2align 8\n.type {name},@function\n{name}:\n"

class VmQ:
    def __init__(self): self.q = []
    def scan(self, lines):
        out = []
        for x in lines:
            if x.startswith('@wait'):
                p = x.split()
                n = min(self.need(t) for t in p[1].split(','))
                extra = ' '.join(p[2:])
                out.append(f"s_waitcnt vmcnt({min(n, 63)}) {extra}".strip())
                continue
            if x.startswith('buffer_') or x.startswith('global_'):
                tag = x.split('@')[1].strip() if '@' in x else '-'
                if tag != 'skip': self.q.append(tag)
            out.append(x)
        return out
    def need(self, tag):
        idx = [i for i, t in enumerate(self.q) if t == tag]
        if not idx: return 63
        return len(self.q) - 1 - idx[-1]

INSTR = False
def stamp(name):
    names = opt('STAMPS', 'go,k,eng,att,f,pc').split(',')
    if name not in names: return []
    i = names.index(name) + 1
    return [f"{'s_memtime' if opt('CYC') else 's_memrealtime'} s[{84+2*i}:{85+2*i}]", "s_waitcnt lgkmcnt(0)"] if globals()["INSTR"] else []
def stamp_init():
    if not globals()["INSTR"]: return []
    return [("s_memtime" if opt('CYC') else "s_memrealtime") + " s[84:85]", "s_memtime s[80:81]"] + [f"s_mov_b32 s{84+2*i}, 0" for i in range(1, 8)]
def stamp_end(kidx):
    if not globals()["INSTR"]: return []
    r = f"""s_waitcnt vmcnt(0) lgkmcnt(0)
    {'s_memtime' if opt('CYC') else 's_memrealtime'} s[98:99]
    s_memtime s[82:83]
    s_add_u32 s4, s{P_WS}, {(128 << 20) + kidx * 65536}
    s_addc_u32 s5, s{P_WS+1}, 0
    s_mov_b32 s6, 65536
    s_mov_b32 s7, 0x20000
    s_waitcnt lgkmcnt(0)
    s_sub_u32 s82, s82, s80
    s_lshl_b32 s80, s2, 8
    s_lshl_b32 s81, s{S_W}, 6
    s_add_u32 s80, s80, s81
    v_mov_b32 v253, s80
    v_mov_b32 v252, s82""".split('\n')
    if opt('DBGOUT'):
        q = ["s_waitcnt vmcnt(0) lgkmcnt(0)", "s_memrealtime s[98:99]", "s_waitcnt lgkmcnt(0)", f"s_cmp_lg_u32 s{S_W}, 3", "s_cbranch_scc1 L_dx", "s_and_b32 s80, s2, 0xfb", "s_cmp_lg_u32 s80, 0", "s_cbranch_scc1 L_dx",
             "s_mul_i32 s80, s2, 7", "s_add_u32 s80, s80, 4", "v_mov_b32 v253, s80", "s_mov_b64 exec, 1"]
        for i in range(1, 8):
            q += [f"s_sub_u32 s81, s{84+2*i}, s84", "v_mov_b32 v252, s81", f"buffer_store_dword v252, v253, {sr(R_X)}, 0 offen offset:{4*(i-1)}"]
        return q + ["L_dx:"]
    for i in range(8): r.append(f"v_mov_b32 v{244+i}, s{84+2*i}")
    r += ["s_mov_b64 exec, 1", "buffer_store_dwordx4 v[244:247], v253, s[4:7], 0 offen", "buffer_store_dwordx4 v[248:251], v253, s[4:7], 0 offen offset:16",
          "buffer_store_dword v252, v253, s[4:7], 0 offen offset:32"]
    return [x.strip() for x in r]

WS_MB = 55 << 20
MB = {'CTX': (0, 8), 'KV': (32, 8), 'OA': (64, 8), 'WA': (112, 4), 'WO': (128, 16), 'XB': (192, 16)}
S_NON = 3
uidc = [0]
def signal(kind, v, cond=()):
    uidc[0] += 1; l = f"SG{uidc[0]}"
    r = ([f"s_cmp_lg_u32 s{S_W}, 0", f"s_cbranch_scc1 {l}"] if kind != 'XB' else []) + list(cond) + ([f"s_cbranch_scc1 {l}"] if cond else [])
    X, Jv = v, v + 1
    if kind == 'KV':
        r += [f"v_mov_b32 v{X}, s{S_X}", f"s_and_b32 s100, s{S_H}, 3", f"v_lshl_add_u32 v{Jv}, v1, 2, s100"]; n = 8
        word = [f"s_mov_b32 s100, s{S_I}"]
    elif kind == 'OA':
        r += [f"s_lshr_b32 s100, s53, 2", f"v_mov_b32 v{X}, s100", f"s_and_b32 s100, s53, 3", f"v_lshl_add_u32 v{Jv}, v1, 2, s100"]; n = 8
        word = [f"s_and_b32 s100, s{S_H}, 7"]
    elif kind == 'WA':
        r += [f"v_lshrrev_b32 v{X}, 2, v1", f"v_and_b32 v{Jv}, 3, v1", f"s_lshl_b32 s100, s{S_I}, 2", f"v_add_u32 v{Jv}, s100, v{Jv}"]; n = 32
        word = [f"s_lshr_b32 s100, s{S_H}, 3"]
    elif kind == 'WO':
        r += [f"s_and_b32 s100, s{S_X}, 6", f"v_and_b32 v{X}, 1, v1", f"v_add_u32 v{X}, s100, v{X}", f"v_lshrrev_b32 v{Jv}, 1, v1", f"s_lshr_b32 s100, s{S_I}, 1",
              f"v_lshl_add_u32 v{Jv}, v{Jv}, 2, s100"]; n = 16
        word = [f"s_and_b32 s100, s{S_H}, 7", "s_lshl_b32 s100, s100, 1", f"s_and_b32 s101, s{S_I}, 1", "s_add_u32 s100, s100, s101"]
    elif kind == 'CTX':
        r += [f"s_and_b32 s100, s{S_X}, 6", f"v_and_b32 v{X}, 1, v1", f"v_add_u32 v{X}, s100, v{X}", f"v_lshrrev_b32 v{Jv}, 1, v1", f"s_lshl_b32 s100, s{S_I}, 2",
              f"v_add_u32 v{Jv}, s100, v{Jv}"]; n = 8
        word = [f"s_and_b32 s100, s{S_H}, 7"]
    else:
        r += [f"v_lshl_add_u32 v{X}, v1, 1, s{S_X}", f"v_and_b32 v{X}, 7, v{X}", "s_lshr_b32 s100, s2, 3", f"v_mov_b32 v{Jv}, s100"]; n = 4
        word = [f"s_mov_b32 s100, s{S_W}"]
    r += [f"v_lshl_add_u32 v{v+2}, v{Jv}, 3, v{X}", f"v_lshlrev_b32 v{v+2}, 9, v{v+2}"]
    if kind == 'XB': r += [f"v_lshl_add_u32 v{v+2}, v1, 4, v{v+2}"]
    r += word + ["s_lshl_b32 s100, s100, 2", f"s_add_u32 s100, s100, {WS_MB + MB[kind][0]}", f"v_mov_b32 v{v}, s{S_NON}", f"s_mov_b64 exec, {(1 << n) - (2 if kind == 'XB' else 1):#x}",
          f"buffer_store_dword v{v}, v{v+2}, {sr(R_WS)}, s100 offen sc1 ; @skip", "s_mov_b64 exec, -1", f"{l}:"]
    return r
def poll_issue(kind, vd, tag):
    off, n = MB[kind]
    if kind == 'XB':
        return [f"s_lshl_b32 s100, s2, 7", f"s_add_u32 s100, s100, s{S_W}", "s_lshl_b32 s100, s100, 2", f"s_add_u32 s100, s100, {WS_MB + off}", f"v_and_b32 v{vd+1}, 3, v1",
                f"v_max_u32 v{vd+1}, 1, v{vd+1}", f"v_lshl_add_u32 v{vd+1}, v{vd+1}, 4, s100", f"buffer_load_dword v{vd}, v{vd+1}, {sr(R_WS)}, 0 offen sc1 ; @{tag}"]
    return [f"s_lshl_b32 s100, s2, 9", f"s_add_u32 s100, s100, {WS_MB + off}", f"v_and_b32 v{vd+1}, {n-1}, v1", f"v_lshl_add_u32 v{vd+1}, v{vd+1}, 2, s100",
            f"buffer_load_dword v{vd}, v{vd+1}, {sr(R_WS)}, 0 offen sc1 ; @{tag}"]
def poll_check(vd, st, R=None, cmp=None):
    uidc[0] += 1; l = f"PL{uidc[0]}"
    R = R_WS if R is None else R
    return [f"s_mov_b32 s{st}, 0x20000", f"{l}:", cmp or f"v_cmp_ne_u32 vcc, s{S_NON}, v{vd}", f"s_cbranch_vccz {l}x ; @taken",
            f"s_sub_u32 s{st}, s{st}, 1", f"s_cbranch_scc1 {l}x", "s_sleep 4",
            f"buffer_load_dword v{vd}, v{vd+1}, {sr(R)}, 0 offen sc1 ; @skip", "s_waitcnt vmcnt(0)", f"s_branch {l}", f"{l}x:"]
```

```python
from common import *
from eng import QF, V_L16, ST
A_, B_, C_, D_ = 0, 1, 2, 3
def Q(b, s): return ar(QF(b, s))
def K(t, s): return ar((t * 4 + s) * 4)
def V(dt): return ar(32 + dt * 4)
def S(b, t): return 16 + b * 8 + t * 4
V_E = 48
def P(b): return 64 + b * 4
def CI(b, t): return 80 + b * 8 + t * 4
V_M = 112; V_T = 116; V_L = 124
def O(b, dt): return 128 + b * 32 + dt * 4
V_DMA = 13; V_RA = 14; V_THR = 15
S_N = 64; S_US = 65; S_UL = 66; S_USM = 67; S_ULM = 68; S_RA = 69; S_SOFF = 55; S_BM = 56
S_T = 62; S_CL = 70; S_CS = 71; S_FL = 58
R_KV = R_A1

def exps(b, e0): return [f"v_exp_f32 v{e0+i}, v{S(b,0)+i}" for i in range(8)]
def cvts(b, e0): return [f"v_cvt_pk_bf16_f32 v{P(b)+i}, v{e0+2*i}, v{e0+2*i+1}" for i in range(4)]
V_L2 = 120
def adds(b, e0):
    if opt('X_NOADD'): return []
    if opt('X_ACC2'): return [f"v_add_f32 v{(V_L2 if i & 1 else V_L)+b}, v{(V_L2 if i & 1 else V_L)+b}, v{e0+i}" for i in range(8)]
    return [f"v_add_f32 v{V_L+b}, v{V_L+b}, v{e0+i}" for i in range(8)]
def qk(b, first=False):
    return [mfma(vr(S(b, t)), K(t, s), Q(b, s), ('0' if first else vr(CI(b, t))) if s == 0 else vr(S(b, t))) for t in range(2) for s in range(4)]
def pv(b): return [mfma(vr(O(b, dt)), V(dt), vr(P(b)), vr(O(b, dt))) for dt in range(8)]
def vreads(): return [f"ds_read_b128 {V(dt)}, v{V_RA} offset:{8192 + dt*1024}" for dt in range(8)]
def kreads(): return [f"ds_read_b128 {K(i>>2, i&3)}, v{V_RA} offset:{i*1024}" for i in range(8)]
def dmas(tag='KV'): return [f"buffer_load_dwordx4 v{V_L16}, {sr(R_KV)}, s{S_SOFF} offen offset:{j*1024} {opt('LD_POL','sc1')} lds ; @{tag}" for j in range(4)]
uid = [0]
def barblk(mode, vm=8, lg=0):
    if mode == 'odd': return [f"s_waitcnt lgkmcnt({lg})"] if lg == 0 else []
    if mode == 'even': return [f"s_waitcnt vmcnt({vm}) lgkmcnt({lg})", "s_barrier"]
    uid[0] += 1; l = f"AT_nb{uid[0]}"
    return [f"s_waitcnt lgkmcnt({lg})", *barbit(), f"s_cbranch_scc0 {l}", f"s_waitcnt vmcnt({vm})", "s_barrier", f"{l}:"]
S_DM = 72; S_DX = 73; S_LS = 69; S_EV = 1
V_XC = 12
UPD = [f"s_add_u32 s{S_SOFF}, s{S_SOFF}, 16384", f"s_and_b32 s{S_DM}, s{S_SOFF}, 0x1ffff", f"s_cmp_lt_u32 s{S_SOFF}, s{R_KV+2}", f"s_cselect_b32 m0, s{S_DM}, s{S_DX}"]
RADDR = f"v_xor_b32 v{V_RA}, s{S_DM}, v{V_XC}"
def barbit(): return [f"s_lshr_b32 s{S_N}, s{S_SOFF}, 14", f"s_sub_u32 s{S_N}, s{S_N}, 6", f"s_bitcmp1_b64 s[{S_BM}:{S_BM+1}], s{S_N}"]

def spread(g, lst, gaps):
    gaps = list(gaps)
    assert len(lst) <= len(gaps), (len(lst), len(gaps))
    for x, gp in zip(lst, gaps): g.put(gp, x)

V_EB = 8
def ex(b, t, e): return [f"v_exp_f32 v{e+i}, v{S(b,t)+i}" for i in range(4)]
def cv(b, t, e): return [f"v_cvt_pk_bf16_f32 v{P(b)+2*t+i}, v{e+2*i}, v{e+2*i+1}" for i in range(2)]
def ad(b, e, n=4): return [] if opt('X_NOADD') else [f"v_add_f32 v{V_L+b}, v{V_L+b}, v{e+i}" for i in range(n)]

def place(g, items, cap):
    used = {k: 0 for k in cap}
    for x, lo, hi in items:
        win = [k for k in cap if lo <= k <= hi]
        free = [k for k in win if used[k] < cap[k]]
        k = free[0] if free else min(win, key=lambda q: (used[q] - cap[q], q))
        used[k] += 1; g.put(k, x)

ONES = ar(128)
def LM(b): return 132 + 4 * b
def msum(b): return mfma(ar(LM(b)), ONES, vr(P(b)), ar(LM(b)))
def MS(): return {'abcd'.index(c) for c in opt('MSUM', 'ab')}

def period(typ, mode, extra=()):
    E0, E1, EB = V_E, V_E + 8, V_EB
    ms = MS()
    dm = dmas(); kr = kreads(); vr_ = vreads()
    W = lambda lst, lo, hi: [(x, lo, hi) for x in lst]
    AD = lambda b, e, lo, hi, n=4: [] if b in ms else W(ad(b, e, n), lo, hi)
    if typ == 'F':
        g = Gaps(pv(A_) + ([msum(A_)] if A_ in ms else []) + pv(B_) + ([msum(B_)] if B_ in ms else []))
        g.put(-1, *vr_[4:]); g.put(-1, *ex(B_, 1, E0 + 4)); g.put(-1, *barblk(mode, 0))
        for i, (sal, x) in enumerate(extra):
            for k, y in enumerate(sal): g.put(i - 1, y)
            g.put(i, x)
        spread(g, cv(B_, 0, EB) + cv(B_, 1, E0 + 4) + ([] if B_ in ms else ad(B_, EB) + ad(B_, E0 + 4)), range(12))
        return g.lines()
    if typ == 'D':
        order = [A_, C_, B_, D_]; nq = 32; kb = 24
        g = Gaps(qk(A_) + qk(C_) + qk(B_) + qk(D_) + pv(A_) + pv(C_) + pv(B_) + pv(D_))
        e = ex(B_, 1, E0 + 4) + ex(D_, 0, E1) + ex(D_, 1, E1 + 4) + ex(A_, 0, E0) + ex(A_, 1, E0 + 4) + ex(C_, 0, E1) + ex(C_, 1, E1 + 4) + ex(B_, 0, EB)
        dg = [43, 51, 41, 49]
        it = W(cv(B_, 0, EB), 1, 23) + AD(B_, EB, 1, 23) + W(cv(B_, 1, E0 + 4), 9, 23) + AD(B_, E0 + 4, 9, 23) + AD(D_, E1, 15, 39) + W(cv(D_, 0, E1), 15, 39)
        it += W(cv(D_, 1, E1 + 4), 23, 39) + AD(D_, E1 + 4, 23, 39) + AD(A_, E0, 31, 63) + W(cv(A_, 0, E0) + cv(A_, 1, E0 + 4), 41, 63) + AD(A_, E0 + 4, 39, 63)
        it += AD(C_, E1, 47, 63) + W(cv(C_, 0, E1), 49, 63) + W(cv(C_, 1, E1 + 4), 55, 63) + AD(C_, E1 + 4, 55, 63)
        lp = 'AT_D'; lim = S_USM
    elif typ == 'S':
        order = [A_, B_]; nq = 16; kb = 8
        g = Gaps(qk(A_) + qk(B_) + pv(A_) + pv(B_))
        e = ex(B_, 1, E0 + 4) + ex(A_, 0, E1) + ex(A_, 1, E1 + 4) + ex(B_, 0, EB)
        dg = eval(opt('SDG', '[15, 19, 27, 13]'))
        it = W(cv(B_, 0, EB), 1, 21) + AD(B_, EB, 1, 21) + W(cv(B_, 1, E0 + 4), 5, 21)[:1] + W(cv(B_, 1, E0 + 4), 7, 21)[1:] + AD(B_, E0 + 4, 7, 31) + AD(A_, E1, 15, 31)
        it += W(cv(A_, 0, E1) + cv(A_, 1, E1 + 4), 25, 31) + AD(A_, E1 + 4, 23, 31)
        lp = 'AT_S'; lim = S_LS
    else:
        order = [A_, C_, B_, D_]; nq = 16; kb = 8
        g = Gaps(qk(A_) + qk(B_) + pv(A_) + pv(C_) + pv(B_) + pv(D_))
        e = ex(B_, 1, E0 + 4) + ex(D_, 0, E1) + ex(D_, 1, E1 + 4) + ex(A_, 0, E0) + ex(A_, 1, E0 + 4) + ex(B_, 0, EB)
        dg = [27, 35, 25, 33]
        it = W(cv(B_, 0, EB), 1, 23) + AD(B_, EB, 1, 23) + W(cv(B_, 1, E0 + 4), 7, 23) + AD(B_, E0 + 4, 7, 23) + W(cv(D_, 0, E1), 15, 37) + W(cv(D_, 1, E1 + 4), 23, 37)
        it += AD(D_, E1, 23, 47, 8) + W(cv(A_, 0, E0), 31, 47) + AD(A_, E0, 31, 47) + W(cv(A_, 1, E0 + 4), 39, 47) + AD(A_, E0 + 4, 39, 47)
    n = len(g.mf)
    g.put(-1, "s_waitcnt lgkmcnt(4)")
    spread(g, e, range(0, n, 2))
    ds = list(zip(vr_[4:], (1, 3, 5, 7))) + list(zip(kr, range(kb + 1, kb + 17, 2))) + list(zip(vr_[:4], range(n - 7, n, 2)))
    for x, gp in ds: g.put(gp, x)
    g.put(7, RADDR)
    sums = [(nq + 8 * k + 7, b) for k, b in enumerate(order) if b in ms]
    tail = [z for z in sums if z[0] == n - 1 and not opt('TAILDMA')]
    sums = [z for z in sums if z not in tail]
    dg = sorted(dg[:4 - min(len(sums), 4)])
    cap = {k: 2 for k in range(1, n, 2)}
    for _, gp in ds: cap[gp] -= 1
    for gp in dg: cap[gp] -= 1
    cap[7] -= 1
    ev = sorted([(gp, None) for gp in dg] + sums, key=lambda z: z[0])
    late = []
    for (gp, b), x in zip(ev, dm):
        if b is None: g.put(gp, x)
        else: late.append((gp, [msum(b), x]))
    place(g, it, cap)
    for gp, x in late: g.put(gp, *x)
    for gp, b in tail: g.put(gp, msum(b))
    g.front(kb, *barblk(mode, lg=0 if typ == 'D' else 4))
    for i, x in enumerate(UPD): g.front(kb + 1 + i, x)
    if typ != 'D': g.front(15, "s_waitcnt lgkmcnt(3)")
    if typ == 'T':
        fr = [k for k in range(16, n) if not any(z.startswith('s_') for z in g.g[k])]
        per = -(-len(extra) // len(fr))
        for i, k in enumerate(fr): g.front(k, *extra[i * per:(i + 1) * per])
        return g.lines()
    g.front(kb + 6, f"s_cmp_lt_u32 s{S_SOFF}, s{lim}")
    if mode == 'even': g.put(n - 1, f"s_cbranch_scc0 {lp}x")
    else: g.put(n - 1, f"s_cbranch_scc1 {lp}e")
    return g.lines()

def epilogue(blks):
    ms = MS(); r = []
    vb = [b for b in blks if b not in ms]
    for sw in ('32', '16'):
        if not vb: break
        r += [f"v_mov_b32 v{V_T+b}, v{V_L+b}" for b in vb] + ["s_nop 1"]
        r += [f"v_permlane{sw}_swap_b32 v{V_L+b}, v{V_T+b}" for b in vb]
        r += [f"v_add_f32 v{V_L+b}, v{V_L+b}, v{V_T+b}" for b in vb]
    if not vb: r += ["s_nop 6"]
    r += [f"v_accvgpr_read_b32 v{V_L+b}, a{LM(b)}" for b in blks if b in ms]
    for b in blks:
        fl = S_FL + (2 if b >= 2 else 0)
        r += [f"v_cmp_nle_f32 vcc, v{V_L+b}, v{V_THR}", f"v_rcp_f32 v{RC(b)}, v{V_L+b}", f"s_or_b64 s[{fl}:{fl+1}], s[{fl}:{fl+1}], vcc"]
    for b in blks:
        sc = S_CS if b >= 2 else S_CL
        if b & 1: r.append(f"s_add_u32 s{S_T}, s{sc}, 131072")
        r += norm_store(b, S_T if b & 1 else sc, 'CST')
    return r
def RC(b): return V_T + 2 * (b & 1)

def norm_store(b, so, tag):
    r = []
    for s in range(4):
        base = O(b, 2 * s)
        r += [f"v_pk_mul_f32 {vr(base+2*i, 2)}, {vr(base+2*i, 2)}, {vr(RC(b), 2)} op_sel_hi:[1,0]" for i in range(4)]
        r += [f"v_cvt_pk_bf16_f32 v{base+i}, v{base+2*i}, v{base+2*i+1}" for i in range(4)]
        r.append(f"buffer_store_dwordx4 {vr(base)}, v{V_L16}, {sr(R_WS)}, s{so} offen offset:{s*1024} {ST} ; @{tag}")
    return r

def fallback():
    S_U = S_N; S_K = S_LS; S_LIM = S_USM; S_DST = S_ULM
    M = V_T; AL = V_T + 2; TM = CI(0, 0)
    r = ["AT_fb:", "s_waitcnt vmcnt(0) lgkmcnt(0)", f"s_cmp_eq_u64 s[{S_FL}:{S_FL+1}], 0 ; @fb", "s_cbranch_scc1 AT_fb2",
         f"s_mov_b64 s[{S_FL}:{S_FL+1}], 0", f"s_mov_b32 s{S_LIM}, s{S_UL}", f"s_mov_b32 s{S_DST}, s{S_CL}", "s_branch AT_fbgo",
         "AT_fb2:", f"s_cmp_eq_u64 s[{S_FL+2}:{S_FL+3}], 0 ; @fb2", "s_cbranch_scc1 AT_fbx",
         f"s_mov_b64 s[{S_FL+2}:{S_FL+3}], 0", f"s_mov_b32 s{S_LIM}, s{S_US}", f"s_mov_b32 s{S_DST}, s{S_CS}"]
    r += [f"v_accvgpr_mov_b32 a{QF(0,0)+i}, a{QF(2,0)+i}" for i in range(32)]
    r += ["AT_fbgo:", f"s_lshr_b32 s{S_LIM}, s{S_LIM}, 14", f"s_sub_u32 s{S_LIM}, s{S_LIM}, 6", f"s_mov_b32 s{S_U}, 0", f"s_mov_b32 s{S_K}, 0"]
    r += [f"v_mov_b32 v{O(0,0)+i}, 0" for i in range(64)]
    r += [f"v_mov_b32 v{M+b}, {NEG_BIG:#x}" for b in range(2)] + [f"v_mov_b32 v{V_L+b}, 0" for b in range(2)]
    r += ["AT_fbl:"]
    for i in range(16):
        if i % 4 == 0: r.append(f"s_add_u32 s{S_T}, s{S_K}, {i * 1024 + (16384 if i >= 8 else 0)}")
        r.append(f"buffer_load_dwordx4 {ar(i * 4)}, v{V_L16}, {sr(R_KV)}, s{S_T} offen offset:{(i & 3) * 1024} sc1 ; @skip")
    r += ["s_waitcnt vmcnt(0)"] + qk(A_, 1) + qk(B_, 1) + ["s_nop 7", f"s_cmp_lg_u32 s{S_U}, s{S_LIM}", "s_cbranch_scc1 AT_fbn"] + maskblk(A_, S) + ["AT_fbn:"]
    for b in range(2):
        s0 = S(b, 0); t = TM + b
        r += [f"v_max3_f32 v{t}, v{s0}, v{s0+1}, v{s0+2}", f"v_max3_f32 v{t}, v{t}, v{s0+3}, v{s0+4}", f"v_max3_f32 v{t}, v{t}, v{s0+5}, v{s0+6}",
              f"v_max3_f32 v{t}, v{t}, v{s0+7}, v{M+b}"]
    for sw in ('32', '16'):
        r += [f"v_mov_b32 v{TM+2+b}, v{TM+b}" for b in range(2)] + ["s_nop 1"]
        r += [f"v_permlane{sw}_swap_b32 v{TM+b}, v{TM+2+b}" for b in range(2)]
        r += [f"v_max_f32 v{TM+b}, v{TM+b}, v{TM+2+b}" for b in range(2)]
    for b in range(2):
        r += [f"v_sub_f32 v{AL+b}, v{M+b}, v{TM+b}", f"v_exp_f32 v{AL+b}, v{AL+b}", f"v_mov_b32 v{M+b}, v{TM+b}"]
        r += [f"v_sub_f32 v{S(b,0)+i}, v{S(b,0)+i}, v{M+b}" for i in range(8)] + exps(b, V_E + 8 * b)
        r += [f"v_mul_f32 v{V_L+b}, v{V_L+b}, v{AL+b}"] + [f"v_mul_f32 v{O(b,0)+i}, v{O(b,0)+i}, v{AL+b}" for i in range(32)]
        r += cvts(b, V_E + 8 * b) + [f"v_add_f32 v{V_L+b}, v{V_L+b}, v{V_E+8*b+i}" for i in range(8)]
    r += ["s_nop 1"] + pv(A_) + pv(B_)
    r += [f"s_add_u32 s{S_K}, s{S_K}, 16384", f"s_add_u32 s{S_U}, s{S_U}, 1", f"s_cmp_le_u32 s{S_U}, s{S_LIM}", "s_cbranch_scc1 AT_fbl"]
    for sw in ('32', '16'):
        r += [f"v_mov_b32 v{TM+b}, v{V_L+b}" for b in range(2)] + ["s_nop 1"]
        r += [f"v_permlane{sw}_swap_b32 v{V_L+b}, v{TM+b}" for b in range(2)]
        r += [f"v_add_f32 v{V_L+b}, v{V_L+b}, v{TM+b}" for b in range(2)]
    r += [f"v_rcp_f32 v{RC(b)}, v{V_L+b}" for b in range(2)] + [f"s_add_u32 s{S_T}, s{S_DST}, 131072"]
    for b in range(2): r += norm_store(b, S_T if b else S_DST, 'skip')
    return r + ["s_branch AT_fb"]

def maskblk(b0, CI=CI):
    r = []
    for i in range(4):
        r += [f"v_min_f32 v{CI(b0,0)+i}, v{CI(b0,0)+i}, v{V_M+i}", f"v_mov_b32 v{CI(b0,1)+i}, {NEG_BIG:#x}",
              f"v_min_f32 v{CI(b0+1,1)+i}, v{CI(b0+1,1)+i}, v{V_M+i}"]
    return r

def early_setup():
    return [f"s_mul_i32 s{S_SOFF}, s{S_H}, {HS}", f"s_add_u32 s{R_KV}, s{P_WS}, s{S_SOFF}", f"s_addc_u32 s{R_KV+1}, s{P_WS+1}, 0",
            f"s_lshl_b32 s{S_SOFF}, s{S_I}, 16", f"s_sub_u32 s{R_KV+2}, {HL}, s{S_SOFF}", f"s_lshl_b32 s0, s{S_W}, 12",
            f"v_add_u32 v{V_DMA}, s0, v{V_L16}"]
def chunk_dma(c):
    d = dmas(f"C{c}")
    return [([f"s_add_u32 s{S_SOFF}, s0, {c*16384}", f"s_add_u32 m0, s0, {c*16384}"], d[0])] + [([], x) for x in d[1:]]

def chunks(c0, c1):
    r = []
    for c in range(c0, c1):
        for sal, x in chunk_dma(c): r += sal + (["s_nop 0"] if sal else []) + [x]
    return r
def prologue1():
    r = f"""
    s_lshl_b32 s{S_T}, s{S_I}, 2
    s_add_u32 s{S_US}, s{S_T}, s{S_W}
    s_sub_u32 s{S_UL}, s{S_W}, s{S_T}
    s_add_u32 s{S_UL}, s{S_UL}, 60
    s_sub_u32 s{S_T}, 61, s{S_T}
    s_bfm_b64 s[{S_BM}:{S_BM+1}], s{S_T}, 0
    s_and_b32 s{S_BM}, s{S_BM}, 0x55555555
    s_and_b32 s{S_BM+1}, s{S_BM+1}, 0x55555555
    s_lshl_b32 s{S_T}, s{S_H}, 12
    s_add_u32 s{S_T}, s{S_T}, {WS_C}
    s_lshl_b32 s{S_CL}, s{S_UL}, 18
    s_add_u32 s{S_CL}, s{S_CL}, s{S_T}
    s_lshl_b32 s{S_CS}, s{S_US}, 18
    s_add_u32 s{S_CS}, s{S_CS}, s{S_T}
    s_mov_b64 s[{S_FL}:{S_FL+1}], 0
    s_mov_b64 s[{S_FL+2}:{S_FL+3}], 0
    s_add_u32 s{S_DM}, s0, {6*16384}
    s_lshl_b32 s{S_US}, s{S_US}, 14
    s_add_u32 s{S_US}, s{S_US}, s{S_DM}
    s_lshl_b32 s{S_UL}, s{S_UL}, 14
    s_add_u32 s{S_UL}, s{S_UL}, s{S_DM}
    s_sub_u32 s{S_USM}, s{S_US}, 16384
    s_sub_u32 s{S_ULM}, s{S_UL}, 16384
    s_lshl_b32 s{S_EV}, s{S_I}, 16
    s_add_u32 s{S_EV}, s{S_EV}, s{S_DM}
    s_add_u32 s{S_EV}, s{S_EV}, 65536
    s_min_u32 s{S_LS}, s{S_EV}, s{S_ULM}
    s_add_u32 s{S_DX}, s0, {9*16384}""".split('\n')
    return [x.strip() for x in r if x.strip()]

def k0reads(): return [x.replace(f"v{V_RA} ", f"v{V_L16} ") for x in kreads()]
def S0(b, t): return 128 + b * 8 + t * 4
def prologue_mix(aa, dm, sal):
    mf = [mfma(vr(S0(b, t)), K(t, s), Q(b, s), '0' if s == 0 else vr(S0(b, t))) for b in (C_, D_, A_, B_) for t in range(2) for s in range(4)]
    kr = kreads(); per = -(-len(sal) // 32)
    r = [f"v_add_u32 v{V_RA}, 16384, v{V_L16}"]; k = 0; nxt = 12; dpos = 30
    for i, x in enumerate(aa):
        r.append(x)
        plain = x.startswith('v_') and not x.startswith('v_mfma') and i + 1 < len(aa) and not aa[i + 1].startswith('v_permlane')
        if i >= nxt and plain and k < 32:
            if k == 0: r.append("s_waitcnt lgkmcnt(0)")
            r += [mf[k]] + sal[k * per:(k + 1) * per] + ([kr[k - 24]] if k >= 24 else [])
            k += 1; nxt = i + 4
        elif i >= dpos and plain and dm:
            sl, d = dm.pop(0); r = r[:-1] + sl + [x, d]; dpos = i + 8
    assert k == 32 and not dm, (k, len(dm))
    return r + vreads()[:4]

def prologue2():
    r = f"""v_mov_b32 v{V_THR}, {f2u(2.0**32):#x}
    v_xor_b32 v{V_XC}, 0x10000, v{V_DMA}
    v_and_b32 v7, 15, v1
    v_lshrrev_b32 v8, 4, v1
    v_lshlrev_b32 v8, 2, v8
    v_mov_b32 v9, 0x7f7fffff
    v_mov_b32 v10, {NEG_BIG:#x}""".split('\n')
    for i in range(4):
        r += [f"v_add_u32 v11, {i}, v8", "v_cmp_gt_u32 vcc, v11, v7", f"v_mov_b32 v{V_L+i}, 0", f"v_accvgpr_write_b32 a{128+i}, v{56+i}", f"v_cndmask_b32 v{V_M+i}, v9, v10, vcc"]
    r += [f"s_cmp_lg_u32 s{S_US}, s{S_SOFF}", "s_cbranch_scc1 AT_nm0"] + maskblk(C_, S0) + ["AT_nm0:"]
    for b in (C_, D_, A_, B_):
        s0 = S0(b, 0); t = V_T + b; u = V_E + b
        r += [f"v_max3_f32 v{t}, v{s0}, v{s0+1}, v{s0+2}", f"v_max3_f32 v{t}, v{t}, v{s0+3}, v{s0+4}",
              f"v_max3_f32 v{t}, v{t}, v{s0+5}, v{s0+6}", f"v_max_f32 v{t}, v{t}, v{s0+7}", f"v_mov_b32 v{u}, v{t}"]
    r += [f"v_accvgpr_write_b32 a{LM(0)+i}, 0" for i in range(2)]
    r += [f"v_permlane32_swap_b32 v{V_T+b}, v{V_E+b}" for b in range(4)]
    for b in range(4): r += [f"v_max_f32 v{V_T+b}, v{V_T+b}, v{V_E+b}", f"v_mov_b32 v{V_E+b}, v{V_T+b}"]
    r += [f"v_accvgpr_write_b32 a{LM(0)+i}, 0" for i in range(2, 4 * len(MS()))]
    r += [f"v_permlane16_swap_b32 v{V_T+b}, v{V_E+b}" for b in range(4)]
    r += [f"v_max_f32 v{V_T+b}, v{V_T+b}, v{V_E+b}" for b in range(4)]
    sel = lambda b: (vr(V_T + (b & 2), 2), f"op_sel:[0,{b & 1}] op_sel_hi:[1,{b & 1}]", f"op_sel:[{b & 1},0] op_sel_hi:[{b & 1},0]")
    for b in (A_, C_, B_, D_): r += [f"v_pk_add_f32 {vr(S(b,0)+2*i, 2)}, {vr(S0(b,0)+2*i, 2)}, {sel(b)[0]} {sel(b)[1]} neg_lo:[0,1] neg_hi:[0,1]" for i in range(4)]
    r += exps(A_, V_E) + exps(C_, V_E + 8) + ex(B_, 0, V_EB)
    for b in range(4): r += [f"v_pk_add_f32 {vr(CI(b,0)+2*i, 2)}, {vr(192, 2)}, {sel(b)[0]} {sel(b)[1]} neg_lo:[0,1] neg_hi:[0,1]" for i in range(4)]
    r += [f"v_pk_mul_f32 {vr(128 + 2 * i, 2)}, {vr(192, 2)}, {vr(192, 2)}" for i in range(16)]
    r += cvts(A_, V_E) + cvts(C_, V_E + 8) + ([] if A_ in MS() else adds(A_, V_E)) + ([] if C_ in MS() else adds(C_, V_E + 8))
    return [x.strip() for x in r]

def main_loop(in_t, after_t, at_ma, at_f, in_f):
    par = lambda l: barbit() + [f"s_cbranch_scc1 {l}e", f"s_branch {l}o"]
    r = [f"s_cmp_lt_u32 s{S_SOFF}, s{S_USM}", "s_cbranch_scc0 AT_Dx", ".p2align 6", "AT_De:"]
    r += period('D', 'even') + ["AT_Do:"] + period('D', 'odd')
    r += ["AT_Dx:", f"s_cmp_lg_u32 s{S_SOFF}, s{S_US}", "s_cbranch_scc1 AT_mc"]
    r += period('T', 'dyn', in_t) + after_t
    r += ["s_branch AT_Sx"]
    r += ["AT_mc:"] + maskblk(C_) + par('AT_D')
    r += ["AT_ev:"] + epilogue([C_, D_]) + [f"s_mov_b32 s{S_LS}, s{S_ULM}", "s_branch AT_Sy"]
    r += ["AT_ms:", f"s_cmp_lg_u32 s{S_SOFF}, s{S_ULM}", "s_cbranch_scc1 AT_mp"] + maskblk(A_) + at_ma + ["AT_mp:"] + par('AT_S')
    r += [".p2align 6", "AT_Se:"] + period('S', 'even') + ["AT_So:"] + period('S', 'odd')
    r += ["AT_Sx:", f"s_cmp_eq_u32 s{S_SOFF}, s{S_EV}", "s_cbranch_scc1 AT_ev", "AT_Sy:", f"s_cmp_lg_u32 s{S_SOFF}, s{S_UL}", "s_cbranch_scc1 AT_ms"]
    r += at_f + period('F', 'dyn', in_f) + stamp('f') + epilogue([A_, B_])
    r += [f"s_or_b64 vcc, s[{S_FL}:{S_FL+1}], s[{S_FL+2}:{S_FL+3}]", "s_cbranch_vccnz AT_fb", "AT_fbx:"]
    return [x.strip() for x in r]
```

```python
from common import *
import eng
from eng import V_L16, V_AD, S_AR, ST
V_OUT = 15; V_RR = 16
def ACC(T, tb): return 64 + (T * 4 + tb) * 4
def ACA(T, tb): return 192 + (T * 4 + tb) * 4
NW = 12; NC = 8
def WB(kk, T): return (kk % NW) * 16 + T * 4
def CX(kk, tb): return 128 + (kk % NC) * 16 + tb * 4
S_CB = 34; S_WB = 35; S_T = 37; S_GC = 40; S_GW = 41; S_ROT = 44; S_OAB = 45; S_WAB = 46; S_OUT = 47
R_OUT = R_A0
LD = opt('LD_POL', 'sc1')

def RX(i): return 128 + 16 * i
def relayout_loads():
    r = srd(R_W0, P_WO_A, 512 * 1024)[:3] + [f"s_and_b32 s100, s{S_H}, 7", "s_cmp_lg_u32 s100, 0", "s_cbranch_scc1 RL_a",
         f"s_lshr_b32 s100, s{S_H}, 1", f"s_add_u32 s100, s100, s{S_W}", "s_lshl_b32 s100, s100, 15", f"s_lshl_b32 s101, s{S_I}, 7", "s_add_u32 s100, s100, s101",
         f"s_lshl_b32 s101, s{S_W}, 14", "s_add_u32 m0, s101, 12288", "s_nop 0"]
    r += [f"buffer_load_dwordx4 v{V_AD+k}, {sr(R_W0)}, s100 offen offset:{k*1024} lds ; @skip" for k in range(4)]
    r += ["RL_a:"] + srd(R_W0, P_WO, 4 << 20)[:3]
    r += [f"s_lshl2_add_u32 s100, s{S_H}, s{S_W}", "s_lshl_b32 s100, s100, 15", f"s_lshl_b32 s101, s{S_I}, 7", "s_add_u32 s100, s100, s101", f"s_add_u32 m0, s{S_AR}, 6144", "s_nop 0"]
    r += [f"buffer_load_dwordx4 v{V_AD+k}, {sr(R_W0)}, s100 offen offset:{k*1024} lds ; @WO" for k in range(2)]
    r += [f"s_add_u32 m0, s{S_AR}, {8192 + 6144 - 2048}", "s_nop 0"]
    r += [f"buffer_load_dwordx4 v{V_AD+k}, {sr(R_W0)}, s100 offen offset:{k*1024} lds ; @WO" for k in range(2, 4)]
    return r
def relayout_reads():
    a = 124; V_X = 126
    r = [f"v_lshrrev_b32 v{a}, 2, v1", f"v_lshrrev_b32 v{a+1}, 3, v1", f"v_and_b32 v{V_X}, 3, v1", f"v_xor_b32 v{a+1}, v{a+1}, v{V_X}", f"v_lshlrev_b32 v{a+1}, 4, v{a+1}",
         f"v_lshl_add_u32 v{a+1}, v{a}, 7, v{a+1}", f"s_and_b32 s100, s{S_H}, 7", "s_cmp_lg_u32 s100, 0", "s_cbranch_scc1 RL_b",
         f"s_lshl_b32 s101, s{S_W}, 14", f"v_add_u32 v{a}, s101, v{a+1}", f"v_xor_b32 v{V_X}, 64, v{a}"]
    for T in range(4):
        for e in range(2):
            r.append(f"ds_read_b64_tr_b16 {vr(RX(4 + T) + 2*e, 2)}, v{a if T < 2 else V_X} offset:{12288 + e * 2048 + (T & 1) * 8}")
    r += ["RL_b:", f"v_add_u32 v{a}, s{S_AR}, v{a+1}", f"v_xor_b32 v{a+1}, 64, v{a}"]
    for T in range(4):
        for e in range(2):
            r.append(f"ds_read_b64_tr_b16 {vr(RX(T) + 2*e, 2)}, v{a + (T >> 1)} offset:{6144 + e * 8192 + (T & 1) * 8}")
    return r
def relayout_stores():
    r = [f"s_lshr_b32 s100, s{S_H}, 3", "s_lshl_b32 s100, s100, 2", f"s_lshr_b32 s101, s{S_I}, 1", "s_add_u32 s100, s100, s101", "s_lshl_b32 s100, s100, 3", f"s_and_b32 s101, s{S_H}, 7",
         "s_add_u32 s100, s100, s101", f"s_lshl2_add_u32 s100, s100, s{S_W}", f"s_and_b32 s101, s{S_I}, 1", "s_lshl1_add_u32 s100, s100, s101", "s_lshl_b32 s100, s100, 12", f"s_add_u32 s100, s100, {WS_WO}"]
    r += [f"buffer_store_dwordx4 {vr(RX(T))}, v{V_L16}, {sr(R_WS)}, s100 offen offset:{T*1024} {ST} ; @STW" for T in range(4)]
    r += [f"s_and_b32 s100, s{S_H}, 7", "s_cmp_lg_u32 s100, 0", "s_cbranch_scc1 RL_c",
          f"s_lshl_b32 s100, s{S_I}, 4", f"s_lshr_b32 s101, s{S_H}, 1", "s_add_u32 s100, s100, s101", f"s_add_u32 s100, s100, s{S_W}", "s_lshl_b32 s100, s100, 12", f"s_add_u32 s100, s100, {WS_WA}"]
    r += [f"buffer_store_dwordx4 {vr(RX(4 + T))}, v{V_L16}, {sr(R_WS)}, s100 offen offset:{T*1024} {ST} ; @skip" for T in range(4)]
    return r + ["RL_c:"]

V_PP = 96
V_CD = 4; V_WD = 13; V_CR = 8; V_WR = 12; V_PC = 6
def WFR(buf, e, T): return 128 + buf * 32 + e * 16 + T * 4
def CFR(buf, e, u): return 192 + buf * 32 + e * 16 + u * 4
def AW(k, T): return 64 + k * 16 + T * 4
def AC(k, tb): return 128 + k * 16 + tb * 4
S_Q = 32; S_TL = 33; S_MW = 36; S_XS = 38; S_XR = 39; S_OB = 42; S_MC = 43; S_CR = [48, 49, 50, 76]; S_WR = 44; S_CD = 63
def polls(): return poll_issue('OA', V_PP, 'PA') + poll_issue('WO', V_PP + 2, 'PA') + poll_issue('WA', V_PP + 4, 'PA')
def w_dma(p):
    return [([f"s_add_u32 s{S_GW}, s{S_WB}, {p * 16384}", f"s_add_u32 m0, s{S_MW}, {(p % 4) * 16384}"] if k == 0 else [],
             f"buffer_load_dwordx4 v{V_WD}, {sr(R_WS)}, s{S_GW} offen offset:{k*1024} {LD} lds ; @W{p}") for k in range(4)]
def c_dma(p):
    return [([f"s_add_u32 s{S_GC}, s{S_CB}, {p * 2048}", f"s_add_u32 m0, s{S_MC}, {(p % 4) * 16384}"] if k == 0 else [],
             f"buffer_load_dwordx4 v{V_CD + (k >> 1)}, {sr(R_WS)}, s{S_GC} offen offset:{k*1024} {LD} lds ; @C{p}") for k in range(4)]
def flat(items):
    r = []
    for sal, x in items: r += sal + (["s_nop 0"] if sal else []) + [x]
    return r
def rds(p):
    b = p & 1; o = (p % 4) * 16384
    r = []
    for T in range(4):
        r += [f"ds_read_b128 {vr(WFR(b, e, T))}, v{V_WR} offset:{o + e * 8192 + T * 1024}" for e in range(2)]
        r += [f"ds_read_b128 {vr(CFR(b, e, T))}, v{V_CR + T} offset:{o + e * 1024}" for e in range(2)]
    return r
def a_loads():
    r = []
    for k in range(4):
        r += [([f"s_add_u32 s{S_T}, s{S_WAB}, {k * 4096}"] if T == 0 else [], f"buffer_load_dwordx4 {ar(AW(k, T))}, v{V_L16}, {sr(R_WS)}, s{S_T} offen offset:{T*1024} {LD} ; @A{k}") for T in range(4)]
        r += [([f"s_add_u32 s{S_T}, s{S_OAB}, {tb * 16384}"], f"buffer_load_dwordx4 {ar(AC(k, tb))}, v{V_L16}, {sr(R_WS)}, s{S_T} offen offset:{k*1024} {LD} ; @A{k}") for tb in range(4)]
    return r

def scalars():
    r = f"""s_lshr_b32 s{S_Q}, s{S_X}, 1
    s_sub_u32 s{S_TL}, 15, s{S_I}
    s_bitcmp1_b32 s{S_X}, 0
    s_cselect_b32 s{S_TL}, s{S_TL}, s{S_I}
    s_bitcmp1_b32 s{S_I}, 0
    s_cselect_b32 s{S_WR}, 5, 1
    s_cselect_b32 s{S_GC}, 1, 5
    s_lshl_b32 s{S_WR}, s{S_WR}, 14
    s_lshl_b32 s{S_GC}, s{S_GC}, 14
    s_add_u32 s{S_MW}, s{S_WR}, s0
    s_add_u32 s{S_MC}, s{S_GC}, s0
    s_lshr_b32 s{S_T}, s{S_W}, 1
    s_lshl_b32 s{S_OB}, s{S_T}, 17
    s_lshl_b32 s{S_T}, s{S_T}, 13
    s_add_u32 s{S_GC}, s{S_GC}, s{S_T}
    s_and_b32 s{S_GW}, s{S_W}, 1
    s_lshl_b32 s{S_T}, s{S_GW}, 7
    s_add_u32 s{S_OB}, s{S_OB}, s{S_T}
    s_lshl_b32 s{S_T}, s{S_GW}, 12
    s_add_u32 s{S_WR}, s{S_WR}, s{S_T}""".split('\n')
    for u in range(4):
        r += [f"s_add_u32 s{S_T}, s{S_Q}, {u}", f"s_and_b32 s{S_T}, s{S_T}, 3", f"s_lshl_b32 s{S_T}, s{S_T}, 11", f"s_add_u32 s{S_CR[u]}, s{S_T}, s{S_GC}"]
    r += f"""s_and_b32 s{S_T}, s{S_H}, 3
    s_lshl2_add_u32 s{S_WB}, s{S_Q}, s{S_T}
    s_lshl_b32 s{S_WB}, s{S_WB}, 18
    s_add_u32 s{S_WB}, s{S_WB}, {WS_WO}
    s_lshl2_add_u32 s{S_XS}, s{S_TL}, s{S_T}
    s_lshl_b32 s{S_XS}, s{S_XS}, 18
    s_add_u32 s{S_XS}, s{S_XS}, s0
    s_add_u32 s{S_XS}, s{S_XS}, {WS_XB}
    s_lshl_b32 s{S_T}, s{S_T}, 8
    s_add_u32 s{S_OB}, s{S_OB}, s{S_T}
    s_lshl_b32 s{S_T}, s{S_Q}, 16
    s_add_u32 s{S_XR}, s{S_XS}, s{S_T}
    s_lshl_b32 s{S_T}, s{S_Q}, 15
    s_add_u32 s{S_OB}, s{S_OB}, s{S_T}
    s_lshl_b32 s{S_CB}, s{S_TL}, 20
    s_add_u32 s{S_CB}, s{S_CB}, s{S_T}
    s_add_u32 s{S_CB}, s{S_CB}, {WS_C}
    s_lshl_b32 s{S_T}, s{S_TL}, 18
    s_add_u32 s{S_OB}, s{S_OB}, s{S_T}
    s_add_u32 s{S_OB}, s{S_OB}, 1024
    s_lshl_b32 s{S_CD}, s{S_W}, 18
    s_lshl_b32 s{S_T}, s{S_W}, 14
    s_lshl_b32 s{S_WAB}, s{S_I}, 16
    s_add_u32 s{S_WAB}, s{S_WAB}, s{S_T}
    s_add_u32 s{S_WAB}, s{S_WAB}, {WS_WA}
    s_lshl_b32 s{S_OAB}, s{S_H}, 16
    s_add_u32 s{S_OAB}, s{S_OAB}, s0
    s_add_u32 s{S_OAB}, s{S_OAB}, {WS_OA}
    s_lshl_b32 s{S_OUT}, s{S_H}, 17
    s_lshl_b32 s{S_T}, s{S_W}, 15
    s_add_u32 s{S_OUT}, s{S_OUT}, s{S_T}
    s_lshl_b32 s{S_T}, s{S_I}, 7
    s_add_u32 s{S_OUT}, s{S_OUT}, s{S_T}""".split('\n')
    return [x.strip() for x in r] + srd(R_OUT, P_OUT, 4 << 20)
def checks():
    r = ["s_waitcnt vmcnt(4)"]
    for k in range(3): r += poll_check(V_PP + 2 * k, S_T)
    return r
def w_first(): return [x for p in range(4) for x in w_dma(p)]
def pre_join():
    r = [f"v_add_u32 v{V_CD}, s{S_CD}, v{V_L16}", f"v_add_u32 v{V_CD+1}, {131072 - 2048}, v{V_CD}", f"v_add_u32 v{V_WR}, s{S_WR}, v{V_L16}"]
    r += [f"v_add_u32 v{V_CR+u}, s{S_CR[u]}, v{V_L16}" for u in range(4)]
    r += [f"s_lshl_b32 s{S_T}, s{S_W}, 14", f"v_add_u32 v{V_RR}, s{S_T}, v{V_L16}", f"v_and_b32 v{V_OUT}, 15, v1", f"v_lshlrev_b32 v{V_OUT}, 11, v{V_OUT}", "v_lshrrev_b32 v20, 4, v1",
          f"v_lshl_add_u32 v{V_OUT}, v20, 4, v{V_OUT}"]
    return r

def outproj():
    r = poll_issue('CTX', V_PC, 'PC')
    r += stamp('a2') + ["@wait PC"] + poll_check(V_PC, S_T) + stamp('pc')
    for p in range(4): r += flat(c_dma(p))
    r += ["@wait C0,W0", "s_barrier"] + rds(0)
    al = a_loads()
    for p in range(16):
        b = p & 1
        mf = []
        for T in range(4):
            for u in range(4):
                for e in range(2):
                    mf.append(mfma(vr(ACC(T, u)), vr(WFR(b, e, T)), vr(CFR(b, e, u)), vr(ACC(T, u)) if (p or e) else '0'))
        g = Gaps(mf)
        g.put(-1, "s_waitcnt lgkmcnt(0)")
        if p + 1 < 16:
            g.front(0, f"@wait C{p+1},W{p+1}", "s_barrier")
            rg = [1, 2, 4, 5, 7, 8, 10, 11, 13, 14, 16, 17, 19, 20, 22, 23]
            for x, gp in zip(rds(p + 1), rg): g.put(gp, x)
        dl = (c_dma(p + 4) + w_dma(p + 4)) if p + 4 < 16 else []
        na = {8: 2, 9: 2, 10: 2, 11: 2, 12: 8, 13: 8, 14: 8}.get(p, 0)
        dl = dl + [al.pop(0) for _ in range(na)]
        for (sal, x), gp in zip(dl, [3, 6, 9, 12, 15, 18, 21, 24, 27, 30]):
            for k, y in enumerate(sal): g.front(gp - len(sal) + k, y)
            g.put(gp, x)
        if p == 15: g.put(3, *poll_issue('XB', V_PC, 'PX'))
        r += g.lines()
    assert not al
    xs = []
    for d in range(1, 4):
        xs += [f"s_add_u32 s{S_T}, s{S_Q}, {d}", f"s_and_b32 s{S_T}, s{S_T}, 3", f"s_lshl_b32 s{S_T}, s{S_T}, 16", f"s_add_u32 s{S_T}, s{S_T}, s{S_XS}", f"s_add_u32 s{S_T}, s{S_T}, {d * 16384}"]
        for h in range(2):
            pk = 208 + d * 8 + h * 4
            xs += [f"v_cvt_pk_bf16_f32 v{pk + i}, v{ACC(2 * h + (i >> 1), d) + 2 * (i & 1)}, v{ACC(2 * h + (i >> 1), d) + 2 * (i & 1) + 1}" for i in range(4)]
            xs += [f"buffer_store_dwordx4 {vr(pk)}, v{V_L16}, {sr(R_WS)}, s{S_T} offen offset:{h*1024} {ST}"]
    xl = []
    for d in range(1, 4):
        xl += [f"s_add_u32 s{S_T}, s{S_XR}, {d * 16384}"]
        xl += [f"buffer_load_dwordx4 {vr(24 + d * 8 + h * 4)}, v{V_L16}, {sr(R_WS)}, s{S_T} offen offset:{h*1024} {LD}" for h in range(2)]
    g = Gaps([mfma(ar(ACA(T, tb)), ar(AW(k, T)), ar(AC(k, tb)), ar(ACA(T, tb)) if k else '0') for k in range(4) for T in range(4) for tb in range(4)])
    for k in range(16): g.put(k, f"v_mov_b32 v{192 + k}, v{ACC(k >> 2, 0) + (k & 3)}")
    g.put(16, "v_mov_b32 v30, 0x3f80", "v_mov_b32 v31, 0x3f800000")
    r += stamp('opl') + ["s_nop 4"] + xs + ["s_waitcnt vmcnt(6)", f"v_cmp_ne_u32 vcc, s{S_NON}, v{V_PC}", f"s_mov_b64 s[{S_GC}:{S_GC+1}], vcc", "s_cbranch_vccnz OP_wx"]
    gl = g.lines(); cut = [k for k, x in enumerate(gl) if 'mfma' in x][int(opt('A2CUT', '24'))]
    r += xl + ["OP_wx:"] + gl[:cut] + [f"s_cmp_eq_u64 s[{S_GC}:{S_GC+1}], 0 ; @opx", "s_cbranch_scc1 OP_w12", "s_waitcnt vmcnt(0)", "OP_w12:", "s_waitcnt vmcnt(6)"]
    r += stamp('xs') + signal('XB', 20) + gl[cut:] + ["s_barrier", "s_nop 4"]
    wr = [f"ds_write_b128 v{V_WD}, {ar(ACA(T, tb))} offset:{tb * 16384 + T * 1024}" for tb in range(4) for T in range(4)]
    r += wr[:8] + [f"buffer_load_dword v{V_PC}, v{V_PC+1}, {sr(R_WS)}, 0 offen sc1"] + wr[8:]
    r += ["s_waitcnt lgkmcnt(0)", "s_barrier"]
    r += [f"ds_read_b128 {vr(128 + (s * 4 + T) * 4)}, v{V_RR} offset:{s * 4096 + T * 1024}" for s in range(4) for T in range(4)]
    r += ["s_waitcnt vmcnt(0)", f"s_cmp_eq_u64 s[{S_GC}:{S_GC+1}], 0 ; @opx", "s_cbranch_scc1 OP_fin"]
    r += poll_check(V_PC, S_T) + stamp('px') + xl
    r += ["OP_fin:", "s_waitcnt lgkmcnt(0)"] + red(128, S_OUT) + stamp('ar') + ["s_waitcnt vmcnt(2)"] + stamp('xl')
    r += [f"v_dot2c_f32_bf16 v{192 + i}, v{24 + d * 8 + (i >> 1)}, v{30 + (i & 1)}" for d in range(1, 4) for i in range(16)] + ["s_nop 2"] + red(192, S_OB)[48:]
    return [x.strip() for x in r]
def tail_blocks(): return ["OP_l1:", "s_branch OP_wx"]

def red(b, so):
    r = []
    for i in range(16): r += [f"v_add_f32 v{b+i}, v{b+i}, v{b+16+i}", f"v_add_f32 v{b+32+i}, v{b+32+i}, v{b+48+i}"]
    r += [f"v_add_f32 v{b+i}, v{b+i}, v{b+32+i}" for i in range(16)]
    r += [f"v_cvt_pk_bf16_f32 v{b+i}, v{b+2*i}, v{b+2*i+1}" for i in range(8)]
    r += [f"buffer_store_dwordx4 {vr(b + 4*p)}, v{V_OUT}, {sr(R_OUT)}, s{so} offen offset:{p*64}" for p in range(2)]
    return r
```

```python
import re, sys
import numpy as np

M32 = 0xFFFFFFFF
TRANS = {'v_exp_f32','v_log_f32','v_rcp_f32','v_rsq_f32','v_sqrt_f32','v_sin_f32','v_cos_f32'}

class Ins:
    __slots__ = ('op','args','mods','line','text','rd','wr','kind','true','fb','pf','raw')

def regs_of(tok):
    tok = tok.strip()
    neg = tok.lstrip('-')
    if neg.startswith('abs(') : neg = neg[4:-1]
    if neg.startswith('|'): neg = neg.strip('|')
    m = re.fullmatch(r'([vas])(\d+)', neg)
    if m: return [(m.group(1), int(m.group(2)))]
    m = re.fullmatch(r'([vas])\[(\d+):(\d+)\]', neg)
    if m: return [(m.group(1), i) for i in range(int(m.group(2)), int(m.group(3)) + 1)]
    if neg == 'vcc': return [('s', 106), ('s', 107)]
    if neg == 'exec': return [('s', 126), ('s', 127)]
    if neg == 'm0': return [('s', 124)]
    return []

def parse(text):
    ins = []; labels = {}
    for ln, raw in enumerate(text.split('\n'), 1):
        s = raw.split(';')[0].strip()
        if not s or s.startswith('.'):
            continue
        m = re.fullmatch(r'([\w.$]+):', s)
        if m:
            labels[m.group(1)] = len(ins); continue
        parts = s.split(None, 1)
        op = parts[0]
        for suf in ('_e32', '_e64'):
            if op.endswith(suf): op = op[:-4]
        rest = parts[1] if len(parts) > 1 else ''
        toks = [t.strip() for t in re.split(r',(?![^\[]*\])', rest)] if rest else []
        mods = {}
        if toks:
            last = toks[-1].split()
            if op == 's_waitcnt':
                for t in rest.replace(',', ' ').split():
                    mm = re.fullmatch(r'(\w+)\((\d+)\)', t); mods[mm.group(1)] = int(mm.group(2))
                toks = []
            else:
                toks[-1] = last[0]
                for t in last[1:]:
                    if ':' in t:
                        k, v = t.split(':', 1); mods[k] = int(v, 0) if re.fullmatch(r'-?(0x)?[0-9a-fA-F]+', v) else v
                    else: mods[t] = True
        I = Ins(); I.op = op; I.args = toks; I.mods = mods; I.line = ln; I.text = s; I.true = '@true' in raw or '@taken' in raw; I.raw = raw; I.fb = '@fb' in raw; I.pf = '@PF' in raw or op.startswith('global_load')
        classify(I)
        if I.pf: I.wr = []
        ins.append(I)
    return ins, labels

def classify(I):
    op = I.op; A = I.args; rd = []; wr = []
    R = lambda i: regs_of(A[i])
    if op.startswith('v_mfma'):
        I.kind = 'mfma'; wr = R(0); rd = R(1) + R(2) + R(3)
    elif op.startswith('v_cmp'):
        I.kind = 'valu'; wr = R(0); rd = R(1) + R(2)
    elif op in ('v_readfirstlane_b32',):
        I.kind = 'valu'; wr = R(0); rd = R(1)
    elif op.startswith('v_permlane'):
        I.kind = 'valu'; wr = R(0) + R(1); rd = R(0) + R(1)
    elif op in ('v_fmac_f32', 'v_dot2c_f32_bf16'):
        I.kind = 'valu'; wr = R(0); rd = R(0) + R(1) + R(2)
    elif op == 'v_cndmask_b32':
        I.kind = 'valu'; wr = R(0); rd = R(1) + R(2) + R(3)
    elif op == 'v_nop':
        I.kind = 'valu'
    elif op.startswith('v_') and op not in ('v_add_co_u32', 'v_addc_co_u32'):
        I.kind = 'valu'; wr = R(0)
        for i in range(1, len(A)): rd += R(i)
    elif op.startswith('ds_read'):
        I.kind = 'ds'; wr = R(0); rd = R(1)
    elif op.startswith('ds_write'):
        I.kind = 'ds'; rd = R(0) + R(1)
    elif op.startswith('ds_bpermute') or op.startswith('ds_swizzle'):
        I.kind = 'ds'; wr = R(0)
        for i in range(1, len(A)): rd += R(i)
    elif op.startswith('buffer_load'):
        I.kind = 'vmem'
        if 'lds' in I.mods: rd = R(0) + R(1) + R(2) + [('s', 124)]
        else: wr = R(0); rd = R(1) + R(2) + R(3)
    elif op.startswith('buffer_store') or op.startswith('buffer_atomic'):
        I.kind = 'vmem'; rd = R(0) + R(1) + R(2) + R(3)
        if op.startswith('buffer_atomic') and 'sc0' in I.mods: wr = R(0)
    elif op.startswith('global_load'):
        I.kind = 'gld'; wr = R(0); rd = R(1)
    elif op == 's_getpc_b64':
        I.kind = 'pc'; wr = R(0)
    elif op in ('v_add_co_u32', 'v_addc_co_u32'):
        I.kind = 'valu'; wr = R(0) + R(1); rd = R(2) + R(3) + (R(4) if len(A) > 4 else [])
    elif op.startswith('s_load') or op in ('s_memtime', 's_memrealtime'):
        I.kind = 'smem'; wr = R(0); rd = R(1) if len(A) > 1 else []
    elif op.startswith('s_cmp') or op.startswith('s_bitcmp'):
        I.kind = 'salu'; rd = R(0) + R(1)
    elif op in ('s_waitcnt', 's_barrier', 's_nop', 's_endpgm', 's_branch', 's_setprio', 's_sleep', 'buffer_inv', 'buffer_wbl2') or op.startswith('s_cbranch'):
        I.kind = 'ctl'
    elif op in ('s_addk_i32',):
        I.kind = 'salu'; wr = R(0); rd = R(0)
    elif op.endswith('saveexec_b64'):
        I.kind = 'salu'; wr = R(0) + regs_of('exec'); rd = R(1) + regs_of('exec')
    elif op.startswith('s_'):
        I.kind = 'salu'; wr = R(0)
        for i in range(1, len(A)): rd += R(i)
    else:
        raise Exception('unknown op ' + I.text)
    I.rd = rd; I.wr = wr

def f2u(x): return int(np.float32(x).view(np.uint32))
INL = {'0.5': f2u(.5), '1.0': f2u(1), '2.0': f2u(2), '4.0': f2u(4), '-0.5': f2u(-.5), '-1.0': f2u(-1), '-2.0': f2u(-2), '-4.0': f2u(-4)}

class Err(Exception): pass

class Wave:
    def __init__(self, ins, labels, entry, wg, wave, arg_sizes, lds_size, policy=None, maxsteps=400000):
        self.ins = ins; self.labels = labels; self.pc = labels[entry]
        self.s = {}; self.v = {}
        self.s[0] = 0; self.s[1] = 0x7000; self.s[2] = wg
        self.s[126] = M32; self.s[127] = M32
        self.v[('v', 0)] = (np.arange(64, dtype=np.uint32) + 64 * wave)
        self.scc = None; self.wg = wg; self.wave = wave
        self.arg_sizes = arg_sizes; self.lds_size = lds_size
        self.policy = policy or {}
        self.errors = []; self.hist = []
        self.t = 0
        self.vm = []; self.lg = []
        self.epoch = 0; self.lds_ev = []; self.gl_ev = []
        self.src = {}
        self.maxsteps = maxsteps; self.nins = 0; self.counts = {}
        self.written = set([('s',0),('s',1),('s',2),('v',0),('s',126),('s',127)])
    def err(self, I, msg):
        e = f"wg{self.wg} w{self.wave} line {I.line}: {I.text} :: {msg}"
        if e not in self.errors: self.errors.append(e)
    def sval(self, tok):
        tok = tok.strip()
        r = regs_of(tok)
        if r and r[0][0] == 's': return self.s.get(r[0][1])
        if tok in INL: return INL[tok]
        try: return int(tok, 0) & M32
        except: return None
    def sval64(self, tok):
        r = regs_of(tok)
        if r:
            lo = self.s.get(r[0][1]); hi = self.s.get(r[1][1])
            if lo is None or hi is None: return None
            return lo | (hi << 32)
        try: return int(tok, 0) & 0xFFFFFFFFFFFFFFFF
        except: return None
    def vval(self, tok):
        r = regs_of(tok)
        if tok.startswith('-') and r: return None
        if r and r[0][0] in 'va': return self.v.get(r[0])
        x = self.sval(tok)
        return None if x is None else np.full(64, x, dtype=np.uint32)
    def hazards(self, I):
        rd = set(I.rd); wr = set(I.wr)
        for (P, tp) in reversed(self.hist):
            d = self.t - tp - 1
            if d >= 20: break
            pw = set(P.wr)
            need = 0; why = ''
            def req(n, w):
                nonlocal need, why
                if n > need: need = n; why = w
            pv = {x for x in pw if x[0] in 'va'}; ps = {x for x in pw if x[0] == 's'}
            if P.kind == 'valu':
                if I.kind == 'mfma' and pv & rd: req(2, 'valu->mfma')
                if P.op in TRANS and I.kind == 'valu' and I.op not in TRANS and pv & rd: req(1, 'trans->valu')
                if P.op in TRANS and I.kind in ('ds','vmem') and pv & rd: req(1, 'trans->mem(pad)')
                if I.op.startswith('v_permlane') and pv & rd: req(2, 'valu->permlane')
                if I.op == 'v_readfirstlane_b32' and pv & rd: req(1, 'valu->readfirstlane')
                if ps & rd:
                    if I.kind == 'valu': req(2, 'valu sgpr->valu')
                    if I.kind == 'vmem': req(5, 'valu sgpr->vmem')
                    if I.kind == 'mfma': req(4, 'valu sgpr->mfma')
                if any(k.startswith('row_') or k.startswith('quad_perm') for k in I.mods) and pv & rd: req(2, 'valu->dpp')
            if P.kind == 'mfma':
                np_ = 8 if '32x32' in P.op else 4
                T = {4: (6, 8, 3), 8: (10, 12, 7)}[np_]
                if I.kind == 'mfma':
                    c = regs_of(I.args[3]); ab = set(regs_of(I.args[1]) + regs_of(I.args[2]))
                    if pv & set(c):
                        if not (c == P.wr and (('32x32' in I.op) == ('32x32' in P.op))): req(T[0], 'mfma D->C overlap')
                    if pv & ab: req(T[1], 'mfma D->AB')
                    if pv & wr and not (c == P.wr): req(T[0], 'mfma D->D waw')
                elif I.kind == 'valu':
                    if pv & (rd | wr): req(T[1], 'mfma D->valu')
                    pc = set(regs_of(P.args[3]))
                    if pc & wr: req(T[2], 'mfma C war')
                elif I.kind in ('ds', 'vmem'):
                    if pv & (rd | wr): req(T[1], 'mfma D->mem')
            if P.kind == 'salu' and ('s', 124) in pw and I.kind == 'vmem' and 'lds' in I.mods: req(1, 'm0->dma')
            if P.kind in ('vmem',) and ('store' in P.op) and ('x4' in P.op or 'x3' in P.op):
                data = set(regs_of(P.args[0]))
                if data & wr: req(2 if I.kind in ('valu','mfma') else 1, 'store data war')
            if P.kind == 'ds' and P.op in ('ds_write_b128','ds_write_b96'):
                data = set(regs_of(P.args[1]))
                if data & wr and I.kind in ('valu','mfma'): req(2, 'ds_write data war(pad)')
            if d < need: self.err(I, f"hazard {why}: need {need} have {d} after line {P.line}: {P.text}")
    def check_pending(self, I):
        touched = set(I.rd) | set(I.wr)
        for q, nm in ((self.vm, 'vm'), (self.lg, 'lgkm')):
            for o in q:
                if o['regs'] & touched:
                    self.err(I, f"touches reg with pending {nm} load from line {o['line']}")
    def run(self):
        U = np.uint32
        while True:
            I = self.ins[self.pc]; self.pc += 1; self.nins += 1
            if self.nins > self.maxsteps: raise Err('too many steps')
            self.counts[I.kind] = self.counts.get(I.kind, 0) + 1
            op = I.op; A = I.args
            self.hazards(I); self.check_pending(I)
            for r in I.rd:
                if r not in self.written: self.err(I, f"reads never-written {r}")
            for r in I.rd:
                if r in self.src: self.src[r]['used'] = True
            for r in I.wr:
                self.written.add(r); self.src.pop(r, None)
            n_states = 1
            if op == 's_endpgm':
                for o in self.vm + self.lg:
                    if o.get('ev') is not None: o['ev']['done'] = (self.epoch, self.t)
                return
            elif op == 's_nop': n_states = int(A[0], 0) + 1
            elif op == 's_waitcnt':
                for q, key in ((self.vm, 'vmcnt'), (self.lg, 'lgkmcnt')):
                    if key in I.mods:
                        n = I.mods[key]
                        if key == 'lgkmcnt' and n > 0 and any(o.get('smem') for o in q): self.err(I, 'counted lgkm with smem pending')
                        while len(q) > n:
                            o = q.pop(0)
                            if o.get('ev') is not None: o['ev']['done'] = (self.epoch, self.t)
            elif op == 's_barrier': self.epoch += 1
            elif op == 's_branch': self.pc = self.labels[A[0]]
            elif op.startswith('s_cbranch'):
                c = op[10:]
                if c in ('scc0', 'scc1'):
                    if self.scc is None: raise Err(f'unknown scc at line {I.line}')
                    tk = self.scc == (c == 'scc1')
                elif c in ('execz', 'execnz'):
                    e = self.sval64('exec')
                    if e is None: tk = self.policy.get(A[0], False)
                    else: tk = (e == 0) == (c == 'execz')
                else:
                    e = self.sval64('vcc')
                    if e is None: tk = I.true or self.policy.get(A[0], False)
                    else: tk = (e == 0) == (c == 'vccz')
                if tk: self.pc = self.labels[A[0]]
            elif I.kind == 'smem':
                if op.startswith('s_load'):
                    n = len(I.wr); off = int(A[2], 0)
                    for j in range(n):
                        w = off // 4 + j
                        self.s[I.wr[j][1]] = 0 if w % 2 == 0 else (0x100 + w // 2)
                else:
                    for r in I.wr: self.s[r[1]] = None
                self.lg.append(dict(regs=set(I.wr), line=I.line, smem=True));
            elif I.kind == 'pc':
                for r in I.wr: self.s[r[1]] = None
            elif I.kind == 'gld':
                for r in I.wr: self.v[r] = None
                self.vm.append(dict(regs=set(I.wr), line=I.line, ev=None))
            elif I.kind == 'salu': self.salu(I)
            elif I.kind == 'valu': self.valu(I)
            elif I.kind == 'mfma':
                for r in I.wr: self.v[r] = None
            elif I.kind == 'ds':
                ev = None
                if op.startswith('ds_read') or op.startswith('ds_write'):
                    a = self.vval(A[1] if op.startswith('ds_read') else A[0])
                    sz = {'b128': 16, 'b64': 8, 'b32': 4, 'b16': 8}[op.split('_')[-1]]
                    if op == 'ds_read_b64_tr_b16': sz = 8
                    if a is None: self.err(I, 'unknown LDS address')
                    else:
                        a = a.astype(np.int64) + I.mods.get('offset', 0)
                        if a.max() + sz > self.lds_size: self.err(I, f'LDS OOB {a.max()}')
                        if (a % (16 if sz == 16 else sz)).any(): self.err(I, 'LDS misaligned')
                        ev = dict(w=self.wave, wr=op.startswith('ds_write'), a=a, sz=sz, lo=int(a.min()), hi=int(a.max()) + sz, iss=(self.epoch, self.t), done=None, line=I.line, op=op)
                        self.lds_ev.append(ev)
                        for r in I.wr: self.src[r] = ev
                for r in I.wr: self.v[r] = None
                self.lg.append(dict(regs=set(I.wr), line=I.line, ev=ev))
                if len(self.lg) > 15: pass
            elif I.kind == 'vmem':
                lds = 'lds' in I.mods
                vo, sr, so = (A[0], A[1], A[2]) if lds else (A[1], A[2], A[3])
                a = self.vval(vo); s0 = regs_of(sr)[0][1]
                srd = [self.s.get(s0 + j) for j in range(4)]
                sz = {'dwordx4': 16, 'dwordx2': 8, 'dword': 4, 'add': 4}[op.split('_')[-1]]
                sof = self.sval(so); ev = None
                if a is None or sof is None or None in srd: self.err(I, 'unknown global address')
                else:
                    g = a.astype(np.int64) + sof + I.mods.get('offset', 0)
                    arg = srd[1] - 0x100
                    ex = self.sval64('exec')
                    act = np.array([(ex >> l) & 1 for l in range(64)], dtype=bool) if ex is not None else np.ones(64, bool)
                    inb = (g + sz <= srd[2]) & act
                    if srd[0] + srd[2] > self.arg_sizes[arg]: self.err(I, f'SRD window exceeds buffer arg{arg}: {srd[0]:#x}+{srd[2]:#x}')
                    if (g % sz).any(): self.err(I, 'global misaligned')
                    self.gl_ev.append(dict(arg=arg, st='store' in op, a=(g + srd[0])[inb], sz=sz, line=I.line, oob=int((~inb & act).sum())))
                    if lds:
                        m0 = self.s.get(124)
                        if m0 is None: self.err(I, 'unknown m0')
                        else:
                            la = m0 + I.mods.get('offset', 0) + np.arange(64, dtype=np.int64) * sz
                            if la.max() + sz > self.lds_size: self.err(I, 'DMA LDS OOB')
                            ev = dict(w=self.wave, wr=True, a=la, sz=sz, lo=int(la.min()), hi=int(la.max()) + sz, iss=(self.epoch, self.t), done=None, line=I.line, op='dma')
                            self.lds_ev.append(ev)
                for r in I.wr: self.v[r] = None
                self.vm.append(dict(regs=set(I.wr), line=I.line, ev=ev))
                if len(self.vm) > 63: self.err(I, 'vmcnt overflow (>63 outstanding)')
            self.hist.append((I, self.t + n_states - 1 if op == 's_nop' else self.t))
            if len(self.hist) > 40: self.hist.pop(0)
            self.t += n_states
    def salu(self, I):
        op = I.op; A = I.args
        def setd(x, n=1):
            if n == 1: self.s[I.wr[0][1]] = None if x is None else x & M32
            else:
                self.s[I.wr[0][1]] = None if x is None else x & M32
                self.s[I.wr[1][1]] = None if x is None else (x >> 32) & M32
        if op.startswith('s_cmp') or op.startswith('s_bitcmp'):
            if op.endswith('u64'): a, b = self.sval64(A[0]), self.sval64(A[1])
            elif op.endswith('b64'): a, b = self.sval64(A[0]), self.sval(A[1])
            else: a, b = self.sval(A[0]), self.sval(A[1])
            if a is None or b is None: self.scc = (not self.policy.get('OP_wx')) if '@opx' in I.raw else True if I.true else (False if I.fb else None); return
            if op.startswith('s_bitcmp'): self.scc = bool((a >> b) & 1) == (op[8] == '1'); return
            c = op.split('_')[2]
            if op.endswith('i32'):
                a = a - (1 << 32) if a >> 31 else a; b = b - (1 << 32) if b >> 31 else b
            self.scc = {'eq': a == b, 'lg': a != b, 'lt': a < b, 'le': a <= b, 'gt': a > b, 'ge': a >= b}[c]; return
        if op in ('s_mov_b32', 's_movk_i32'): return setd(self.sval(A[1]))
        if op == 's_mov_b64': return setd(self.sval64(A[1]), 2)
        if op == 's_addk_i32':
            a = self.sval(A[0]); return setd(None if a is None else a + int(A[1], 0))
        if op == 's_and_saveexec_b64':
            e = self.sval64('exec'); m = self.sval64(A[1]); setd(e, 2)
            x = None if (e is None or m is None) else e & m
            self.s[126] = None if x is None else x & M32; self.s[127] = None if x is None else x >> 32
            self.scc = None if x is None else x != 0; return
        if op in ('s_or_b64', 's_and_b64', 's_andn2_b64'):
            a, b = self.sval64(A[1]), self.sval64(A[2])
            x = None if a is None or b is None else {'s_or_b64': a | b, 's_and_b64': a & b, 's_andn2_b64': a & ~b}[op]
            self.scc = None if x is None else x != 0
            return setd(x, 2)
        if op == 's_bfm_b64':
            a, b = self.sval(A[1]), self.sval(A[2])
            return setd(((1 << (a & 63)) - 1) << (b & 63), 2)
        if op == 's_cselect_b32':
            if self.scc is None: return setd(None)
            return setd(self.sval(A[1] if self.scc else A[2]))
        a, b = self.sval(A[1]), self.sval(A[2]) if len(A) > 2 else None
        if op == 's_addc_u32':
            if a is None or b is None or self.scc is None: self.scc = None; return setd(None)
            x = a + b + int(self.scc); self.scc = x > M32; return setd(x)
        if a is None or b is None:
            if op != 's_mul_i32': self.scc = None
            return setd(None)
        if op == 's_add_u32': x = a + b; self.scc = x > M32
        elif op == 's_sub_u32': x = a - b; self.scc = x < 0
        elif op == 's_add_i32': x = a + b; self.scc = None
        elif op == 's_sub_i32': x = a - b; self.scc = None
        elif op == 's_mul_i32': x = a * b
        elif op == 's_lshl_b32': x = (a << (b & 31)) & M32; self.scc = x != 0
        elif op == 's_lshr_b32': x = a >> (b & 31); self.scc = x != 0
        elif op == 's_and_b32': x = a & b; self.scc = x != 0
        elif op == 's_or_b32': x = a | b; self.scc = x != 0
        elif op == 's_xor_b32': x = a ^ b; self.scc = x != 0
        elif op == 's_min_u32': x = min(a, b); self.scc = a < b
        elif op == 's_max_u32': x = max(a, b); self.scc = a > b
        elif op == 's_lshl1_add_u32': x = (a << 1) + b; self.scc = None
        elif op == 's_lshl2_add_u32': x = (a << 2) + b; self.scc = None
        elif op == 's_bfe_u32': x = (a >> (b & 31)) & ((1 << ((b >> 16) & 127)) - 1); self.scc = x != 0
        else: raise Err('salu ' + I.text)
        setd(x)
    def valu(self, I):
        op = I.op; A = I.args; U = np.uint32
        if op == 'v_nop': return
        if op == 'v_readfirstlane_b32':
            x = self.vval(A[1]); self.s[I.wr[0][1]] = None if x is None else int(x[0]); return
        if op.startswith('v_cmp'):
            r = None
            if op.endswith('u32') or op.endswith('i32'):
                a, b = self.vval(A[1]), self.vval(A[2])
                if a is not None and b is not None:
                    if op.endswith('i32'): a = a.view(np.int32); b = b.view(np.int32)
                    c = op.split('_')[2]
                    m = {'eq': a == b, 'ne': a != b, 'lt': a < b, 'le': a <= b, 'gt': a > b, 'ge': a >= b}[c]
                    r = sum(1 << l for l in range(64) if m[l])
            self.s[I.wr[0][1]] = None if r is None else r & M32
            self.s[I.wr[1][1]] = None if r is None else r >> 32
            return
        x = None
        if op in ('v_add_co_u32', 'v_addc_co_u32'):
            self.v[I.wr[0]] = None; self.s[106] = None; self.s[107] = None; return
        src = [self.vval(t) for t in A[1:]]
        ok = all(t is not None for t in src)
        dpp = any(k.startswith('row_') or k.startswith('quad_perm') for k in I.mods)
        with np.errstate(over='ignore'):
            if not ok or dpp: x = None
            elif op in ('v_mov_b32', 'v_accvgpr_write_b32', 'v_accvgpr_read_b32', 'v_accvgpr_mov_b32'): x = src[0]
            elif op == 'v_add_u32': x = src[0] + src[1]
            elif op == 'v_sub_u32': x = src[0] - src[1]
            elif op == 'v_subrev_u32': x = src[1] - src[0]
            elif op == 'v_lshlrev_b32': x = src[1] << (src[0] & U(31))
            elif op == 'v_lshrrev_b32': x = src[1] >> (src[0] & U(31))
            elif op == 'v_and_b32': x = src[0] & src[1]
            elif op == 'v_or_b32': x = src[0] | src[1]
            elif op == 'v_xor_b32': x = src[0] ^ src[1]
            elif op == 'v_bfe_u32': x = (src[0] >> src[1]) & ((U(1) << src[2]) - U(1))
            elif op == 'v_lshl_add_u32': x = (src[0] << src[1]) + src[2]
            elif op == 'v_lshl_or_b32': x = (src[0] << src[1]) | src[2]
            elif op == 'v_and_or_b32': x = (src[0] & src[1]) | src[2]
            elif op == 'v_add_lshl_u32': x = (src[0] + src[1]) << src[2]
            elif op == 'v_add3_u32': x = src[0] + src[1] + src[2]
            elif op in ('v_mul_u32_u24', 'v_mul_lo_u32'): x = src[0] * src[1]
            elif op == 'v_mad_u32_u24': x = src[0] * src[1] + src[2]
            elif op == 'v_min_u32': x = np.minimum(src[0], src[1])
            elif op == 'v_max_u32': x = np.maximum(src[0], src[1])
            elif op == 'v_max_i32': x = np.maximum(src[0].view(np.int32), src[1].view(np.int32)).view(U)
        if op == 'v_cndmask_b32':
            m = self.sval64(A[3]); a, b = self.vval(A[1]), self.vval(A[2])
            x = None
            if m is not None and a is not None and b is not None:
                mm = np.array([(m >> l) & 1 for l in range(64)], dtype=bool); x = np.where(mm, b, a).astype(U)
        ex = self.sval64('exec')
        for r in I.wr:
            if r[0] in 'va':
                if x is not None and len(I.wr) == 1 and ex == 0xFFFFFFFFFFFFFFFF: self.v[r] = x.astype(U)
                else: self.v[r] = None

def lds_races(waves):
    errs = []
    evs = [e for w in waves for e in w.lds_ev]
    wrs = [e for e in evs if e['wr']]
    wrs.sort(key=lambda e: e['lo'])
    def overlap(a, b):
        if a['hi'] <= b['lo'] or b['hi'] <= a['lo']: return False
        sa = set((a['a'][:, None] // 4 + np.arange(a['sz'] // 4)[None]).ravel().tolist())
        sb = set((b['a'][:, None] // 4 + np.arange(b['sz'] // 4)[None]).ravel().tolist())
        return bool(sa & sb)
    from collections import defaultdict
    bk = defaultdict(list)
    for e in wrs:
        for b in range(e['lo'] // 1024, (e['hi'] - 1) // 1024 + 1): bk[b].append(e)
    seen = set()
    for e in evs:
        if not e['wr'] and not e.get('used'): continue
        cands = {}
        for b in range(e['lo'] // 1024, (e['hi'] - 1) // 1024 + 1):
            for w in bk[b]: cands[id(w)] = w
        for w in cands.values():
            if w is e: continue
            if w['w'] == e['w']:
                a, b = (w, e) if w['iss'][1] < e['iss'][1] else (e, w)
                if a['op'] != 'dma' and b['op'] != 'dma': continue
                if a['op'] == 'dma' and b['op'] == 'dma': continue
                ok = a['done'] is not None and a['done'][1] < b['iss'][1]
            else:
                ok = (w['done'][0] < e['iss'][0]) or (e['done'][0] < w['iss'][0])
            if not ok:
                key = (w['line'], e['line'])
                if key in seen: continue
                if overlap(w, e):
                    seen.add(key)
                    errs.append(f"LDS race: wave{w['w']} line {w['line']} iss{w['iss']} done{w['done']} [{w['lo']},{w['hi']}) vs wave{e['w']} line {e['line']} iss{e['iss']} done{e['done']} [{e['lo']},{e['hi']})")
    return errs

def bank_conflicts(waves):
    G128 = [list(range(0,4))+list(range(12,16))+list(range(20,28)), list(range(4,12))+list(range(16,20))+list(range(28,32))]
    G128 += [[x+32 for x in g] for g in G128]
    out = {}
    for w in waves:
        for e in w.lds_ev:
            if e['op'] == 'ds_read_b128': groups = G128; nb = 64
            elif e['op'] in ('ds_read_b64_tr_b16', 'ds_read_b64'): groups = [list(range(32)), list(range(32, 64))]; nb = 64
            elif e['op'] == 'ds_write_b128': groups = [list(range(8*i, 8*i+8)) for i in range(8)]; nb = 32
            else: continue
            worst = 1
            for g in groups:
                cnt = {}
                for l in g:
                    for j in range(e['sz'] // 4):
                        d = int(e['a'][l]) // 4 + j
                        cnt.setdefault(d % nb, set()).add(d)
                worst = max(worst, max(len(x) for x in cnt.values()))
            if worst > 1: out[e['line']] = max(out.get(e['line'], 1), worst)
    return out

ARGS = [2<<20, 1536*1024, 512*1024, 2<<20, 2<<20, 4<<20, 4<<20, 4<<20, 4<<20, 4<<20, 256, 256<<20]

def check_wg(ins, labels, entry, wg, nw, lds, policy=None, verbose=False):
    ws = []
    for w in range(nw):
        W = Wave(ins, labels, entry, wg, w, ARGS, lds, policy); W.run(); ws.append(W)
    errs = [e for W in ws for e in W.errors] + lds_races(ws)
    bc = bank_conflicts(ws)
    if bc: errs.append(f"bank conflicts (line:way): {bc}")
    if verbose:
        print(f"wg{wg}: epochs {[W.epoch for W in ws]} nins {[W.nins for W in ws]} counts {ws[0].counts} oob {[sum(e['oob'] for e in W.gl_ev) for W in ws]}")
    return ws, errs
```

```python
import sys
import common
from common import *
NAME = "concat_heads__sliding_local_dilated__compressed_kv_cla__prompt"
KN = NAME + "_kernel"
def build():
    import eng, att, op
    o = Out()
    hdr = open(f"cdna_kernels/{NAME}.s.ref").read().split('\n')
    o.l += [l for l in hdr if l.startswith(';') and '@launch' not in l]
    o("; @launch grid=(256,1,1) block=(256,1,1) lds=163840")
    o('.amdgcn_target "amdgcn-amd-amdhsa--gfx950"\n.text')
    o(head(KN))
    r = ["s_cmp_ge_u32 s2, 256", "s_cbranch_scc1 L_end", "s_load_dwordx16 s[56:71], s[0:1], 0", "s_load_dwordx8 s[72:79], s[0:1], 64"] + stamp_init()
    r += f"""v_lshrrev_b32 v1, 6, v0
    s_and_b32 s{S_X}, s2, 7
    v_readfirstlane_b32 s{S_W}, v1
    s_lshr_b32 s{S_I}, s2, 3
    s_and_b32 s{S_H}, s{S_I}, 3
    s_lshl2_add_u32 s{S_H}, s{S_X}, s{S_H}
    s_lshr_b32 s{S_I}, s{S_I}, 2""".split('\n')
    if not opt('NOCPF'):
        r += ["s_getpc_b64 s[100:101]", "L_pc:", "s_lshr_b32 s3, s2, 3", f"s_lshl2_add_u32 s3, s3, s{S_W}", "s_lshl_b32 s3, s3, 9", "v_and_b32 v4, 3, v0", "v_lshlrev_b32 v4, 7, v4",
              "v_add_u32 v4, s3, v4", "v_min_u32 v4, CODE_LEN, v4", "v_mov_b32 v5, s101", "v_add_co_u32 v4, vcc, s100, v4", "s_nop 1", "v_addc_co_u32 v5, vcc, 0, v5, vcc",
              "s_mov_b64 exec, 15", "global_load_dword v3, v[4:5], off", "s_mov_b64 exec, -1"]
    SG = 49 if opt('DP', '2') == '2' else 43
    hooks = {('wait', SG): ['STV', 'STK'], ('wait', 41): ['NON']}
    J = '\n'.join
    hooks[('misc', 36)] = [(12, J(["v_mov_b32 v15, 0", f"buffer_load_dword v14, v15, {sr(R_X)}, 0 offen sc1 ; @NON"]))]
    hooks[('misc', 41)] = [(30, J(poll_check(14, 100, R_X, "v_cmp_eq_u32 vcc, 0, v14") + [f"v_readfirstlane_b32 s{S_NON}, v14"]))]
    hooks[('misc', SG)] = [(4, J(signal('KV', 124)))]
    hooks[('misc', 50)] = [(1, x) for x in reversed(att.early_setup()[:6])] + [(3, att.early_setup()[6])]
    hooks[('misc', 52)] = [(3, J(poll_issue('KV', 14, 'PKV')))]
    hooks[('wait', 56)] = ['PKV']
    hooks[('misc', 56)] = [(3, J(poll_check(14, 100))), (10, J(op.relayout_stores()))]
    hooks[('misc', 48)] = [(1, J(op.relayout_loads()))]
    hooks[('wait', 55)] = ['WO']
    hooks[('misc', 55)] = [(1, J(op.relayout_reads()))]
    p1 = att.prologue1()
    sl = [(G, gp) for G in range(51, 57) for gp in (2, 4, 6, 8, 10, 12)]
    assert len(p1) <= len(sl)
    for x, (G, gp) in zip(p1, sl): hooks[('seq', G)] = hooks.get(('seq', G), []) + [(gp, x)]
    for k, x in enumerate(eng.a_masks()): hooks[('misc', 57 + k)] = [(1, x)]
    for c, G in enumerate((58, 59, 61)): hooks[('dma', G)] = att.chunk_dma(c)
    r += eng.engine(hooks) + stamp('eng')
    stop = opt('STOP')
    mix = att.prologue_mix(eng.a_attention(), [x for c in range(3, 7) for x in att.chunk_dma(c)], [])
    r += ["@wait C1", "s_barrier"] + att.k0reads() + stamp('j1') + mix + stamp('aa') + att.prologue2() + ["@wait STO"] + stamp('att')
    r += att.main_loop(op.scalars(), signal('OA', 116) + signal('WO', 116) + signal('WA', 116, [f"s_and_b32 s100, s{S_H}, 7", "s_cmp_lg_u32 s100, 0"]), op.polls(), op.checks(), op.w_first())
    r += stamp('epi') + op.pre_join() + ["@wait CST"] + stamp('vm0') + ["s_barrier"] + signal('CTX', 20) + stamp('op0')
    r += op.outproj()
    r += stamp_end(0) + ["s_endpgm"] + att.fallback()
    lines = []
    for x in r: lines += [y.strip() for y in x.split('\n')]
    lines = VmQ().scan(lines)
    import align
    clen = sum(align.size(x.replace('CODE_LEN', '1000')) for x in lines) - 256
    o.ext([x.replace('CODE_LEN', str(clen)) for x in lines])
    o("L_end:\ns_endpgm")
    o(kd(KN, 512, 256))
    return o.text()
if __name__ == '__main__':
    common.INSTR = len(sys.argv) > 2 and sys.argv[2] == 'instr'
    t = build()
    open(sys.argv[1], 'w').write(t)
    import sim
    ins, labels = sim.parse(t)
    bad = 0
    for wg in ([0, 37, 131, 250, 255] if not opt('QUICK') else [0]):
        ws, errs = sim.check_wg(ins, labels, KN, wg, 4, 163840, verbose=True, policy={'AT_fb': wg in (37, 255), 'OP_wx': wg in (0, 37)})
        for e in errs[:12]: print("  ERR", e)
        bad += len(errs)
    print("errors:", bad)
```

```python
import math, os, struct
def opt(k, d=''): return os.environ.get(k, d)
HL = 65 * 16384
HS = HL + int(opt('HSK', '1024'))
WS_KV = 0
WS_C = 36 << 20
WS_OA = 52 << 20
WS_WO = 56 << 20
WS_WA = 60 << 20
WS_XB = 64 << 20
WS_END = 80 << 20
OOB = 0x40000000
NEG_BIG = 0xf149f2ca
def f2u(x): return struct.unpack('<I', struct.pack('<f', x))[0]
def vr(b, n=4): return f"v[{b}:{b+n-1}]" if n > 1 else f"v{b}"
def ar(b, n=4): return f"a[{b}:{b+n-1}]" if n > 1 else f"a{b}"
def sr(b, n=4): return f"s[{b}:{b+n-1}]" if n > 1 else f"s{b}"

class Out:
    def __init__(self): self.l = []
    def __call__(self, s):
        for x in s.split('\n'):
            x = x.strip()
            if not x: continue
            if x.endswith(':') or x.startswith('.') or x.startswith(';'): self.l.append(x)
            else: self.l.append('    ' + x)
    def ext(self, lst):
        for x in lst: self(x)
    def text(self): return '\n'.join(self.l) + '\n'

class Gaps:
    def __init__(self, mf):
        self.mf = mf; self.g = {i: [] for i in range(-1, len(mf))}
    def put(self, i, *ins):
        i = min(i, len(self.mf) - 1); self.g[i] += list(ins)
    def front(self, i, *ins):
        i = min(i, len(self.mf) - 1); self.g[i] = list(ins) + self.g[i]
    def lines(self):
        r = list(self.g[-1])
        for i, m in enumerate(self.mf): r += [m] + self.g[i]
        return r
    def emit(self, o): o.ext(self.lines())

def mfma(d, a, b, c): return f"v_mfma_f32_16x16x32_bf16 {d}, {a}, {b}, {c}"

P_XA, P_WQKV, P_WO_A, P_XB, P_CKV, P_WQ, P_WUK, P_WUV, P_WO, P_OUT, P_DBG, P_WS = [56 + 2 * i for i in range(12)]
def srd(base, ptr, nrec, add=None):
    if opt('NOACT') and ptr in (P_XA, P_XB, P_CKV): nrec = 0
    if opt('NOW') and ptr in (P_WQ, P_WUK, P_WUV, P_WQKV): nrec = 0
    if add is None: r = [f"s_mov_b32 s{base}, s{ptr}", f"s_mov_b32 s{base+1}, s{ptr+1}"]
    else: r = [f"s_add_u32 s{base}, s{ptr}, {add}", f"s_addc_u32 s{base+1}, s{ptr+1}, 0"]
    return r + [f"s_mov_b32 s{base+2}, {nrec}", f"s_mov_b32 s{base+3}, 0x20000"]
R_A0, R_A1, R_W0, R_W1, R_WS, R_X = 4, 8, 12, 16, 20, 24
S_W = 28; S_H = 29; S_I = 30
S_X = 31

def kd(name, vgpr, acc, sgpr=102):
    return f""".section .rodata,"a"
.p2align 6
.amdhsa_kernel {name}
  .amdhsa_next_free_vgpr {vgpr}
  .amdhsa_next_free_sgpr {sgpr}
  .amdhsa_accum_offset {acc}
  .amdhsa_group_segment_fixed_size 0
  .amdhsa_kernarg_size 96
  .amdhsa_user_sgpr_count 2
  .amdhsa_user_sgpr_kernarg_segment_ptr 1
  .amdhsa_system_sgpr_workgroup_id_x 1
.end_amdhsa_kernel
.text
"""
def head(name): return f".globl {name}\n.p2align 8\n.type {name},@function\n{name}:\n"

class VmQ:
    def __init__(self): self.q = []
    def scan(self, lines):
        out = []
        for x in lines:
            if x.startswith('@wait'):
                p = x.split()
                n = min(self.need(t) for t in p[1].split(','))
                extra = ' '.join(p[2:])
                out.append(f"s_waitcnt vmcnt({min(n, 63)}) {extra}".strip())
                continue
            if x.startswith('buffer_') or x.startswith('global_'):
                tag = x.split('@')[1].strip() if '@' in x else '-'
                if tag != 'skip': self.q.append(tag)
            out.append(x)
        return out
    def need(self, tag):
        idx = [i for i, t in enumerate(self.q) if t == tag]
        if not idx: return 63
        return len(self.q) - 1 - idx[-1]

INSTR = False
def stamp(name):
    names = opt('STAMPS', 'go,k,eng,att,f,pc').split(',')
    if name not in names: return []
    i = names.index(name) + 1
    return [f"{'s_memtime' if opt('CYC') else 's_memrealtime'} s[{84+2*i}:{85+2*i}]", "s_waitcnt lgkmcnt(0)"] if globals()["INSTR"] else []
def stamp_init():
    if not globals()["INSTR"]: return []
    return [("s_memtime" if opt('CYC') else "s_memrealtime") + " s[84:85]", "s_memtime s[80:81]"] + [f"s_mov_b32 s{84+2*i}, 0" for i in range(1, 8)]
def stamp_end(kidx):
    if not globals()["INSTR"]: return []
    r = f"""s_waitcnt vmcnt(0) lgkmcnt(0)
    {'s_memtime' if opt('CYC') else 's_memrealtime'} s[98:99]
    s_memtime s[82:83]
    s_add_u32 s4, s{P_WS}, {(128 << 20) + kidx * 65536}
    s_addc_u32 s5, s{P_WS+1}, 0
    s_mov_b32 s6, 65536
    s_mov_b32 s7, 0x20000
    s_waitcnt lgkmcnt(0)
    s_sub_u32 s82, s82, s80
    s_lshl_b32 s80, s2, 8
    s_lshl_b32 s81, s{S_W}, 6
    s_add_u32 s80, s80, s81
    v_mov_b32 v253, s80
    v_mov_b32 v252, s82""".split('\n')
    if opt('DBGOUT'):
        q = ["s_waitcnt vmcnt(0) lgkmcnt(0)", "s_memrealtime s[98:99]", "s_waitcnt lgkmcnt(0)", f"s_cmp_lg_u32 s{S_W}, 3", "s_cbranch_scc1 L_dx", "s_and_b32 s80, s2, 0xfb", "s_cmp_lg_u32 s80, 0", "s_cbranch_scc1 L_dx",
             "s_mul_i32 s80, s2, 7", "s_add_u32 s80, s80, 4", "v_mov_b32 v253, s80", "s_mov_b64 exec, 1"]
        for i in range(1, 8):
            q += [f"s_sub_u32 s81, s{84+2*i}, s84", "v_mov_b32 v252, s81", f"buffer_store_dword v252, v253, {sr(R_X)}, 0 offen offset:{4*(i-1)}"]
        return q + ["L_dx:"]
    for i in range(8): r.append(f"v_mov_b32 v{244+i}, s{84+2*i}")
    r += ["s_mov_b64 exec, 1", "buffer_store_dwordx4 v[244:247], v253, s[4:7], 0 offen", "buffer_store_dwordx4 v[248:251], v253, s[4:7], 0 offen offset:16",
          "buffer_store_dword v252, v253, s[4:7], 0 offen offset:32"]
    return [x.strip() for x in r]

WS_MB = 55 << 20
MB = {'CTX': (0, 8), 'KV': (32, 8), 'OA': (64, 8), 'WA': (112, 4), 'WO': (128, 16), 'XB': (192, 16)}
S_NON = 3
uidc = [0]
def signal(kind, v, cond=()):
    uidc[0] += 1; l = f"SG{uidc[0]}"
    r = ([f"s_cmp_lg_u32 s{S_W}, 0", f"s_cbranch_scc1 {l}"] if kind != 'XB' else []) + list(cond) + ([f"s_cbranch_scc1 {l}"] if cond else [])
    X, Jv = v, v + 1
    if kind == 'KV':
        r += [f"v_mov_b32 v{X}, s{S_X}", f"s_and_b32 s100, s{S_H}, 3", f"v_lshl_add_u32 v{Jv}, v1, 2, s100"]; n = 8
        word = [f"s_mov_b32 s100, s{S_I}"]
    elif kind == 'OA':
        r += [f"s_lshr_b32 s100, s53, 2", f"v_mov_b32 v{X}, s100", f"s_and_b32 s100, s53, 3", f"v_lshl_add_u32 v{Jv}, v1, 2, s100"]; n = 8
        word = [f"s_and_b32 s100, s{S_H}, 7"]
    elif kind == 'WA':
        r += [f"v_lshrrev_b32 v{X}, 2, v1", f"v_and_b32 v{Jv}, 3, v1", f"s_lshl_b32 s100, s{S_I}, 2", f"v_add_u32 v{Jv}, s100, v{Jv}"]; n = 32
        word = [f"s_lshr_b32 s100, s{S_H}, 3"]
    elif kind == 'WO':
        r += [f"s_and_b32 s100, s{S_X}, 6", f"v_and_b32 v{X}, 1, v1", f"v_add_u32 v{X}, s100, v{X}", f"v_lshrrev_b32 v{Jv}, 1, v1", f"s_lshr_b32 s100, s{S_I}, 1",
              f"v_lshl_add_u32 v{Jv}, v{Jv}, 2, s100"]; n = 16
        word = [f"s_and_b32 s100, s{S_H}, 7", "s_lshl_b32 s100, s100, 1", f"s_and_b32 s101, s{S_I}, 1", "s_add_u32 s100, s100, s101"]
    elif kind == 'CTX':
        r += [f"s_and_b32 s100, s{S_X}, 6", f"v_and_b32 v{X}, 1, v1", f"v_add_u32 v{X}, s100, v{X}", f"v_lshrrev_b32 v{Jv}, 1, v1", f"s_lshl_b32 s100, s{S_I}, 2",
              f"v_add_u32 v{Jv}, s100, v{Jv}"]; n = 8
        word = [f"s_and_b32 s100, s{S_H}, 7"]
    else:
        r += [f"v_lshl_add_u32 v{X}, v1, 1, s{S_X}", f"v_and_b32 v{X}, 7, v{X}", "s_lshr_b32 s100, s2, 3", f"v_mov_b32 v{Jv}, s100"]; n = 4
        word = [f"s_mov_b32 s100, s{S_W}"]
    r += [f"v_lshl_add_u32 v{v+2}, v{Jv}, 3, v{X}", f"v_lshlrev_b32 v{v+2}, 9, v{v+2}"]
    if kind == 'XB': r += [f"v_lshl_add_u32 v{v+2}, v1, 4, v{v+2}"]
    r += word + ["s_lshl_b32 s100, s100, 2", f"s_add_u32 s100, s100, {WS_MB + MB[kind][0]}", f"v_mov_b32 v{v}, s{S_NON}", f"s_mov_b64 exec, {(1 << n) - (2 if kind == 'XB' else 1):#x}",
          f"buffer_store_dword v{v}, v{v+2}, {sr(R_WS)}, s100 offen sc1 ; @skip", "s_mov_b64 exec, -1", f"{l}:"]
    return r
def poll_issue(kind, vd, tag):
    off, n = MB[kind[:3] if kind.startswith('CTX') else kind]
    if kind.startswith('CTX'):
        return [f"s_and_b32 s101, s{S_H}, 4"] + (["s_xor_b32 s101, s101, 4"] if kind == 'CTX2' else []) + [
                "s_lshl_b32 s100, s2, 7", "s_add_u32 s100, s100, s101", "s_lshl_b32 s100, s100, 2", f"s_add_u32 s100, s100, {WS_MB + off}", f"v_and_b32 v{vd+1}, 3, v1",
                f"v_lshl_add_u32 v{vd+1}, v{vd+1}, 2, s100", f"buffer_load_dword v{vd}, v{vd+1}, {sr(R_WS)}, 0 offen sc1 ; @{tag}"]
    if kind == 'XB':
        return [f"s_lshl_b32 s100, s2, 7", f"s_add_u32 s100, s100, s{S_W}", "s_lshl_b32 s100, s100, 2", f"s_add_u32 s100, s100, {WS_MB + off}", f"v_and_b32 v{vd+1}, 3, v1",
                f"v_max_u32 v{vd+1}, 1, v{vd+1}", f"v_lshl_add_u32 v{vd+1}, v{vd+1}, 4, s100", f"buffer_load_dword v{vd}, v{vd+1}, {sr(R_WS)}, 0 offen sc1 ; @{tag}"]
    return [f"s_lshl_b32 s100, s2, 9", f"s_add_u32 s100, s100, {WS_MB + off}", f"v_and_b32 v{vd+1}, {n-1}, v1", f"v_lshl_add_u32 v{vd+1}, v{vd+1}, 2, s100",
            f"buffer_load_dword v{vd}, v{vd+1}, {sr(R_WS)}, 0 offen sc1 ; @{tag}"]
def poll_check(vd, st, R=None, cmp=None):
    uidc[0] += 1; l = f"PL{uidc[0]}"
    R = R_WS if R is None else R
    return [f"s_mov_b32 s{st}, 0x20000", f"{l}:", cmp or f"v_cmp_ne_u32 vcc, s{S_NON}, v{vd}", f"s_cbranch_vccz {l}x ; @taken",
            f"s_sub_u32 s{st}, s{st}, 1", f"s_cbranch_scc1 {l}x", "s_sleep 4",
            f"buffer_load_dword v{vd}, v{vd+1}, {sr(R)}, 0 offen sc1 ; @skip", "s_waitcnt vmcnt(0)", f"s_branch {l}", f"{l}x:"]
```

```python
from common import *
KSCALE = f2u(math.log2(math.e) / math.sqrt(128.0))
ASC = f2u(0.25 * math.log2(math.e))
V_L16 = 2; V_AD = 4; V_WD = 8; V_WV = 10; V_AR = 12
V_TR = 16; V_PK = 24; V_TV = 28
def WF(buf, T): return 32 + buf * 32 + T * 4
def WFV(buf, T): return 32 + buf * 16 + T * 4
def WFA(buf, f): return 32 + buf * 12 + f * 4
AAC = 60
def XF(buf, tb): return buf * 20 + tb * 4
def XP(tb, ks): return (ks * 4 + tb) * 4
V_MP = 16; V_MC = 20; V_MP1 = 28; V_ONE = 56
V_WA = 116; V_WT = 117; V_AX = 118; V_A3 = 120; V_OD = 122; V_TA = 8
ACCV = 128
def VAC(hf, T, tb): return (64 if hf == 0 else 128) + (T * 4 + tb) * 4
def QF(b, s): return 64 + (b * 4 + s) * 4
S_CK = 32; S_QL = 33; S_QS = 34; S_KA = 35; S_KW = 36; S_WC = 37; S_AR = 38; S_WL = 39
S_AG = 40; S_AL = 43; S_AW = 44; S_KB = 45; S_KVS = 46; S_T = 47; S_T2 = 48; S_T3 = 49; S_KS = 50; S_AC = 51; S_OA = 52; S_TT = 53; S_KVO = 54
PASSES = [('K', None), ('V', None), ('Q', None), ('A', None)]
NST = 64
ST = 'sc1'
ROT = not opt('NOROT')
def ptype(G): return PASSES[G // 16][0]

def adv(s): return [f"s_add_u32 s{s}, s{s}, 128", f"s_and_b32 s{s}, s{s}, 1023"]

def act_dma(P, half):
    t = ptype(2 * P); base = (AP(P) % 3) * 8192
    pre = adv(S_KA) if half == 0 and P > 0 else []
    if t == 'A':
        r = []
        for k in range(3 * half, 3 * half + 3):
            sect, j = k >> 1, k & 1
            sal = []
            if k == 0: sal += pre + [f"s_mul_i32 s{S_T2}, s{S_KA}, 1536", f"s_add_u32 s{S_T2}, s{S_T2}, s{S_AW}"]
            if j == 0 or k == 3: sal += [f"s_add_u32 s{S_T}, s{S_T2}, {sect * 1024}", f"s_add_u32 m0, s{S_AR}, {base + sect * 2048}"]
            r.append((sal, f"buffer_load_dwordx4 v{V_WA if j == 0 else V_WT}, {sr(R_W1)}, s{S_T} offen offset:{j*1024} lds ; @X{P}"))
        return r
    R = R_A1 if t == 'Q' else R_A0
    src = (S_QS if half else S_QL) if t == 'Q' else S_CK
    sal = pre + [f"s_add_u32 s{S_T}, s{src}, s{S_KA}"]
    if t != 'Q' and half: sal += [f"s_add_u32 s{S_T}, s{S_T}, 32768"]
    sal += [f"s_add_u32 m0, s{S_AR}, {base + half * 4096}"]
    return [(sal if k == 0 else [], f"buffer_load_dwordx4 v{V_AD+k}, {sr(R)}, s{S_T} offen offset:{k*1024} lds ; @X{P}") for k in range(4)]

def w_dma(G):
    t = ptype(G); tag = f"W{G//2}"
    pre = adv(S_KB) if G % 2 == 0 and G > 0 else []
    if t == 'V':
        sal = adv(S_KB) + [f"s_lshl_b32 s{S_KW}, s{S_KB}, 12", f"s_add_u32 s{S_KW}, s{S_KW}, s{S_WC}"] + ([f"s_add_u32 s{S_KW}, s{S_KW}, 128"] if G >= 24 else [])
        sal += [f"s_add_u32 m0, s{S_WL}, {(G % 8) * 8192}"]
        return [(sal, f"buffer_load_dwordx4 v{V_WV}, {sr(R_W1)}, s{S_KW} offen lds ; @{tag}"),
                ([], f"buffer_load_dwordx4 v{V_WV+1}, {sr(R_W1)}, s{S_KW} offen offset:1024 lds ; @{tag}")]
    if t != 'A':
        R = R_W0
        sal = pre + ([f"s_lshl_b32 s{S_KW}, s{S_KB}, 12", f"s_add_u32 s{S_KW}, s{S_KW}, s{S_WC}"] if G % 2 == 0 else [f"s_add_u32 s{S_KW}, s{S_KW}, 262144"])
        sal += [f"s_add_u32 m0, s{S_WL}, {(G % 8) * 8192}"]
        return [(sal, f"buffer_load_dwordx4 v{V_WD}, {sr(R)}, s{S_KW} offen lds ; @{tag}"),
                ([], f"buffer_load_dwordx4 v{V_WD+1}, {sr(R)}, s{S_KW} offen offset:1024 lds ; @{tag}")]
    r = []
    for k in ((0, 1) if G % 2 == 0 else (2,)):
        r.append(((pre if k == 0 else []) + [f"s_add_u32 s{S_T3}, s{S_AG+k}, s{S_KB}", f"s_add_u32 m0, s{S_AL}, {((G // 2) % 4) * 16384 + k * 1024}"],
                  f"buffer_load_dwordx4 v{V_A3 + (k & 1)}, {sr(R_A0)}, s{S_T3} offen lds ; @{tag}"))
    return r

def AP(P): return P if P < 8 else P - 8
def vreads(G, e2):
    return [f"ds_read_b64_tr_b16 {vr(WFV(e2, T) + 2*e, 2)}, v{V_TV+T} offset:{(G % 8) * 8192 + e2 * 4096 + e * 512}" for T in range(4) for e in range(2)]
def reads(G):
    t = ptype(G); buf = G & 1; P = G // 2
    if t == 'A':
        r = [f"ds_read_b128 {ar(XF(buf, tb))}, v{V_AX + (G & 1)} offset:{(P % 4) * 16384 + tb * 2048}" for tb in range(5)]
        for f, sect in enumerate((1, 2, 0)):
            r += [f"ds_read_b64_tr_b16 {vr(WFA(buf, f) + 2*e, 2)}, v{V_TA + (G & 1)} offset:{(AP(P) % 3) * 8192 + sect * 2048 + e * 512}" for e in range(2)]
        return r
    if t == 'V': return vreads(G, 0)
    r = [f"ds_read_b128 {ar(XP(tb, G) if t == 'K' else XF(buf, tb))}, v{V_AR + (G & 1)} offset:{(AP(P) % 3) * 8192 + tb * 2048}" for tb in range(4)]
    for T in range(8):
        r += [f"ds_read_b64_tr_b16 {vr(WF(buf, T) + 2*e, 2)}, v{V_TR+T} offset:{(G % 8) * 8192 + e * 1024}" for e in range(2)]
    return r

def AACC(f, tb): return AAC + (f * 5 + tb - (1 if f == 2 else 0)) * 4
def mfmas(G):
    t = ptype(G); ks = G % 16; buf = G & 1; mf = []
    if t == 'A':
        for f in range(3):
            for tb in range(1 if f == 2 else 0, 5):
                d = vr(AACC(f, tb)); c = d if ks else '0'
                if f == 1: mf.append(mfma(d, ar(XF(buf, tb)), vr(WFA(buf, f)), c))
                else: mf.append(mfma(d, vr(WFA(buf, f)), ar(XF(buf, tb)), c))
        return mf
    if t == 'V':
        hf = ks >> 3
        for e2 in range(2):
            kk = 2 * (ks & 7) + e2
            for T in range(4):
                for tb in range(4):
                    d = vr(VAC(hf, T, tb)); mf.append(mfma(d, ar(XP(tb, kk)), vr(WFV(e2, T)), d if kk else '0'))
        return mf
    for T in range(8):
        for tb in range(4):
            d = (ar if t == 'Q' else vr)(ACCV + (T * 4 + tb) * 4); c = d if ks else '0'
            mf.append(mfma(d, vr(WF(buf, T)), ar(XP(tb, ks) if t == 'K' else XF(buf, tb)), c))
    return mf

def drain(dt, k):
    pk = V_PK
    if dt == 'Z': return [f"v_mov_b32 v{k+i}, 0" for i in range(4)]
    if dt == 'K':
        s, tb = k >> 2, k & 3
        lo = ACCV + ((2 * s) * 4 + tb) * 4; hi = lo + 16
        va = [f"v_mul_f32 v{r}, s{S_KS}, v{r}" for r in list(range(lo, lo + 4)) + list(range(hi, hi + 4))]
        src = [lo, lo + 2, hi, hi + 2]
        off = (tb >> 1) * 16384 + ((tb & 1) * 4 + s) * 1024
    elif dt == 'V':
        hf, T, p = k >> 3, (k >> 1) & 3, k & 1
        lo = VAC(hf, T, 2 * p); va = []
        src = [lo + 2 * r for r in range(4)]
        off = (p + 1) * 16384 + 8192 + (hf * 4 + T) * 1024
    else:
        tb, s = k >> 2, k & 3
        va = []
        for h in range(2):
            a = ACCV + ((2 * s + h) * 4 + tb) * 4
            va += [f"v_accvgpr_read_b32 v{pk+i}, a{a+i}" for i in range(4)] + [f"v_cvt_pk_bf16_f32 v{pk+2*i}, v{pk+2*i}, v{pk+2*i+1}" for i in range(2)]
            va += [f"v_accvgpr_write_b32 a{QF(tb, s)+2*h+i}, v{pk+2*i}" for i in range(2)]
        return va
    va += [f"v_cvt_pk_bf16_f32 v{pk+i}, v{x}, v{x+1}" for i, x in enumerate(src)]
    if opt('NOKVST'): return va
    return va + [f"s_add_u32 s{S_KVO}, s{S_KVS}, {off}", f"buffer_store_dwordx4 {vr(pk)}, v{V_L16}, {sr(R_WS)}, s{S_KVO} offen {opt('KVST', ST)} ; @ST{dt}"]

def drain_plan():
    d = {G: [] for G in range(NST)}
    if opt('DP', '2') == '2':
        for G in range(16, 24): d[G] = [('K', G - 16)]
        for G in range(24, 31): d[G] = [('V', G - 23)]
        d[24] = [('V', 0), ('V', 1)]; d[31] = [('K', 8)]
        for G in range(32, 40): d[G] = [('V', G - 24)]
        for G in range(40, 47): d[G] = [('K', G - 31)]
        for k in range(8, 16):
            lo = ACCV + 32 * (k >> 2) + 4 * (k & 3); G = 32 if k == 8 else k + 32
            d[G] += [('Z', lo), ('Z', lo + 16)]
        for G in range(40, 48): d[G] += [('Z', 128 + 8 * (G - 40)), ('Z', 132 + 8 * (G - 40))]
        for G in range(48, 64): d[G] = [('Q', G - 48)]
        for G in range(58, 62): d[G] += [('Z', ACCV + 32 * (G - 58)), ('Z', ACCV + 32 * (G - 58) + 16)]
        return d
    q = [('K', k) for k in range(12)]
    for G in range(16, 24): d[G] = [q.pop(0) for _ in range(1 + G % 2)]
    q = [('V', k) for k in range(8)] + [('K', k) for k in range(12, 16)]
    for G in range(24, 32): d[G] = [q.pop(0) for _ in range(2 - G % 2 if G < 30 else 1 + (G == 30) * 2 - (G == 31))]
    assert not q, q
    for G in range(32, 40): d[G] = [('V', 8 + G - 32), ('Z', 192 + 8 * (G - 32)), ('Z', 196 + 8 * (G - 32))]
    for G in range(40, 48): d[G] = [('Z', 128 + 8 * (G - 40)), ('Z', 132 + 8 * (G - 40))]
    for G in range(48, 64): d[G] = [('Q', G - 48)]
    for G in range(58, 62): d[G] += [('Z', ACCV + 32 * (G - 58)), ('Z', ACCV + 32 * (G - 58) + 16)]
    return d
DRAIN = drain_plan()

def dma_plan():
    plan = {0: [('A', 2, 0), ('A', 2, 1)], 1: [('W', 4), ('W', 5), ('A', 3, 0)], 2: [('A', 3, 1), ('W', 6), ('W', 7)], 3: [('A', 4, 0), ('A', 4, 1)],
            4: [('W', 8), ('W', 9), ('W', 10), ('W', 11)]}
    for G in range(5, NST):
        P = (G + 5) // 2
        if G % 2: plan[G] = [('A', P, h) for h in range(2)] if (P < 8 or 19 <= P < NST // 2) else []
        else: plan[G] = [('W', k) for k in (G + 6, G + 7) if k < NST]
    for k, G in enumerate(eval(opt('XBS', '(17, 19, 21, 23, 25, 27)'))): plan[G] = [('A', 16 + k // 2, k % 2)]
    return plan
PLAN = dma_plan()

def step(G, hooks):
    t = ptype(G)
    g = Gaps(mfmas(G)); n = len(g.mf)
    nxt = G + 1 < NST
    odd = G % 2 == 1
    rd = reads(G + 1) if nxt else []
    dl = []
    for it in PLAN[G]: dl += act_dma(it[1], it[2]) if it[0] == 'A' else w_dma(it[1])
    dl += hooks.get(('dma', G), [])
    tags = ([f"X{(G+1)//2}", f"W{(G+1)//2}"] if odd and nxt else []) + hooks.get(('wait', G), [])
    full = [f"@wait {','.join(tags)} lgkmcnt(0)" if tags else "s_waitcnt lgkmcnt(0)"] + (["s_barrier"] if odd and nxt else [])
    v0 = 0
    if t == 'V':
        g.put(-1, "s_waitcnt lgkmcnt(0)")
        dgap = [4, 10, 20, 26] if len(dl) <= 4 else [4, 7, 10, 13, 19, 22, 25, 28]
        fr = [x for x in range(32) if x not in dgap[:len(dl)]]
        for x, gp in zip(vreads(G, 1), [x for x in fr if x < 12]): g.put(gp, x)
        g.front(15, *full)
        late = [x for x in fr if x >= 16]
        for k, x in enumerate(rd): g.put(31 if k >= 18 else late[k * len(late) // max(len(rd), len(late))] if len(rd) > len(late) else late[k], x)
        v0 = 2
    elif t != 'A':
        g.put(-1, "s_waitcnt lgkmcnt(12)")
        dgap = [6, 10, 14, 18, 22, 26] if len(dl) <= 6 else [6, 9, 12, 15, 18, 21, 24, 27]
        early = not odd and len(rd) == 20
        if not early: g.front(3, *full)
        rgap = [x for x in range(0 if early else 4, 32) if x not in dgap[:len(dl)]]
        for x, gp in zip(rd, rgap): g.put(gp, x)
        if early:
            n7 = sum(1 for x in rgap[:20] if x < 7)
            g.front(7, *([f"@wait {','.join(tags)} lgkmcnt({n7})"] if tags else [f"s_waitcnt lgkmcnt({n7})"]))
        v0 = 2
    else:
        g.put(-1, "s_waitcnt lgkmcnt(4)")
        g.front(1, *full)
        dgap = [3, 5, 7, 9, 11, 13] if len(dl) <= 6 else [3, 4, 6, 7, 9, 10, 12, 13]
        for x, gp in zip(rd, range(2, 13)): g.put(gp, x)
    assert len(dl) <= len(dgap)
    for (sal, x), gp in zip(dl, dgap):
        for k, y in enumerate(sal):
            q = max(gp - len(sal) + k, 0)
            pos = max([i + 1 for i, z in enumerate(g.g[q]) if z.startswith('buffer_load') or z.startswith('s_') or z.startswith('@')] + [0])
            g.g[q].insert(pos, y)
        g.put(gp, x)
    load = lambda q: sum(1 for z in g.g[q] if not z.startswith('s_') and not z.startswith('@'))
    seq = [x for dt, k in DRAIN[G] for x in drain(dt, k)]
    cap = 2 if t != 'A' else max(2, -(-(len(seq) + 20) // n))
    gp = v0
    for k, x in enumerate(seq):
        if x.startswith('s_'): g.front(gp, x); continue
        if x.startswith('buffer'):
            q = gp + 1
            while q < n - 1 and load(q) > 0 and q < gp + 4: q += 1
            gp = min(q, n - 1); g.put(gp, x); gp = min(gp + 1, n - 1); continue
        while gp < n - 1 and load(gp) >= cap: gp += 1
        g.put(gp, x)
    for gp, x in hooks.get(('seq', G), []): g.front(gp, x) if x.startswith('s_') else g.put(gp, x)
    for gp, x in hooks.get(('misc', G), []): g.front(gp, x) if x.startswith('s_') and '\n' not in x else g.put(gp, x)
    return g.lines()

def setup():
    a = f"""v_and_b32 v1, 63, v0
    v_lshlrev_b32 v{V_L16}, 4, v1
    v_lshrrev_b32 v26, 3, v1
    v_lshrrev_b32 v24, 4, v1
    v_and_b32 v28, 7, v1
    v_xor_b32 v27, v24, v28
    v_lshlrev_b32 v27, 4, v27
    v_lshl_add_u32 v{V_AD}, v26, 10, v27
    v_xor_b32 v27, 64, v{V_AD}
    v_add_u32 v{V_AD+1}, {8192-1024}, v27
    v_add_u32 v{V_AD+2}, {2*(8192-1024)}, v{V_AD}
    v_add_u32 v{V_AD+3}, {3*(8192-1024)}, v27
    s_and_b32 s{S_T}, s{S_W}, 1
    s_lshl_b32 s{S_T}, s{S_T}, 2
    v_or_b32 v25, s{S_T}, v24
    v_lshlrev_b32 v25, 1, v25
    v_and_b32 v26, 15, v1
    v_xor_b32 v25, v25, v26
    v_lshlrev_b32 v25, 4, v25
    v_lshl_add_u32 v25, v24, 13, v25
    s_lshl_b32 s{S_T}, s{S_W}, 16
    v_add_u32 v{V_WD}, s{S_T}, v25
    v_add_u32 v{V_WD+1}, {4*8192-1024}, v{V_WD}
    s_lshl_b32 s{S_CK}, s{S_I}, 18
    s_add_u32 s{S_CK}, s{S_CK}, s{S_T}
    s_lshl_b32 s{S_WC}, s{S_H}, 8
    s_mul_i32 s{S_AR}, s{S_W}, 24576
    s_add_u32 s{S_AR}, s{S_AR}, 65536
    s_lshl_b32 s{S_WL}, s{S_W}, 11
    s_add_u32 s{S_KA}, s{S_I}, s{S_H}
    s_and_b32 s{S_KA}, s{S_KA}, {int(opt('ROTK', '3'))}
    s_lshl_b32 s{S_KA}, s{S_KA}, 7
    s_mov_b32 s{S_KB}, s{S_KA}""".split('\n')
    b = f"""v_and_b32 v24, 15, v1
    v_lshrrev_b32 v25, 4, v1
    v_lshrrev_b32 v26, 1, v24
    v_xor_b32 v26, v26, v25
    v_lshlrev_b32 v26, 4, v26
    v_lshl_add_u32 v26, v24, 7, v26
    v_add_u32 v{V_AR}, s{S_AR}, v26
    v_xor_b32 v{V_AR+1}, 64, v{V_AR}
    v_bfe_u32 v26, v1, 2, 2
    v_lshl_add_u32 v27, v25, 3, v26
    v_and_b32 v28, 1, v25
    v_lshl_or_b32 v29, v28, 2, v26
    v_lshlrev_b32 v29, 5, v29
    v_lshl_add_u32 v29, v27, 8, v29
    v_and_b32 v30, 3, v1
    v_lshl_add_u32 v{V_TR}, v30, 3, v29
    @split
    v_lshrrev_b32 v25, 4, v1
    v_bfe_u32 v26, v1, 2, 2
    v_lshl_add_u32 v27, v25, 3, v26
    v_lshlrev_b32 v27, 7, v27
    v_and_b32 v24, 3, v1
    v_lshl_add_u32 v27, v24, 3, v27
    v_and_b32 v25, 1, v25
    v_lshrrev_b32 v26, 1, v26
    v_lshl_or_b32 v26, v25, 1, v26
    v_lshl_add_u32 v{V_TV}, v26, 5, v27
    v_xor_b32 v{V_TV+1}, 32, v{V_TV}
    v_xor_b32 v{V_TV+2}, 64, v{V_TV}
    v_xor_b32 v{V_TV+3}, 96, v{V_TV}
    v_lshrrev_b32 v26, 3, v1
    v_and_b32 v27, 2, v26
    v_and_b32 v24, 7, v1
    v_xor_b32 v27, v27, v24
    v_lshlrev_b32 v27, 4, v27
    v_lshl_add_u32 v27, v26, 13, v27
    s_lshl_b32 s{S_T}, s{S_W}, 17
    v_add_u32 v{V_WV}, s{S_T}, v27
    v_xor_b32 v27, 64, v{V_WV}
    v_add_u32 v{V_WV+1}, {8*8192-1024}, v27
    s_lshl_b32 s{S_T}, s{S_I}, 2
    s_add_u32 s{S_QS}, s{S_T}, s{S_W}
    s_sub_u32 s{S_QL}, s{S_W}, s{S_T}
    s_add_u32 s{S_QL}, s{S_QL}, 60
    s_lshl_b32 s{S_QL}, s{S_QL}, 15
    s_lshl_b32 s{S_QS}, s{S_QS}, 15
    s_mul_i32 s{S_KVS}, s{S_H}, {HS}
    s_lshl_b32 s{S_T}, s{S_I}, 17
    s_add_u32 s{S_KVS}, s{S_KVS}, s{S_T}
    s_lshl_b32 s{S_T}, s{S_W}, 15
    s_add_u32 s{S_KVS}, s{S_KVS}, s{S_T}
    s_mov_b32 s{S_KS}, {KSCALE}
    s_mov_b32 s{S_AC}, {ASC}
    s_lshr_b32 s{S_TT}, s{S_X}, 1
    s_lshl_b32 s{S_TT}, s{S_TT}, 3
    s_add_u32 s{S_TT}, s{S_TT}, s{S_I}
    s_and_b32 s{S_OA}, s{S_H}, 7
    s_lshl_b32 s{S_AW}, s{S_OA}, 7
    s_mul_i32 s{S_T}, s{S_W}, {16*3072}
    s_add_u32 s{S_AW}, s{S_AW}, s{S_T}
    s_mul_i32 s{S_AL}, s{S_W}, 3072
    s_lshl_b32 s{S_T}, s{S_TT}, 16
    s_lshl_b32 s{S_KVO}, s{S_AL}, 3
    s_add_u32 s{S_T}, s{S_T}, s{S_KVO}
    s_sub_u32 s{S_AG}, s{S_T}, 16384
    s_cselect_b32 s{S_AG}, {OOB}, s{S_AG}
    s_sub_u32 s{S_AG+1}, s{S_T}, 8192
    s_cselect_b32 s{S_AG+1}, {OOB}, s{S_AG+1}
    s_mov_b32 s{S_AG+2}, s{S_T}
    s_cmp_eq_u32 s{S_W}, 3
    s_cselect_b32 s{S_AG+1}, {OOB}, s{S_AG+1}
    s_cselect_b32 s{S_AG+2}, {OOB}, s{S_AG+2}
    s_lshl_b32 s{S_OA}, s{S_OA}, 11
    s_lshl_b32 s{S_T}, s{S_TT}, 16
    s_add_u32 s{S_OA}, s{S_OA}, s{S_T}
    s_lshr_b32 s{S_T}, s{S_W}, 1
    s_lshl_b32 s{S_T}, s{S_T}, 10
    s_add_u32 s{S_OA}, s{S_OA}, s{S_T}
    s_add_u32 s{S_OA}, s{S_OA}, {WS_OA}""".split('\n')
    b = [x.strip() for x in b]
    k = b.index('@split')
    b1 = b[:k] + [f"v_xor_b32 v{V_TR+T}, {32*T}, v{V_TR}" for T in range(1, 8)]
    b2 = [x.replace(f"s{S_T},", "s100,").replace(f"s{S_T}", "s100") for x in b[k+1:]]
    return [x.strip() for x in a], b1, b2

def a_setup():
    r = f"""v_subrev_u32 v{V_AX}, s{S_AR}, v{V_AR}
    v_xor_b32 v{V_AX+1}, 64, v{V_AX}
    v_lshrrev_b32 v124, 3, v1
    v_and_b32 v125, 2, v124
    v_and_b32 v126, 7, v1
    v_xor_b32 v125, v125, v126
    v_lshlrev_b32 v125, 4, v125
    v_mul_u32_u24 v124, 3072, v124
    v_add_u32 v{V_WA}, v124, v125
    v_xor_b32 v125, 64, v125
    v_add_u32 v124, v124, v125
    v_add_u32 v{V_WT}, {8*3072-1024}, v124
    s_and_b32 s100, s{S_W}, 1
    s_lshl_b32 s101, s100, 6
    v_xor_b32 v{V_A3}, s101, v{V_AD}
    v_xor_b32 v{V_A3+1}, 64, v{V_A3}
    s_lshl_b32 s101, s100, 3
    v_add_u32 v{V_OD}, s101, v{V_L16}
    v_and_b32 v124, 0x7ff, v{V_TV}
    s_lshl_b32 s101, s{S_W}, 5
    v_xor_b32 v124, s101, v124
    v_lshrrev_b32 v125, 5, v1
    v_mul_u32_u24 v125, 24576, v125
    v_add_u32 v124, v124, v125""".split('\n')
    return [x.strip() for x in r], [f"v_add_u32 v{V_TA}, 0x10000, v124", f"v_add_u32 v{V_TA+1}, {65536 + 49152}, v124"]

def a_masks():
    b = [f"v_and_b32 v124, 15, v1\nv_lshrrev_b32 v125, 4, v1\nv_lshlrev_b32 v125, 2, v125\nv_sub_u32 v124, v124, v125\nv_mov_b32 v125, {NEG_BIG:#x}\n" +
         "\n".join(f"v_mov_b32 v{V_ONE+r}, 0x3f803f80" for r in range(4))]
    for r in range(4):
        b.append(f"""v_subrev_u32 v126, {r}, v124
        v_and_b32 v127, -15, v126
        v_cmp_ne_u32 vcc, 0, v127
        v_add_u32 v126, 16, v126
        v_and_b32 v127, -15, v126
        v_cndmask_b32 v{V_MC+r}, 0, v125, vcc
        v_cmp_ne_u32 vcc, 0, v127
        s_nop 1
        v_cndmask_b32 v{V_MP+r}, 0, v125, vcc""")
    b.append(f"s_cmp_eq_u32 s{S_TT}, 0\ns_cselect_b32 s100, 0, {0x7f7fffff}\ns_cselect_b32 s100, {NEG_BIG}, s100\n" + "\n".join(f"v_min_f32 v{V_MP1+r}, s100, v{V_MP+r}" for r in range(4)))
    return b

def a_attention():
    r = ["s_nop 4"]
    pk = lambda f, tb: AAC + (AACC(f, tb) - AAC) // 2
    for i in range(28): r.append(f"v_cvt_pk_bf16_f32 v{AAC+i}, v{AAC+2*i}, v{AAC+2*i+1}")
    SS = lambda i: 88 + i * 8
    M = 32; U = 36; OO = lambda i: 40 + i * 4
    r.append("s_nop 0")
    for i in range(4):
        mp = V_MP1 if i == 0 else V_MP
        r.append(f"v_mfma_f32_16x16x16_bf16 {vr(SS(i))}, {vr(pk(0, i), 2)}, {vr(pk(2, i+1), 2)}, {vr(mp)}")
        r.append(f"v_mfma_f32_16x16x16_bf16 {vr(SS(i)+4)}, {vr(pk(0, i+1), 2)}, {vr(pk(2, i+1), 2)}, {vr(V_MC)}")
    r.append("s_nop 5")
    for i in range(4):
        s0 = SS(i)
        r += [f"v_max3_f32 v{M+i}, v{s0}, v{s0+1}, v{s0+2}", f"v_max3_f32 v{M+i}, v{M+i}, v{s0+3}, v{s0+4}",
              f"v_max3_f32 v{M+i}, v{M+i}, v{s0+5}, v{s0+6}", f"v_max_f32 v{M+i}, v{M+i}, v{s0+7}", f"v_mov_b32 v{U+i}, v{M+i}"]
    for sw in ('32', '16'):
        r.append("s_nop 1")
        r += [f"v_permlane{sw}_swap_b32 v{M+i}, v{U+i}" for i in range(4)]
        for i in range(4):
            r.append(f"v_max_f32 v{M+i}, v{M+i}, v{U+i}")
            if sw == '32': r.append(f"v_mov_b32 v{U+i}, v{M+i}")
    r += [f"v_mul_f32 v{M+i}, s{S_AC}, v{M+i}" for i in range(4)]
    for i in range(4):
        r += [f"v_fma_f32 v{SS(i)+k}, v{SS(i)+k}, s{S_AC}, -v{M+i}" for k in range(8)]
        r += [f"v_exp_f32 v{SS(i)+k}, v{SS(i)+k}" for k in range(8)]
    for i in range(4):
        r += [f"v_cvt_pk_bf16_f32 v{SS(i)+k}, v{SS(i)+2*k}, v{SS(i)+2*k+1}" for k in range(4)]
    r.append("s_nop 1")
    for i in range(4):
        r.append(mfma(vr(SS(i) + 4), vr(V_ONE), vr(SS(i)), '0'))
        r.append(mfma(vr(OO(i)), vr(pk(1, i)), vr(SS(i)), '0'))
    r.append("s_nop 5")
    r += [f"v_rcp_f32 v{M+i}, v{SS(i)+4}" for i in range(4)]
    for i in range(4): r += [f"v_mul_f32 v{OO(i)+k}, v{M+i}, v{OO(i)+k}" for k in range(4)]
    for i in range(4):
        d = 88 + i * 2
        r += [f"v_cvt_pk_bf16_f32 v{d}, v{OO(i)}, v{OO(i)+1}", f"v_cvt_pk_bf16_f32 v{d+1}, v{OO(i)+2}, v{OO(i)+3}", f"s_add_u32 s{S_KVO}, s{S_OA}, {i*16384}",
              f"buffer_store_dwordx2 {vr(d, 2)}, v{V_OD}, {sr(R_WS)}, s{S_KVO} offen {ST} ; @STO"]
    return r

def touch(kind, R, n=0):
    if kind == 'head':
        r = ["v_bfe_u32 v14, v1, 1, 4", "v_lshlrev_b32 v14, 13, v14", "v_and_b32 v15, 1, v1", "v_lshl_add_u32 v14, v15, 7, v14",
             f"s_lshl2_add_u32 s100, s{S_I}, s{S_W}", "s_lshl_b32 s100, s100, 17", f"s_add_u32 s100, s100, s{S_WC}"]
    else:
        r = [f"v_min_u32 v14, {n-1}, v1", "v_lshlrev_b32 v14, 7, v14", f"s_lshl2_add_u32 s100, s2, s{S_W}", f"s_mul_i32 s100, s100, {n * 128}"]
    return r + [f"buffer_load_dword v3, v14, {sr(R)}, s100 offen ; @PF"]

def publish_nonce():
    return ["s_lshl_b32 s100, s2, 2", f"s_or_b32 s100, s100, s{S_W}", "s_cmp_lg_u32 s100, 0", "s_cbranch_scc1 L_nononce", "s_memrealtime s[100:101]", "s_waitcnt lgkmcnt(0)",
            "s_or_b32 s100, s100, 1", "v_mov_b32 v14, s100", "v_mov_b32 v15, 0", "s_mov_b64 exec, 1",
            f"buffer_store_dword v14, v15, {sr(R_X)}, 0 offen sc1 ; @skip", "s_mov_b64 exec, -1", "L_nononce:"]

def engine(hooks):
    a, b, b2 = setup()
    r = list(a) + ["s_waitcnt lgkmcnt(0)"]
    r += srd(R_A0, P_CKV, 2 << 20) + srd(R_W0, P_WUK, 4 << 20)
    for G in range(4):
        for sal, x in act_dma(G // 2, G % 2): r += sal + (["s_nop 0"] if sal else []) + [x]
        for sal, x in w_dma(G): r += sal + (["s_nop 0"] if sal else []) + [x]
    r += b
    b2 += srd(R_A1, P_XB, 2 << 20) + srd(R_W1, P_WUV, 4 << 20) + srd(R_WS, P_WS, WS_END) + srd(R_X, P_DBG, 256)
    r += ["@wait X0,W0", "s_barrier"] + stamp('go') + reads(0)
    hk = dict(hooks)
    def add(G, gp, lines): hk[('misc', G)] = hk.get(('misc', G), []) + [(gp + i, x) for i, x in enumerate(lines)]
    m = []
    for x in b2:
        if x.startswith('s_cselect'): m[-1] += '\n' + x
        else: m.append(x)
    b2 = m
    slots = [(G, gp) for G in range(2, 9) for gp in range(0, 32) if gp not in (3, 6, 9, 10, 12, 14, 15, 18, 21, 22, 24, 26, 27)]
    for x, (G, gp) in zip(b2, slots): hk[('seq', G)] = hk.get(('seq', G), []) + [(gp, x)]
    assert len(b2) <= len(slots)
    add(9, 30, ['\n'.join(publish_nonce())])
    add(11, 28, srd(R_W0, P_WQ, 4 << 20)[:2])
    add(13, 28, srd(R_A0, P_XA, 2 << 20)[:2])
    add(25, 28, srd(R_W1, P_WQKV, 1536 * 1024)[:3])
    if not opt('NOPF'):
        J = '\n'.join
        add(9, 28, [J(touch('head', R_W1))]); add(10, 28, [J(touch('lin', R_A1, 16))]); add(12, 28, [J(touch('head', R_W0))])
        t1, t2 = eval(opt('TA', '(29, 30)'))
        add(t1, 13, [J(touch('lin', R_W1, 12))]); add(t2, 13, [J(touch('lin', R_A0, 16))])
        if not opt('NOTWO'):
            add(42, 28, [J(srd(R_W0, P_WO, 4 << 20)[:2] + ["v_and_b32 v126, 31, v1", "v_lshlrev_b32 v126, 10, v126", f"s_lshl2_add_u32 s100, s{S_H}, s{S_W}", "s_lshl_b32 s100, s100, 15",
                         f"s_lshl_b32 s101, s{S_I}, 7", "s_add_u32 s100, s100, s101", f"buffer_load_dword v3, v126, {sr(R_W0)}, s100 offen ; @PF"])])
    if opt('TLBW'):
        J = '\n'.join
        add(9, 20, [J(["v_min_u32 v126, 39, v1", "v_lshlrev_b32 v126, 21, v126", f"buffer_load_dword v3, v126, {sr(R_WS)}, 0 offen ; @PF"])])
    a1, a2 = a_setup()
    for k, x in enumerate(a1): hk[('seq', 36 + k // 6)] = hk.get(('seq', 36 + k // 6), []) + [(20 + 2 * (k % 6), x)]
    hk[('seq', 41)] = hk.get(('seq', 41), []) + [(20, a2[0]), (22, a2[1])]
    lp = eval(opt('LOOP', '(-1,-1)')); drop = tuple(x for x in opt('DROP').split(',') if x)
    for G in range(NST):
        if G == lp[0]: r += stamp('l0') + ["s_mov_b32 s1, 12", "L_mb:"]
        st = step(G, hk if not lp[0] <= G <= lp[1] else {})
        if lp[0] <= G <= lp[1] and drop: st = [x for x in st if not x.startswith(drop)]
        r += st
        if G == lp[1]: r += ["s_sub_u32 s1, s1, 1", "s_cmp_lg_u32 s1, 0", "s_cbranch_scc1 L_mb"] + stamp('l1') + stamp_end(0) + ["s_endpgm"]
        r += stamp(f'g{G}')
    return r
```

```python
from common import *
import eng
from eng import V_L16, V_AD, S_AR, ST
V_OUT = 15; V_RR = 16
def ACC(T, tb): return 64 + (T * 4 + tb) * 4
def ACA(T, tb): return 192 + (T * 4 + tb) * 4
NW = 12; NC = 8
def WB(kk, T): return (kk % NW) * 16 + T * 4
def CX(kk, tb): return 128 + (kk % NC) * 16 + tb * 4
S_CB = 34; S_WB = 35; S_T = 37; S_GC = 40; S_GW = 41; S_ROT = 44; S_OAB = 45; S_WAB = 46; S_OUT = 47
R_OUT = R_A0
LD = opt('LD_POL', 'sc1')

def RX(i): return 128 + 16 * i
def relayout_loads():
    r = srd(R_W0, P_WO_A, 512 * 1024)[:3] + [f"s_and_b32 s100, s{S_H}, 7", "s_cmp_lg_u32 s100, 0", "s_cbranch_scc1 RL_a",
         f"s_lshr_b32 s100, s{S_H}, 1", f"s_add_u32 s100, s100, s{S_W}", "s_lshl_b32 s100, s100, 15", f"s_lshl_b32 s101, s{S_I}, 7", "s_add_u32 s100, s100, s101",
         f"s_lshl_b32 s101, s{S_W}, 14", "s_add_u32 m0, s101, 12288", "s_nop 0"]
    r += [f"buffer_load_dwordx4 v{V_AD+k}, {sr(R_W0)}, s100 offen offset:{k*1024} lds ; @skip" for k in range(4)]
    r += ["RL_a:"] + srd(R_W0, P_WO, 4 << 20)[:3]
    r += [f"s_lshl2_add_u32 s100, s{S_H}, s{S_W}", "s_lshl_b32 s100, s100, 15", f"s_lshl_b32 s101, s{S_I}, 7", "s_add_u32 s100, s100, s101", f"s_add_u32 m0, s{S_AR}, 6144", "s_nop 0"]
    r += [f"buffer_load_dwordx4 v{V_AD+k}, {sr(R_W0)}, s100 offen offset:{k*1024} lds ; @WO" for k in range(2)]
    r += [f"s_add_u32 m0, s{S_AR}, {8192 + 6144 - 2048}", "s_nop 0"]
    r += [f"buffer_load_dwordx4 v{V_AD+k}, {sr(R_W0)}, s100 offen offset:{k*1024} lds ; @WO" for k in range(2, 4)]
    return r
def relayout_reads():
    a = 124; V_X = 126
    r = [f"v_lshrrev_b32 v{a}, 2, v1", f"v_lshrrev_b32 v{a+1}, 3, v1", f"v_and_b32 v{V_X}, 3, v1", f"v_xor_b32 v{a+1}, v{a+1}, v{V_X}", f"v_lshlrev_b32 v{a+1}, 4, v{a+1}",
         f"v_lshl_add_u32 v{a+1}, v{a}, 7, v{a+1}", f"s_and_b32 s100, s{S_H}, 7", "s_cmp_lg_u32 s100, 0", "s_cbranch_scc1 RL_b",
         f"s_lshl_b32 s101, s{S_W}, 14", f"v_add_u32 v{a}, s101, v{a+1}", f"v_xor_b32 v{V_X}, 64, v{a}"]
    for T in range(4):
        for e in range(2):
            r.append(f"ds_read_b64_tr_b16 {vr(RX(4 + T) + 2*e, 2)}, v{a if T < 2 else V_X} offset:{12288 + e * 2048 + (T & 1) * 8}")
    r += ["RL_b:", f"v_add_u32 v{a}, s{S_AR}, v{a+1}", f"v_xor_b32 v{a+1}, 64, v{a}"]
    for T in range(4):
        for e in range(2):
            r.append(f"ds_read_b64_tr_b16 {vr(RX(T) + 2*e, 2)}, v{a + (T >> 1)} offset:{6144 + e * 8192 + (T & 1) * 8}")
    return r
def relayout_stores():
    r = [f"s_lshr_b32 s100, s{S_H}, 3", "s_lshl_b32 s100, s100, 2", f"s_lshr_b32 s101, s{S_I}, 1", "s_add_u32 s100, s100, s101", "s_lshl_b32 s100, s100, 3", f"s_and_b32 s101, s{S_H}, 7",
         "s_add_u32 s100, s100, s101", f"s_lshl2_add_u32 s100, s100, s{S_W}", f"s_and_b32 s101, s{S_I}, 1", "s_lshl1_add_u32 s100, s100, s101", "s_lshl_b32 s100, s100, 12", f"s_add_u32 s100, s100, {WS_WO}"]
    r += [f"buffer_store_dwordx4 {vr(RX(T))}, v{V_L16}, {sr(R_WS)}, s100 offen offset:{T*1024} {ST} ; @STW" for T in range(4)]
    r += [f"s_and_b32 s100, s{S_H}, 7", "s_cmp_lg_u32 s100, 0", "s_cbranch_scc1 RL_c",
          f"s_lshl_b32 s100, s{S_I}, 4", f"s_lshr_b32 s101, s{S_H}, 1", "s_add_u32 s100, s100, s101", f"s_add_u32 s100, s100, s{S_W}", "s_lshl_b32 s100, s100, 12", f"s_add_u32 s100, s100, {WS_WA}"]
    r += [f"buffer_store_dwordx4 {vr(RX(4 + T))}, v{V_L16}, {sr(R_WS)}, s100 offen offset:{T*1024} {ST} ; @skip" for T in range(4)]
    return r + ["RL_c:"]

V_PP = 96
V_CD = 4; V_WD = 13; V_CR = 8; V_WR = 12; V_PC = 6
def WFR(buf, e, T): return 128 + buf * 32 + e * 16 + T * 4
def CFR(buf, e, u): return 192 + buf * 32 + e * 16 + u * 4
def AW(k, T): return 64 + k * 16 + T * 4
def AC(k, tb): return 128 + k * 16 + tb * 4
S_Q = 32; S_TL = 33; S_MW = 36; S_XS = 38; S_XR = 39; S_OB = 42; S_MC = 43; S_CR = [48, 49, 50, 76]; S_WR = 44; S_CD = 63; S_LC = 51; S_LW = 52
def polls(): return poll_issue('OA', V_PP, 'PA') + poll_issue('WO', V_PP + 2, 'PA') + poll_issue('WA', V_PP + 4, 'PA')
def w_dma(p):
    return [([f"s_xor_b32 s{S_GW}, s{S_LW}, {p * 16384}", f"s_add_u32 s{S_GW}, s{S_GW}, s{S_WB}", f"s_add_u32 m0, s{S_MW}, {(p % 4) * 16384}"] if k == 0 else [],
             f"buffer_load_dwordx4 v{V_WD}, {sr(R_WS)}, s{S_GW} offen offset:{k*1024} {LD} lds ; @W{p}") for k in range(4)]
def c_dma(p):
    return [([f"s_xor_b32 s{S_GC}, s{S_LC}, {p * 2048}", f"s_add_u32 s{S_GC}, s{S_GC}, s{S_CB}", f"s_add_u32 m0, s{S_MC}, {(p % 4) * 16384}"] if k == 0 else [],
             f"buffer_load_dwordx4 v{V_CD + (k >> 1)}, {sr(R_WS)}, s{S_GC} offen offset:{k*1024} {LD} lds ; @C{p}") for k in range(4)]
def flat(items):
    r = []
    for sal, x in items: r += sal + (["s_nop 0"] if sal else []) + [x]
    return r
def rds(p):
    b = p & 1; o = (p % 4) * 16384
    r = []
    for T in range(4):
        r += [f"ds_read_b128 {vr(WFR(b, e, T))}, v{V_WR} offset:{o + e * 8192 + T * 1024}" for e in range(2)]
        r += [f"ds_read_b128 {vr(CFR(b, e, T))}, v{V_CR + T} offset:{o + e * 1024}" for e in range(2)]
    return r
def a_loads():
    r = []
    for k in range(4):
        r += [([f"s_add_u32 s{S_T}, s{S_WAB}, {k * 4096}"] if T == 0 else [], f"buffer_load_dwordx4 {ar(AW(k, T))}, v{V_L16}, {sr(R_WS)}, s{S_T} offen offset:{T*1024} {LD} ; @A{k}") for T in range(4)]
        r += [([f"s_add_u32 s{S_T}, s{S_OAB}, {tb * 16384}"], f"buffer_load_dwordx4 {ar(AC(k, tb))}, v{V_L16}, {sr(R_WS)}, s{S_T} offen offset:{k*1024} {LD} ; @A{k}") for tb in range(4)]
    return r

def scalars():
    r = f"""s_lshr_b32 s{S_Q}, s{S_X}, 1
    s_sub_u32 s{S_TL}, 15, s{S_I}
    s_bitcmp1_b32 s{S_X}, 0
    s_cselect_b32 s{S_TL}, s{S_TL}, s{S_I}
    s_bitcmp1_b32 s{S_I}, 0
    s_cselect_b32 s{S_WR}, 5, 1
    s_cselect_b32 s{S_GC}, 1, 5
    s_lshl_b32 s{S_WR}, s{S_WR}, 14
    s_lshl_b32 s{S_GC}, s{S_GC}, 14
    s_add_u32 s{S_MW}, s{S_WR}, s0
    s_add_u32 s{S_MC}, s{S_GC}, s0
    s_lshr_b32 s{S_T}, s{S_W}, 1
    s_lshl_b32 s{S_OB}, s{S_T}, 17
    s_lshl_b32 s{S_T}, s{S_T}, 13
    s_add_u32 s{S_GC}, s{S_GC}, s{S_T}
    s_and_b32 s{S_GW}, s{S_W}, 1
    s_lshl_b32 s{S_T}, s{S_GW}, 7
    s_add_u32 s{S_OB}, s{S_OB}, s{S_T}
    s_lshl_b32 s{S_T}, s{S_GW}, 12
    s_add_u32 s{S_WR}, s{S_WR}, s{S_T}""".split('\n')
    for u in range(4):
        r += [f"s_add_u32 s{S_T}, s{S_Q}, {u}", f"s_and_b32 s{S_T}, s{S_T}, 3", f"s_lshl_b32 s{S_T}, s{S_T}, 11", f"s_add_u32 s{S_CR[u]}, s{S_T}, s{S_GC}"]
    r += f"""s_and_b32 s{S_T}, s{S_H}, 3
    s_lshl2_add_u32 s{S_WB}, s{S_Q}, s{S_T}
    s_lshl_b32 s{S_WB}, s{S_WB}, 18
    s_add_u32 s{S_WB}, s{S_WB}, {WS_WO}
    s_lshl2_add_u32 s{S_XS}, s{S_TL}, s{S_T}
    s_lshl_b32 s{S_XS}, s{S_XS}, 18
    s_add_u32 s{S_XS}, s{S_XS}, s0
    s_add_u32 s{S_XS}, s{S_XS}, {WS_XB}
    s_lshl_b32 s{S_T}, s{S_T}, 8
    s_add_u32 s{S_OB}, s{S_OB}, s{S_T}
    s_lshl_b32 s{S_T}, s{S_Q}, 16
    s_add_u32 s{S_XR}, s{S_XS}, s{S_T}
    s_lshl_b32 s{S_T}, s{S_Q}, 15
    s_add_u32 s{S_OB}, s{S_OB}, s{S_T}
    s_lshl_b32 s{S_CB}, s{S_TL}, 20
    s_add_u32 s{S_CB}, s{S_CB}, s{S_T}
    s_add_u32 s{S_CB}, s{S_CB}, {WS_C}
    s_lshl_b32 s{S_T}, s{S_TL}, 18
    s_add_u32 s{S_OB}, s{S_OB}, s{S_T}
    s_add_u32 s{S_OB}, s{S_OB}, 1024
    s_and_b32 s{S_LC}, s{S_H}, 7
    s_lshl_b32 s{S_LW}, s{S_LC}, 15
    s_lshl_b32 s{S_LC}, s{S_LC}, 12
    s_lshl_b32 s{S_CD}, s{S_W}, 18
    s_lshl_b32 s{S_T}, s{S_W}, 14
    s_lshl_b32 s{S_WAB}, s{S_I}, 16
    s_add_u32 s{S_WAB}, s{S_WAB}, s{S_T}
    s_add_u32 s{S_WAB}, s{S_WAB}, {WS_WA}
    s_lshl_b32 s{S_OAB}, s{S_H}, 16
    s_add_u32 s{S_OAB}, s{S_OAB}, s0
    s_add_u32 s{S_OAB}, s{S_OAB}, {WS_OA}
    s_lshl_b32 s{S_OUT}, s{S_H}, 17
    s_lshl_b32 s{S_T}, s{S_W}, 15
    s_add_u32 s{S_OUT}, s{S_OUT}, s{S_T}
    s_lshl_b32 s{S_T}, s{S_I}, 7
    s_add_u32 s{S_OUT}, s{S_OUT}, s{S_T}""".split('\n')
    return [x.strip() for x in r] + srd(R_OUT, P_OUT, 4 << 20)
def checks():
    r = ["s_waitcnt vmcnt(4)"]
    for k in range(3): r += poll_check(V_PP + 2 * k, S_T)
    return r
def w_first(): return [x for p in range(4) for x in w_dma(p)]
def pre_join():
    r = [f"v_add_u32 v{V_CD}, s{S_CD}, v{V_L16}", f"v_add_u32 v{V_CD+1}, {131072 - 2048}, v{V_CD}", f"v_add_u32 v{V_WR}, s{S_WR}, v{V_L16}"]
    r += [f"v_add_u32 v{V_CR+u}, s{S_CR[u]}, v{V_L16}" for u in range(4)]
    r += [f"s_lshl_b32 s{S_T}, s{S_W}, 14", f"v_add_u32 v{V_RR}, s{S_T}, v{V_L16}", f"v_and_b32 v{V_OUT}, 15, v1", f"v_lshlrev_b32 v{V_OUT}, 11, v{V_OUT}", "v_lshrrev_b32 v20, 4, v1",
          f"v_lshl_add_u32 v{V_OUT}, v20, 4, v{V_OUT}"]
    return r

def outproj():
    r = flat(c_dma(0) + c_dma(1)) + poll_issue('CTX1', V_PC, 'PC')
    r += stamp('a2') + ["@wait PC"] + poll_check(V_PC, S_T) + stamp('pc')
    r += flat(c_dma(2) + c_dma(3)) + ["s_barrier"] + stamp('op1') + rds(0)
    al = a_loads()
    for p in range(16):
        b = p & 1
        mf = []
        for T in range(4):
            for u in range(4):
                for e in range(2):
                    mf.append(mfma(vr(ACC(T, u)), vr(WFR(b, e, T)), vr(CFR(b, e, u)), vr(ACC(T, u)) if (p or e) else '0'))
        g = Gaps(mf)
        g.put(-1, "s_waitcnt lgkmcnt(0)")
        if p + 1 < 16:
            g.front(0, f"@wait C{p+1},W{p+1}", "s_barrier")
            rg = [1, 2, 3, 5, 6, 8, 9, 11, 12, 14, 15, 17, 18, 20, 21, 23]
            for x, gp in zip(rds(p + 1), rg): g.put(gp, x)
        dl = (c_dma(p + 4) + w_dma(p + 4)) if p + 4 < 16 else []
        na = eval(opt('NA', '{12: 9, 13: 9, 14: 9, 15: 5}')).get(p, 0)
        dl = dl + [al.pop(0) for _ in range(na)]
        for (sal, x), gp in zip(dl, [4, 7, 10, 13, 16, 19, 22, 25, 28, 30]):
            for k, y in enumerate(sal): g.front(gp - len(sal) + k, y)
            g.put(gp, x)
        if p == 2: g.put(28, *poll_issue('CTX2', V_PC, 'PC2'))
        if p == 4: g.put(0, "@wait PC2", *poll_check(V_PC, S_T))
        if p == 15: g.put(20, *poll_issue('XB', V_PC, 'PX'))
        r += g.lines() + stamp(f'p{p}')
    assert not al
    xs = []
    for d in range(1, 4):
        xs += [f"s_add_u32 s{S_T}, s{S_Q}, {d}", f"s_and_b32 s{S_T}, s{S_T}, 3", f"s_lshl_b32 s{S_T}, s{S_T}, 16", f"s_add_u32 s{S_T}, s{S_T}, s{S_XS}", f"s_add_u32 s{S_T}, s{S_T}, {d * 16384}"]
        for h in range(2):
            pk = 208 + d * 8 + h * 4
            xs += [f"v_cvt_pk_bf16_f32 v{pk + i}, v{ACC(2 * h + (i >> 1), d) + 2 * (i & 1)}, v{ACC(2 * h + (i >> 1), d) + 2 * (i & 1) + 1}" for i in range(4)]
            xs += [f"buffer_store_dwordx4 {vr(pk)}, v{V_L16}, {sr(R_WS)}, s{S_T} offen offset:{h*1024} {ST}"]
    xl = []
    for d in range(1, 4):
        xl += [f"s_add_u32 s{S_T}, s{S_XR}, {d * 16384}"]
        xl += [f"buffer_load_dwordx4 {vr(24 + d * 8 + h * 4)}, v{V_L16}, {sr(R_WS)}, s{S_T} offen offset:{h*1024} {LD}" for h in range(2)]
    g = Gaps([mfma(ar(ACA(T, tb)), ar(AW(k, T)), ar(AC(k, tb)), ar(ACA(T, tb)) if k else '0') for k in range(4) for T in range(4) for tb in range(4)])
    for k in range(16): g.put(k, f"v_mov_b32 v{192 + k}, v{ACC(k >> 2, 0) + (k & 3)}")
    g.put(16, "v_mov_b32 v30, 0x3f80", "v_mov_b32 v31, 0x3f800000")
    r += stamp('opl') + ["s_nop 4"] + xs + ["s_waitcnt vmcnt(6)", f"v_cmp_ne_u32 vcc, s{S_NON}, v{V_PC}", f"s_mov_b64 s[{S_GC}:{S_GC+1}], vcc", "s_cbranch_vccnz OP_wx"]
    gl = g.lines(); cut = [k for k, x in enumerate(gl) if 'mfma' in x][int(opt('A2CUT', '24'))]
    r += xl + ["OP_wx:"] + gl[:cut] + [f"s_cmp_eq_u64 s[{S_GC}:{S_GC+1}], 0 ; @opx", "s_cbranch_scc1 OP_w12", "s_waitcnt vmcnt(0)", "OP_w12:", "s_waitcnt vmcnt(6)"]
    r += stamp('xs') + signal('XB', 20) + gl[cut:] + ["s_barrier", "s_nop 4"]
    wr = [f"ds_write_b128 v{V_WD}, {ar(ACA(T, tb))} offset:{tb * 16384 + T * 1024}" for tb in range(4) for T in range(4)]
    r += wr[:8] + [f"buffer_load_dword v{V_PC}, v{V_PC+1}, {sr(R_WS)}, 0 offen sc1"] + wr[8:]
    r += ["s_waitcnt lgkmcnt(0)", "s_barrier"]
    r += [f"ds_read_b128 {vr(128 + (s * 4 + T) * 4)}, v{V_RR} offset:{s * 4096 + T * 1024}" for s in range(4) for T in range(4)]
    r += ["s_waitcnt vmcnt(0)", f"s_cmp_eq_u64 s[{S_GC}:{S_GC+1}], 0 ; @opx", "s_cbranch_scc1 OP_fin"]
    r += poll_check(V_PC, S_T) + stamp('px') + xl
    r += ["OP_fin:", "s_waitcnt lgkmcnt(0)"] + red(128, S_OUT) + stamp('ar') + ["s_waitcnt vmcnt(2)"] + stamp('xl')
    r += [f"v_dot2c_f32_bf16 v{192 + i}, v{24 + d * 8 + (i >> 1)}, v{30 + (i & 1)}" for d in range(1, 4) for i in range(16)] + ["s_nop 2"] + red(192, S_OB)[48:]
    return [x.strip() for x in r]
def tail_blocks(): return ["OP_l1:", "s_branch OP_wx"]

def red(b, so):
    r = []
    for i in range(16): r += [f"v_add_f32 v{b+i}, v{b+i}, v{b+16+i}", f"v_add_f32 v{b+32+i}, v{b+32+i}, v{b+48+i}"]
    r += [f"v_add_f32 v{b+i}, v{b+i}, v{b+32+i}" for i in range(16)]
    r += [f"v_cvt_pk_bf16_f32 v{b+i}, v{b+2*i}, v{b+2*i+1}" for i in range(8)]
    r += [f"buffer_store_dwordx4 {vr(b + 4*p)}, v{V_OUT}, {sr(R_OUT)}, s{so} offen offset:{p*64}" for p in range(2)]
    return r
```

```python
from common import *
from eng import QF, V_L16, ST
A_, B_, C_, D_ = 0, 1, 2, 3
def Q(b, s): return ar(QF(b, s))
def K(t, s): return ar((t * 4 + s) * 4)
def V(dt): return ar(32 + dt * 4)
def S(b, t): return 16 + b * 8 + t * 4
V_E = 48
def P(b): return 64 + b * 4
def CI(b, t): return 80 + b * 8 + t * 4
V_M = 112; V_T = 116; V_L = 124
def O(b, dt): return 128 + b * 32 + dt * 4
V_DMA = 13; V_RA = 14; V_THR = 15
S_N = 64; S_US = 65; S_UL = 66; S_USM = 67; S_ULM = 68; S_RA = 69; S_SOFF = 55; S_BM = 56
S_T = 62; S_CL = 70; S_CS = 71; S_FL = 58
R_KV = R_A1

def exps(b, e0): return [f"v_exp_f32 v{e0+i}, v{S(b,0)+i}" for i in range(8)]
def cvts(b, e0): return [f"v_cvt_pk_bf16_f32 v{P(b)+i}, v{e0+2*i}, v{e0+2*i+1}" for i in range(4)]
V_L2 = 120
def adds(b, e0):
    if opt('X_NOADD'): return []
    if opt('X_ACC2'): return [f"v_add_f32 v{(V_L2 if i & 1 else V_L)+b}, v{(V_L2 if i & 1 else V_L)+b}, v{e0+i}" for i in range(8)]
    return [f"v_add_f32 v{V_L+b}, v{V_L+b}, v{e0+i}" for i in range(8)]
def qk(b, first=False):
    return [mfma(vr(S(b, t)), K(t, s), Q(b, s), ('0' if first else vr(CI(b, t))) if s == 0 else vr(S(b, t))) for t in range(2) for s in range(4)]
def pv(b): return [mfma(vr(O(b, dt)), V(dt), vr(P(b)), vr(O(b, dt))) for dt in range(8)]
def vreads(): return [f"ds_read_b128 {V(dt)}, v{V_RA} offset:{8192 + dt*1024}" for dt in range(8)]
def kreads(): return [f"ds_read_b128 {K(i>>2, i&3)}, v{V_RA} offset:{i*1024}" for i in range(8)]
def dmas(tag='KV'): return [f"buffer_load_dwordx4 v{V_L16}, {sr(R_KV)}, s{S_GO} offen offset:{j*1024} {opt('LD_POL','sc1')} lds ; @{tag}" for j in range(4)]
uid = [0]
def barblk(mode, vm=8, lg=0):
    if mode == 'odd': return [f"s_waitcnt lgkmcnt({lg})"] if lg == 0 else []
    if mode == 'even': return [f"s_waitcnt vmcnt({vm}) lgkmcnt({lg})", "s_barrier"]
    uid[0] += 1; l = f"AT_nb{uid[0]}"
    return [f"s_waitcnt lgkmcnt({lg})", *barbit(), f"s_cbranch_scc0 {l}", f"s_waitcnt vmcnt({vm})", "s_barrier", f"{l}:"]
S_DM = 72; S_DX = 73; S_LS = 69; S_EV = 76
V_XC = 12
S_GO = S_SOFF if CS == 16384 else 77
UPD = [f"s_add_u32 s{S_SOFF}, s{S_SOFF}, 16384" + ("" if CS == 16384 else f"\ns_add_u32 s{S_GO}, s{S_GO}, {CS}"), f"s_and_b32 s{S_DM}, s{S_SOFF}, 0x1ffff", f"s_cmp_lt_u32 s{S_GO}, s{R_KV+2}", f"s_cselect_b32 m0, s{S_DM}, s{S_DX}"]
RADDR = f"v_xor_b32 v{V_RA}, s{S_DM}, v{V_XC}"
def barbit(): return [f"s_lshr_b32 s{S_N}, s{S_SOFF}, 14", f"s_sub_u32 s{S_N}, s{S_N}, 6", f"s_bitcmp1_b64 s[{S_BM}:{S_BM+1}], s{S_N}"]

def spread(g, lst, gaps):
    gaps = list(gaps)
    assert len(lst) <= len(gaps), (len(lst), len(gaps))
    for x, gp in zip(lst, gaps): g.put(gp, x)

V_EB = 8
def ex(b, t, e): return [f"v_exp_f32 v{e+i}, v{S(b,t)+i}" for i in range(4)]
def cv(b, t, e): return [f"v_cvt_pk_bf16_f32 v{P(b)+2*t+i}, v{e+2*i}, v{e+2*i+1}" for i in range(2)]
def ad(b, e, n=4): return [] if opt('X_NOADD') else [f"v_add_f32 v{V_L+b}, v{V_L+b}, v{e+i}" for i in range(n)]

def place(g, items, cap):
    used = {k: 0 for k in cap}
    for x, lo, hi in items:
        win = [k for k in cap if lo <= k <= hi]
        free = [k for k in win if used[k] < cap[k]]
        k = free[0] if free else min(win, key=lambda q: (used[q] - cap[q], q))
        used[k] += 1; g.put(k, x)

ONES = ar(128)
def LM(b): return 132 + 4 * b
def msum(b): return mfma(ar(LM(b)), ONES, vr(P(b)), ar(LM(b)))
def MS(): return {'abcd'.index(c) for c in opt('MSUM', 'ab')}

def period(typ, mode, extra=()):
    E0, E1, EB = V_E, V_E + 8, V_EB
    ms = MS()
    dm = dmas(); kr = kreads(); vr_ = vreads()
    W = lambda lst, lo, hi: [(x, lo, hi) for x in lst]
    AD = lambda b, e, lo, hi, n=4: [] if b in ms else W(ad(b, e, n), lo, hi)
    if typ == 'F':
        g = Gaps(pv(A_) + ([msum(A_)] if A_ in ms else []) + pv(B_) + ([msum(B_)] if B_ in ms else []))
        g.put(-1, *vr_[4:]); g.put(-1, *ex(B_, 1, E0 + 4)); g.put(-1, *barblk(mode, 0))
        for i, (sal, x) in enumerate(extra):
            for k, y in enumerate(sal): g.put(i - 1, y)
            g.put(i, x)
        spread(g, cv(B_, 0, EB) + cv(B_, 1, E0 + 4) + ([] if B_ in ms else ad(B_, EB) + ad(B_, E0 + 4)), range(12))
        return g.lines()
    if typ == 'D':
        order = [A_, C_, B_, D_]; nq = 32; kb = 24
        g = Gaps(qk(A_) + qk(C_) + qk(B_) + qk(D_) + pv(A_) + pv(C_) + pv(B_) + pv(D_))
        e = ex(B_, 1, E0 + 4) + ex(D_, 0, E1) + ex(D_, 1, E1 + 4) + ex(A_, 0, E0) + ex(A_, 1, E0 + 4) + ex(C_, 0, E1) + ex(C_, 1, E1 + 4) + ex(B_, 0, EB)
        dg = [43, 51, 41, 49]
        it = W(cv(B_, 0, EB), 1, 23) + AD(B_, EB, 1, 23) + W(cv(B_, 1, E0 + 4), 9, 23) + AD(B_, E0 + 4, 9, 23) + AD(D_, E1, 15, 39) + W(cv(D_, 0, E1), 15, 39)
        it += W(cv(D_, 1, E1 + 4), 23, 39) + AD(D_, E1 + 4, 23, 39) + AD(A_, E0, 31, 63) + W(cv(A_, 0, E0) + cv(A_, 1, E0 + 4), 41, 63) + AD(A_, E0 + 4, 39, 63)
        it += AD(C_, E1, 47, 63) + W(cv(C_, 0, E1), 49, 63) + W(cv(C_, 1, E1 + 4), 55, 63) + AD(C_, E1 + 4, 55, 63)
        lp = 'AT_D'; lim = S_USM
    elif typ == 'S':
        order = [A_, B_]; nq = 16; kb = 8
        g = Gaps(qk(A_) + qk(B_) + pv(A_) + pv(B_))
        e = ex(B_, 1, E0 + 4) + ex(A_, 0, E1) + ex(A_, 1, E1 + 4) + ex(B_, 0, EB)
        dg = eval(opt('SDG', '[15, 19, 27, 13]'))
        it = W(cv(B_, 0, EB), 1, 21) + AD(B_, EB, 1, 21) + W(cv(B_, 1, E0 + 4), 5, 21)[:1] + W(cv(B_, 1, E0 + 4), 7, 21)[1:] + AD(B_, E0 + 4, 7, 31) + AD(A_, E1, 15, 31)
        it += W(cv(A_, 0, E1) + cv(A_, 1, E1 + 4), 25, 31) + AD(A_, E1 + 4, 23, 31)
        lp = 'AT_S'; lim = S_LS
    else:
        order = [A_, C_, B_, D_]; nq = 16; kb = 8
        g = Gaps(qk(A_) + qk(B_) + pv(A_) + pv(C_) + pv(B_) + pv(D_))
        e = ex(B_, 1, E0 + 4) + ex(D_, 0, E1) + ex(D_, 1, E1 + 4) + ex(A_, 0, E0) + ex(A_, 1, E0 + 4) + ex(B_, 0, EB)
        dg = [27, 35, 25, 33]
        it = W(cv(B_, 0, EB), 1, 23) + AD(B_, EB, 1, 23) + W(cv(B_, 1, E0 + 4), 7, 23) + AD(B_, E0 + 4, 7, 23) + W(cv(D_, 0, E1), 15, 37) + W(cv(D_, 1, E1 + 4), 23, 37)
        it += AD(D_, E1, 23, 47, 8) + W(cv(A_, 0, E0), 31, 47) + AD(A_, E0, 31, 47) + W(cv(A_, 1, E0 + 4), 39, 47) + AD(A_, E0 + 4, 39, 47)
    n = len(g.mf)
    g.put(-1, "s_waitcnt lgkmcnt(4)")
    spread(g, e, range(0, n, 2))
    ds = list(zip(vr_[4:], (1, 3, 5, 7))) + list(zip(kr, range(kb + 1, kb + 17, 2))) + list(zip(vr_[:4], range(n - 7, n, 2)))
    for x, gp in ds: g.put(gp, x)
    g.put(7, RADDR)
    sums = [(nq + 8 * k + 7, b) for k, b in enumerate(order) if b in ms]
    tail = [z for z in sums if z[0] == n - 1 and not opt('TAILDMA')]
    sums = [z for z in sums if z not in tail]
    dg = sorted(dg[:4 - min(len(sums), 4)])
    cap = {k: 2 for k in range(1, n, 2)}
    for _, gp in ds: cap[gp] -= 1
    for gp in dg: cap[gp] -= 1
    cap[7] -= 1
    ev = sorted([(gp, None) for gp in dg] + sums, key=lambda z: z[0])
    late = []
    for (gp, b), x in zip(ev, dm):
        if b is None: g.put(gp, x)
        else: late.append((gp, [msum(b), x]))
    place(g, it, cap)
    for gp, x in late: g.put(gp, *x)
    for gp, b in tail: g.put(gp, msum(b))
    g.front(kb, *barblk(mode, lg=0 if typ == 'D' else 4))
    for i, x in enumerate(UPD): g.front(kb + 1 + i, x)
    if typ != 'D': g.front(15, "s_waitcnt lgkmcnt(3)")
    if typ == 'T':
        fr = [k for k in range(16, n) if not any(z.startswith('s_') for z in g.g[k])]
        per = -(-len(extra) // len(fr))
        for i, k in enumerate(fr): g.front(k, *extra[i * per:(i + 1) * per])
        return g.lines()
    g.front(kb + 6, f"s_cmp_lt_u32 s{S_SOFF}, s{lim}")
    if mode == 'even': g.put(n - 1, f"s_cbranch_scc0 {lp}x")
    else: g.put(n - 1, f"s_cbranch_scc1 {lp}e")
    return g.lines()

def epilogue(blks):
    ms = MS(); r = []
    vb = [b for b in blks if b not in ms]
    for sw in ('32', '16'):
        if not vb: break
        r += [f"v_mov_b32 v{V_T+b}, v{V_L+b}" for b in vb] + ["s_nop 1"]
        r += [f"v_permlane{sw}_swap_b32 v{V_L+b}, v{V_T+b}" for b in vb]
        r += [f"v_add_f32 v{V_L+b}, v{V_L+b}, v{V_T+b}" for b in vb]
    if not vb: r += ["s_nop 6"]
    r += [f"v_accvgpr_read_b32 v{V_L+b}, a{LM(b)}" for b in blks if b in ms]
    for b in blks:
        fl = S_FL + (2 if b >= 2 else 0)
        r += [f"v_cmp_nle_f32 vcc, v{V_L+b}, v{V_THR}", f"v_rcp_f32 v{RC(b)}, v{V_L+b}", f"s_or_b64 s[{fl}:{fl+1}], s[{fl}:{fl+1}], vcc"]
    for b in blks:
        sc = S_CS if b >= 2 else S_CL
        if b & 1: r.append(f"s_add_u32 s{S_T}, s{sc}, {QS}")
        r += norm_store(b, S_T if b & 1 else sc, 'CST')
    return r
def RC(b): return V_T + 2 * (b & 1)

def norm_store(b, so, tag):
    r = []
    for s in range(4):
        base = O(b, 2 * s)
        r += [f"v_pk_mul_f32 {vr(base+2*i, 2)}, {vr(base+2*i, 2)}, {vr(RC(b), 2)} op_sel_hi:[1,0]" for i in range(4)]
        r += [f"v_cvt_pk_bf16_f32 v{base+i}, v{base+2*i}, v{base+2*i+1}" for i in range(4)]
        r.append(f"buffer_store_dwordx4 {vr(base)}, v{V_L16}, {sr(R_WS)}, s{so} offen offset:{s*1024} {ST} ; @{tag}")
    return r

def fallback():
    S_U = S_N; S_K = S_LS; S_LIM = S_USM; S_DST = S_ULM
    M = V_T; AL = V_T + 2; TM = CI(0, 0)
    r = ["AT_fb:", "s_waitcnt vmcnt(0) lgkmcnt(0)", f"s_cmp_eq_u64 s[{S_FL}:{S_FL+1}], 0 ; @fb", "s_cbranch_scc1 AT_fb2",
         f"s_mov_b64 s[{S_FL}:{S_FL+1}], 0", f"s_mov_b32 s{S_LIM}, s{S_UL}", f"s_mov_b32 s{S_DST}, s{S_CL}", "s_branch AT_fbgo",
         "AT_fb2:", f"s_cmp_eq_u64 s[{S_FL+2}:{S_FL+3}], 0 ; @fb2", "s_cbranch_scc1 AT_fbx",
         f"s_mov_b64 s[{S_FL+2}:{S_FL+3}], 0", f"s_mov_b32 s{S_LIM}, s{S_US}", f"s_mov_b32 s{S_DST}, s{S_CS}"]
    r += [f"v_accvgpr_mov_b32 a{QF(0,0)+i}, a{QF(2,0)+i}" for i in range(32)]
    r += ["AT_fbgo:", f"s_lshr_b32 s{S_LIM}, s{S_LIM}, 14", f"s_sub_u32 s{S_LIM}, s{S_LIM}, 6", f"s_mov_b32 s{S_U}, 0", f"s_mov_b32 s{S_K}, 0"]
    r += [f"v_mov_b32 v{O(0,0)+i}, 0" for i in range(64)]
    r += [f"v_mov_b32 v{M+b}, {NEG_BIG:#x}" for b in range(2)] + [f"v_mov_b32 v{V_L+b}, 0" for b in range(2)]
    r += ["AT_fbl:"]
    for i in range(16):
        if i % 4 == 0: r.append(f"s_add_u32 s{S_T}, s{S_K}, {i * 1024 + (CS if i >= 8 else 0)}")
        r.append(f"buffer_load_dwordx4 {ar(i * 4)}, v{V_L16}, {sr(R_KV)}, s{S_T} offen offset:{(i & 3) * 1024} sc1 ; @skip")
    r += ["s_waitcnt vmcnt(0)"] + qk(A_, 1) + qk(B_, 1) + ["s_nop 7", f"s_cmp_lg_u32 s{S_U}, s{S_LIM}", "s_cbranch_scc1 AT_fbn"] + maskblk(A_, S) + ["AT_fbn:"]
    for b in range(2):
        s0 = S(b, 0); t = TM + b
        r += [f"v_max3_f32 v{t}, v{s0}, v{s0+1}, v{s0+2}", f"v_max3_f32 v{t}, v{t}, v{s0+3}, v{s0+4}", f"v_max3_f32 v{t}, v{t}, v{s0+5}, v{s0+6}",
              f"v_max3_f32 v{t}, v{t}, v{s0+7}, v{M+b}"]
    for sw in ('32', '16'):
        r += [f"v_mov_b32 v{TM+2+b}, v{TM+b}" for b in range(2)] + ["s_nop 1"]
        r += [f"v_permlane{sw}_swap_b32 v{TM+b}, v{TM+2+b}" for b in range(2)]
        r += [f"v_max_f32 v{TM+b}, v{TM+b}, v{TM+2+b}" for b in range(2)]
    for b in range(2):
        r += [f"v_sub_f32 v{AL+b}, v{M+b}, v{TM+b}", f"v_exp_f32 v{AL+b}, v{AL+b}", f"v_mov_b32 v{M+b}, v{TM+b}"]
        r += [f"v_sub_f32 v{S(b,0)+i}, v{S(b,0)+i}, v{M+b}" for i in range(8)] + exps(b, V_E + 8 * b)
        r += [f"v_mul_f32 v{V_L+b}, v{V_L+b}, v{AL+b}"] + [f"v_mul_f32 v{O(b,0)+i}, v{O(b,0)+i}, v{AL+b}" for i in range(32)]
        r += cvts(b, V_E + 8 * b) + [f"v_add_f32 v{V_L+b}, v{V_L+b}, v{V_E+8*b+i}" for i in range(8)]
    r += ["s_nop 1"] + pv(A_) + pv(B_)
    r += [f"s_add_u32 s{S_K}, s{S_K}, {CS}", f"s_add_u32 s{S_U}, s{S_U}, 1", f"s_cmp_le_u32 s{S_U}, s{S_LIM}", "s_cbranch_scc1 AT_fbl"]
    for sw in ('32', '16'):
        r += [f"v_mov_b32 v{TM+b}, v{V_L+b}" for b in range(2)] + ["s_nop 1"]
        r += [f"v_permlane{sw}_swap_b32 v{V_L+b}, v{TM+b}" for b in range(2)]
        r += [f"v_add_f32 v{V_L+b}, v{V_L+b}, v{TM+b}" for b in range(2)]
    r += [f"v_rcp_f32 v{RC(b)}, v{V_L+b}" for b in range(2)] + [f"s_add_u32 s{S_T}, s{S_DST}, {QS}"]
    for b in range(2): r += norm_store(b, S_T if b else S_DST, 'skip')
    return r + ["s_branch AT_fb"]

def maskblk(b0, CI=CI):
    r = []
    for i in range(4):
        r += [f"v_min_f32 v{CI(b0,0)+i}, v{CI(b0,0)+i}, v{V_M+i}", f"v_mov_b32 v{CI(b0,1)+i}, {NEG_BIG:#x}",
              f"v_min_f32 v{CI(b0+1,1)+i}, v{CI(b0+1,1)+i}, v{V_M+i}"]
    return r

def early_setup():
    return [f"s_mul_i32 s{S_SOFF}, s{S_H}, {HS}", f"s_add_u32 s{R_KV}, s{P_WS}, s{S_SOFF}", f"s_addc_u32 s{R_KV+1}, s{P_WS+1}, 0",
            f"s_mul_i32 s{S_SOFF}, s{S_I}, {4*CS}", f"s_sub_u32 s{R_KV+2}, {HL}, s{S_SOFF}", f"s_lshl_b32 s0, s{S_W}, 12",
            f"v_add_u32 v{V_DMA}, s0, v{V_L16}"]
def chunk_dma(c):
    d = dmas(f"C{c}")
    return [([f"s_add_u32 s{S_GO}, s0, {c*CS}", f"s_add_u32 m0, s0, {c*16384}"] + ([f"s_add_u32 s{S_SOFF}, s0, {c*16384}"] if c == 6 and CS != 16384 else []), d[0])] + [([], x) for x in d[1:]]

def chunks(c0, c1):
    r = []
    for c in range(c0, c1):
        for sal, x in chunk_dma(c): r += sal + (["s_nop 0"] if sal else []) + [x]
    return r
def prologue1():
    r = f"""
    s_lshl_b32 s{S_T}, s{S_I}, 2
    s_add_u32 s{S_US}, s{S_T}, s{S_W}
    s_sub_u32 s{S_UL}, s{S_W}, s{S_T}
    s_add_u32 s{S_UL}, s{S_UL}, 60
    s_sub_u32 s{S_T}, 61, s{S_T}
    s_bfm_b64 s[{S_BM}:{S_BM+1}], s{S_T}, 0
    s_and_b32 s{S_BM}, s{S_BM}, 0x55555555
    s_and_b32 s{S_BM+1}, s{S_BM+1}, 0x55555555
    s_lshl_b32 s{S_T}, s{S_H}, 12
    s_add_u32 s{S_T}, s{S_T}, {WS_C}
    s_mul_i32 s{S_CL}, s{S_UL}, {2*QS}
    s_add_u32 s{S_CL}, s{S_CL}, s{S_T}
    s_mul_i32 s{S_CS}, s{S_US}, {2*QS}
    s_add_u32 s{S_CS}, s{S_CS}, s{S_T}
    s_mov_b64 s[{S_FL}:{S_FL+1}], 0
    s_mov_b64 s[{S_FL+2}:{S_FL+3}], 0
    s_add_u32 s{S_DM}, s0, {6*16384}
    s_lshl_b32 s{S_US}, s{S_US}, 14
    s_add_u32 s{S_US}, s{S_US}, s{S_DM}
    s_lshl_b32 s{S_UL}, s{S_UL}, 14
    s_add_u32 s{S_UL}, s{S_UL}, s{S_DM}
    s_sub_u32 s{S_USM}, s{S_US}, 16384
    s_sub_u32 s{S_ULM}, s{S_UL}, 16384
    s_lshl_b32 s{S_EV}, s{S_I}, 16
    s_add_u32 s{S_EV}, s{S_EV}, s{S_DM}
    s_add_u32 s{S_EV}, s{S_EV}, 65536
    s_min_u32 s{S_LS}, s{S_EV}, s{S_ULM}
    s_add_u32 s{S_DX}, s0, {9*16384}""".split('\n')
    return [x.strip() for x in r if x.strip()]

def k0reads(): return [x.replace(f"v{V_RA} ", f"v{V_L16} ") for x in kreads()]
def S0(b, t): return 128 + b * 8 + t * 4
def prologue_mix(aa, dm, sal):
    mf = [mfma(vr(S0(b, t)), K(t, s), Q(b, s), '0' if s == 0 else vr(S0(b, t))) for b in (C_, D_, A_, B_) for t in range(2) for s in range(4)]
    kr = kreads(); per = -(-len(sal) // 32)
    r = [f"v_add_u32 v{V_RA}, 16384, v{V_L16}"]; k = 0; nxt = 12; dpos = 30
    for i, x in enumerate(aa):
        r.append(x)
        plain = x.startswith('v_') and not x.startswith('v_mfma') and i + 1 < len(aa) and not aa[i + 1].startswith('v_permlane')
        if i >= nxt and plain and k < 32:
            if k == 0: r.append("s_waitcnt lgkmcnt(0)")
            r += [mf[k]] + sal[k * per:(k + 1) * per] + ([kr[k - 24]] if k >= 24 else [])
            k += 1; nxt = i + 4
        elif i >= dpos and plain and dm:
            sl, d = dm.pop(0); r = r[:-1] + sl + [x, d]; dpos = i + 8
    assert k == 32 and not dm, (k, len(dm))
    return r + vreads()[:4]

def prologue2():
    r = f"""v_mov_b32 v{V_THR}, {f2u(2.0**32):#x}
    v_xor_b32 v{V_XC}, 0x10000, v{V_DMA}
    v_and_b32 v7, 15, v1
    v_lshrrev_b32 v8, 4, v1
    v_lshlrev_b32 v8, 2, v8
    v_mov_b32 v9, 0x7f7fffff
    v_mov_b32 v10, {NEG_BIG:#x}""".split('\n')
    for i in range(4):
        r += [f"v_add_u32 v11, {i}, v8", "v_cmp_gt_u32 vcc, v11, v7", f"v_mov_b32 v{V_L+i}, 0", f"v_accvgpr_write_b32 a{128+i}, v{56+i}", f"v_cndmask_b32 v{V_M+i}, v9, v10, vcc"]
    r += [f"s_cmp_lg_u32 s{S_US}, s{S_SOFF}", "s_cbranch_scc1 AT_nm0"] + maskblk(C_, S0) + ["AT_nm0:"]
    for b in (C_, D_, A_, B_):
        s0 = S0(b, 0); t = V_T + b; u = V_E + b
        r += [f"v_max3_f32 v{t}, v{s0}, v{s0+1}, v{s0+2}", f"v_max3_f32 v{t}, v{t}, v{s0+3}, v{s0+4}",
              f"v_max3_f32 v{t}, v{t}, v{s0+5}, v{s0+6}", f"v_max_f32 v{t}, v{t}, v{s0+7}", f"v_mov_b32 v{u}, v{t}"]
    r += [f"v_accvgpr_write_b32 a{LM(0)+i}, 0" for i in range(2)]
    r += [f"v_permlane32_swap_b32 v{V_T+b}, v{V_E+b}" for b in range(4)]
    for b in range(4): r += [f"v_max_f32 v{V_T+b}, v{V_T+b}, v{V_E+b}", f"v_mov_b32 v{V_E+b}, v{V_T+b}"]
    r += [f"v_accvgpr_write_b32 a{LM(0)+i}, 0" for i in range(2, 4 * len(MS()))]
    r += [f"v_permlane16_swap_b32 v{V_T+b}, v{V_E+b}" for b in range(4)]
    r += [f"v_max_f32 v{V_T+b}, v{V_T+b}, v{V_E+b}" for b in range(4)]
    sel = lambda b: (vr(V_T + (b & 2), 2), f"op_sel:[0,{b & 1}] op_sel_hi:[1,{b & 1}]", f"op_sel:[{b & 1},0] op_sel_hi:[{b & 1},0]")
    for b in (A_, C_, B_, D_): r += [f"v_pk_add_f32 {vr(S(b,0)+2*i, 2)}, {vr(S0(b,0)+2*i, 2)}, {sel(b)[0]} {sel(b)[1]} neg_lo:[0,1] neg_hi:[0,1]" for i in range(4)]
    r += exps(A_, V_E) + exps(C_, V_E + 8) + ex(B_, 0, V_EB)
    for b in range(4): r += [f"v_pk_add_f32 {vr(CI(b,0)+2*i, 2)}, {vr(192, 2)}, {sel(b)[0]} {sel(b)[1]} neg_lo:[0,1] neg_hi:[0,1]" for i in range(4)]
    r += [f"v_pk_mul_f32 {vr(128 + 2 * i, 2)}, {vr(192, 2)}, {vr(192, 2)}" for i in range(16)]
    r += cvts(A_, V_E) + cvts(C_, V_E + 8) + ([] if A_ in MS() else adds(A_, V_E)) + ([] if C_ in MS() else adds(C_, V_E + 8))
    return [x.strip() for x in r]

def main_loop(in_t, after_t, at_ma, at_f, in_f):
    par = lambda l: barbit() + [f"s_cbranch_scc1 {l}e", f"s_branch {l}o"]
    r = [f"s_cmp_lt_u32 s{S_SOFF}, s{S_USM}", "s_cbranch_scc0 AT_Dx", ".p2align 6", "AT_De:"]
    r += period('D', 'even') + ["AT_Do:"] + period('D', 'odd')
    r += ["AT_Dx:", f"s_cmp_lg_u32 s{S_SOFF}, s{S_US}", "s_cbranch_scc1 AT_mc"]
    r += period('T', 'dyn', in_t) + after_t
    r += ["s_branch AT_Sx"]
    r += ["AT_mc:"] + maskblk(C_) + par('AT_D')
    r += ["AT_ev:"] + epilogue([C_, D_]) + [f"s_mov_b32 s{S_LS}, s{S_ULM}", "s_branch AT_Sy"]
    r += ["AT_ms:", f"s_cmp_lg_u32 s{S_SOFF}, s{S_ULM}", "s_cbranch_scc1 AT_mp"] + maskblk(A_) + at_ma + ["AT_mp:"] + par('AT_S')
    r += [".p2align 6", "AT_Se:"] + period('S', 'even') + ["AT_So:"] + period('S', 'odd')
    r += ["AT_Sx:", f"s_cmp_eq_u32 s{S_SOFF}, s{S_EV}", "s_cbranch_scc1 AT_ev", "AT_Sy:", f"s_cmp_lg_u32 s{S_SOFF}, s{S_UL}", "s_cbranch_scc1 AT_ms"]
    r += at_f + period('F', 'dyn', in_f) + stamp('f') + epilogue([A_, B_])
    r += [f"s_or_b64 vcc, s[{S_FL}:{S_FL+1}], s[{S_FL+2}:{S_FL+3}]", "s_cbranch_vccnz AT_fb", "AT_fbx:"]
    return [x.strip() for x in r]
```

```python
import math, os, struct
def opt(k, d=''): return os.environ.get(k, d)
CS = 16384 + int(opt('CSK', '0'))
QS = 131072 + int(opt('QSK', '0'))
XG = 262144 + int(opt('XSK', '0'))
HL = 65 * CS
HS = HL + int(opt('HSK', '1024'))
WS_KV = 0
WS_C = 38 << 20
WS_OA = 61 << 20
WS_WO = 56 << 20
WS_WA = 60 << 20
WS_XB = 64 << 20
WS_END = 82 << 20
OOB = 0x40000000
NEG_BIG = 0xf149f2ca
def f2u(x): return struct.unpack('<I', struct.pack('<f', x))[0]
def vr(b, n=4): return f"v[{b}:{b+n-1}]" if n > 1 else f"v{b}"
def ar(b, n=4): return f"a[{b}:{b+n-1}]" if n > 1 else f"a{b}"
def sr(b, n=4): return f"s[{b}:{b+n-1}]" if n > 1 else f"s{b}"

class Out:
    def __init__(self): self.l = []
    def __call__(self, s):
        for x in s.split('\n'):
            x = x.strip()
            if not x: continue
            if x.endswith(':') or x.startswith('.') or x.startswith(';'): self.l.append(x)
            else: self.l.append('    ' + x)
    def ext(self, lst):
        for x in lst: self(x)
    def text(self): return '\n'.join(self.l) + '\n'

class Gaps:
    def __init__(self, mf):
        self.mf = mf; self.g = {i: [] for i in range(-1, len(mf))}
    def put(self, i, *ins):
        i = min(i, len(self.mf) - 1); self.g[i] += list(ins)
    def front(self, i, *ins):
        i = min(i, len(self.mf) - 1); self.g[i] = list(ins) + self.g[i]
    def lines(self):
        r = list(self.g[-1])
        for i, m in enumerate(self.mf): r += [m] + self.g[i]
        return r
    def emit(self, o): o.ext(self.lines())

def mfma(d, a, b, c): return f"v_mfma_f32_16x16x32_bf16 {d}, {a}, {b}, {c}"

P_XA, P_WQKV, P_WO_A, P_XB, P_CKV, P_WQ, P_WUK, P_WUV, P_WO, P_OUT, P_DBG, P_WS = [56 + 2 * i for i in range(12)]
def srd(base, ptr, nrec, add=None):
    if opt('NOACT') and ptr in (P_XA, P_XB, P_CKV): nrec = 0
    if opt('NOW') and ptr in (P_WQ, P_WUK, P_WUV, P_WQKV): nrec = 0
    if add is None: r = [f"s_mov_b32 s{base}, s{ptr}", f"s_mov_b32 s{base+1}, s{ptr+1}"]
    else: r = [f"s_add_u32 s{base}, s{ptr}, {add}", f"s_addc_u32 s{base+1}, s{ptr+1}, 0"]
    return r + [f"s_mov_b32 s{base+2}, {nrec}", f"s_mov_b32 s{base+3}, 0x20000"]
R_A0, R_A1, R_W0, R_W1, R_WS, R_X = 4, 8, 12, 16, 20, 24
S_W = 28; S_H = 29; S_I = 30
S_X = 31

def kd(name, vgpr, acc, sgpr=102):
    return f""".section .rodata,"a"
.p2align 6
.amdhsa_kernel {name}
  .amdhsa_next_free_vgpr {vgpr}
  .amdhsa_next_free_sgpr {sgpr}
  .amdhsa_accum_offset {acc}
  .amdhsa_group_segment_fixed_size 0
  .amdhsa_kernarg_size 96
  .amdhsa_user_sgpr_count 2
  .amdhsa_user_sgpr_kernarg_segment_ptr 1
  .amdhsa_system_sgpr_workgroup_id_x 1
.end_amdhsa_kernel
.text
"""
def head(name): return f".globl {name}\n.p2align 8\n.type {name},@function\n{name}:\n"

class VmQ:
    def __init__(self): self.q = []
    def scan(self, lines):
        out = []
        for x in lines:
            if x.startswith('@wait'):
                p = x.split()
                n = min(self.need(t) for t in p[1].split(','))
                extra = ' '.join(p[2:])
                out.append(f"s_waitcnt vmcnt({min(n, 63)}) {extra}".strip())
                continue
            if x.startswith('buffer_') or x.startswith('global_'):
                tag = x.split('@')[1].strip() if '@' in x else '-'
                if tag != 'skip': self.q.append(tag)
            out.append(x)
        return out
    def need(self, tag):
        idx = [i for i, t in enumerate(self.q) if t == tag]
        if not idx: return 63
        return len(self.q) - 1 - idx[-1]

INSTR = False
def stamp(name):
    names = opt('STAMPS', 'go,k,eng,att,f,pc').split(',')
    if name not in names: return []
    i = names.index(name) + 1
    return [f"{'s_memtime' if opt('CYC') else 's_memrealtime'} s[{84+2*i}:{85+2*i}]", "s_waitcnt lgkmcnt(0)"] if globals()["INSTR"] else []
def stamp_init():
    if not globals()["INSTR"]: return []
    return [("s_memtime" if opt('CYC') else "s_memrealtime") + " s[84:85]", "s_memtime s[80:81]"] + [f"s_mov_b32 s{84+2*i}, 0" for i in range(1, 8)]
def stamp_end(kidx):
    if not globals()["INSTR"]: return []
    r = f"""s_waitcnt vmcnt(0) lgkmcnt(0)
    {'s_memtime' if opt('CYC') else 's_memrealtime'} s[98:99]
    s_memtime s[82:83]
    s_add_u32 s4, s{P_WS}, {(128 << 20) + kidx * 65536}
    s_addc_u32 s5, s{P_WS+1}, 0
    s_mov_b32 s6, 65536
    s_mov_b32 s7, 0x20000
    s_waitcnt lgkmcnt(0)
    s_sub_u32 s82, s82, s80
    s_lshl_b32 s80, s2, 8
    s_lshl_b32 s81, s{S_W}, 6
    s_add_u32 s80, s80, s81
    v_mov_b32 v253, s80
    v_mov_b32 v252, s82""".split('\n')
    if opt('DBGOUT'):
        q = ["s_waitcnt vmcnt(0) lgkmcnt(0)", "s_memrealtime s[98:99]", "s_waitcnt lgkmcnt(0)", f"s_cmp_lg_u32 s{S_W}, 3", "s_cbranch_scc1 L_dx", "s_and_b32 s80, s2, 0xfb", "s_cmp_lg_u32 s80, 0", "s_cbranch_scc1 L_dx",
             "s_mul_i32 s80, s2, 7", "s_add_u32 s80, s80, 4", "v_mov_b32 v253, s80", "s_mov_b64 exec, 1"]
        for i in range(1, 8):
            q += [f"s_sub_u32 s81, s{84+2*i}, s84", "v_mov_b32 v252, s81", f"buffer_store_dword v252, v253, {sr(R_X)}, 0 offen offset:{4*(i-1)}"]
        return q + ["L_dx:"]
    for i in range(8): r.append(f"v_mov_b32 v{244+i}, s{84+2*i}")
    r += ["s_mov_b64 exec, 1", "buffer_store_dwordx4 v[244:247], v253, s[4:7], 0 offen", "buffer_store_dwordx4 v[248:251], v253, s[4:7], 0 offen offset:16",
          "buffer_store_dword v252, v253, s[4:7], 0 offen offset:32"]
    return [x.strip() for x in r]

WS_MB = 55 << 20
MB = {'CTX': (0, 8), 'KV': (32, 8), 'OA': (64, 8), 'WA': (112, 4), 'WO': (128, 16), 'XB': (192, 16)}
S_NON = 3
uidc = [0]
def signal(kind, v, cond=()):
    uidc[0] += 1; l = f"SG{uidc[0]}"
    r = ([f"s_cmp_lg_u32 s{S_W}, 0", f"s_cbranch_scc1 {l}"] if kind != 'XB' else []) + list(cond) + ([f"s_cbranch_scc1 {l}"] if cond else [])
    X, Jv = v, v + 1
    if kind == 'KV':
        r += [f"v_mov_b32 v{X}, s{S_X}", f"s_and_b32 s100, s{S_H}, 3", f"v_lshl_add_u32 v{Jv}, v1, 2, s100"]; n = 8
        word = [f"s_mov_b32 s100, s{S_I}"]
    elif kind == 'OA':
        r += [f"s_lshr_b32 s100, s53, 2", f"v_mov_b32 v{X}, s100", f"s_and_b32 s100, s53, 3", f"v_lshl_add_u32 v{Jv}, v1, 2, s100"]; n = 8
        word = [f"s_and_b32 s100, s{S_H}, 7"]
    elif kind == 'WA':
        r += [f"v_lshrrev_b32 v{X}, 2, v1", f"v_and_b32 v{Jv}, 3, v1", f"s_lshl_b32 s100, s{S_I}, 2", f"v_add_u32 v{Jv}, s100, v{Jv}"]; n = 32
        word = [f"s_lshr_b32 s100, s{S_H}, 3"]
    elif kind == 'WO':
        r += [f"s_and_b32 s100, s{S_X}, 6", f"v_and_b32 v{X}, 1, v1", f"v_add_u32 v{X}, s100, v{X}", f"v_lshrrev_b32 v{Jv}, 1, v1", f"s_lshr_b32 s100, s{S_I}, 1",
              f"v_lshl_add_u32 v{Jv}, v{Jv}, 2, s100"]; n = 16
        word = [f"s_and_b32 s100, s{S_H}, 7", "s_lshl_b32 s100, s100, 1", f"s_and_b32 s101, s{S_I}, 1", "s_add_u32 s100, s100, s101"]
    elif kind == 'CTX':
        r += [f"s_and_b32 s100, s{S_X}, 6", f"v_and_b32 v{X}, 1, v1", f"v_add_u32 v{X}, s100, v{X}", f"v_lshrrev_b32 v{Jv}, 1, v1", f"s_lshl_b32 s100, s{S_I}, 2",
              f"v_add_u32 v{Jv}, s100, v{Jv}"]; n = 8
        word = [f"s_and_b32 s100, s{S_H}, 7"]
    else:
        r += [f"v_lshl_add_u32 v{X}, v1, 1, s{S_X}", f"v_and_b32 v{X}, 7, v{X}", "s_lshr_b32 s100, s2, 3", f"v_mov_b32 v{Jv}, s100"]; n = 4
        word = [f"s_mov_b32 s100, s{S_W}"]
    r += [f"v_lshl_add_u32 v{v+2}, v{Jv}, 3, v{X}", f"v_lshlrev_b32 v{v+2}, 9, v{v+2}"]
    if kind == 'XB': r += [f"v_lshl_add_u32 v{v+2}, v1, 4, v{v+2}"]
    r += word + ["s_lshl_b32 s100, s100, 2", f"s_add_u32 s100, s100, {WS_MB + MB[kind][0]}", f"v_mov_b32 v{v}, s{S_NON}", f"s_mov_b64 exec, {(1 << n) - (2 if kind == 'XB' else 1):#x}",
          f"buffer_store_dword v{v}, v{v+2}, {sr(R_WS)}, s100 offen sc1 ; @skip", "s_mov_b64 exec, -1", f"{l}:"]
    return r
def poll_issue(kind, vd, tag):
    off, n = MB[kind[:3] if kind.startswith('CTX') else kind]
    if kind.startswith('CTX'):
        return [f"s_and_b32 s101, s{S_H}, 4"] + (["s_xor_b32 s101, s101, 4"] if kind == 'CTX2' else []) + [
                "s_lshl_b32 s100, s2, 7", "s_add_u32 s100, s100, s101", "s_lshl_b32 s100, s100, 2", f"s_add_u32 s100, s100, {WS_MB + off}", f"v_and_b32 v{vd+1}, 3, v1",
                f"v_lshl_add_u32 v{vd+1}, v{vd+1}, 2, s100", f"buffer_load_dword v{vd}, v{vd+1}, {sr(R_WS)}, 0 offen sc1 ; @{tag}"]
    if kind == 'XB':
        return [f"s_lshl_b32 s100, s2, 7", f"s_add_u32 s100, s100, s{S_W}", "s_lshl_b32 s100, s100, 2", f"s_add_u32 s100, s100, {WS_MB + off}", f"v_and_b32 v{vd+1}, 3, v1",
                f"v_max_u32 v{vd+1}, 1, v{vd+1}", f"v_lshl_add_u32 v{vd+1}, v{vd+1}, 4, s100", f"buffer_load_dword v{vd}, v{vd+1}, {sr(R_WS)}, 0 offen sc1 ; @{tag}"]
    return [f"s_lshl_b32 s100, s2, 9", f"s_add_u32 s100, s100, {WS_MB + off}", f"v_and_b32 v{vd+1}, {n-1}, v1", f"v_lshl_add_u32 v{vd+1}, v{vd+1}, 2, s100",
            f"buffer_load_dword v{vd}, v{vd+1}, {sr(R_WS)}, 0 offen sc1 ; @{tag}"]
def poll_check(vd, st, R=None, cmp=None):
    uidc[0] += 1; l = f"PL{uidc[0]}"
    R = R_WS if R is None else R
    return [f"s_mov_b32 s{st}, 0x20000", f"{l}:", cmp or f"v_cmp_ne_u32 vcc, s{S_NON}, v{vd}", f"s_cbranch_vccz {l}x ; @taken",
            f"s_sub_u32 s{st}, s{st}, 1", f"s_cbranch_scc1 {l}x", "s_sleep 4",
            f"buffer_load_dword v{vd}, v{vd+1}, {sr(R)}, 0 offen sc1 ; @skip", "s_waitcnt vmcnt(0)", f"s_branch {l}", f"{l}x:"]
```

```python
from common import *
KSCALE = f2u(math.log2(math.e) / math.sqrt(128.0))
ASC = f2u(0.25 * math.log2(math.e))
V_L16 = 2; V_AD = 4; V_WD = 8; V_WV = 10; V_AR = 12
V_TR = 16; V_PK = 24; V_TV = 28
def WF(buf, T): return 32 + buf * 32 + T * 4
def WFV(buf, T): return 32 + buf * 16 + T * 4
def WFA(buf, f): return 32 + buf * 12 + f * 4
AAC = 60
def XF(buf, tb): return buf * 20 + tb * 4
def XP(tb, ks): return (ks * 4 + tb) * 4
V_MP = 16; V_MC = 20; V_MP1 = 28; V_ONE = 56
V_WA = 116; V_WT = 117; V_AX = 118; V_A3 = 120; V_OD = 122; V_TA = 8
ACCV = 128
def VAC(hf, T, tb): return (64 if hf == 0 else 128) + (T * 4 + tb) * 4
def QF(b, s): return 64 + (b * 4 + s) * 4
S_CK = 32; S_QL = 33; S_QS = 34; S_KA = 35; S_KW = 36; S_WC = 37; S_AR = 38; S_WL = 39
S_AG = 40; S_AL = 43; S_AW = 44; S_KB = 45; S_KVS = 46; S_T = 47; S_T2 = 48; S_T3 = 49; S_KS = 50; S_AC = 51; S_OA = 52; S_TT = 53; S_KVO = 54
PASSES = [('K', None), ('V', None), ('Q', None), ('A', None)]
NST = 64
ST = 'sc1'
ROT = not opt('NOROT')
def ptype(G): return PASSES[G // 16][0]

def adv(s): return [f"s_add_u32 s{s}, s{s}, 128", f"s_and_b32 s{s}, s{s}, 1023"]

def act_dma(P, half):
    t = ptype(2 * P); base = (AP(P) % 3) * 8192
    pre = adv(S_KA) if half == 0 and P > 0 else []
    if t == 'A':
        r = []
        for k in range(3 * half, 3 * half + 3):
            sect, j = k >> 1, k & 1
            sal = []
            if k == 0: sal += pre + [f"s_mul_i32 s{S_T2}, s{S_KA}, 1536", f"s_add_u32 s{S_T2}, s{S_T2}, s{S_AW}"]
            if j == 0 or k == 3: sal += [f"s_add_u32 s{S_T}, s{S_T2}, {sect * 1024}", f"s_add_u32 m0, s{S_AR}, {base + sect * 2048}"]
            r.append((sal, f"buffer_load_dwordx4 v{V_WA if j == 0 else V_WT}, {sr(R_W1)}, s{S_T} offen offset:{j*1024} lds ; @X{P}"))
        return r
    R = R_A1 if t == 'Q' else R_A0
    src = (S_QS if half else S_QL) if t == 'Q' else S_CK
    sal = pre + [f"s_add_u32 s{S_T}, s{src}, s{S_KA}"]
    if t != 'Q' and half: sal += [f"s_add_u32 s{S_T}, s{S_T}, 32768"]
    sal += [f"s_add_u32 m0, s{S_AR}, {base + half * 4096}"]
    return [(sal if k == 0 else [], f"buffer_load_dwordx4 v{V_AD+k}, {sr(R)}, s{S_T} offen offset:{k*1024} lds ; @X{P}") for k in range(4)]

def w_dma(G):
    t = ptype(G); tag = f"W{G//2}"
    pre = adv(S_KB) if G % 2 == 0 and G > 0 else []
    if t == 'V':
        sal = adv(S_KB) + [f"s_lshl_b32 s{S_KW}, s{S_KB}, 12", f"s_add_u32 s{S_KW}, s{S_KW}, s{S_WC}"] + ([f"s_add_u32 s{S_KW}, s{S_KW}, 128"] if G >= 24 else [])
        sal += [f"s_add_u32 m0, s{S_WL}, {(G % 8) * 8192}"]
        return [(sal, f"buffer_load_dwordx4 v{V_WV}, {sr(R_W1)}, s{S_KW} offen lds ; @{tag}"),
                ([], f"buffer_load_dwordx4 v{V_WV+1}, {sr(R_W1)}, s{S_KW} offen offset:1024 lds ; @{tag}")]
    if t != 'A':
        R = R_W0
        sal = pre + ([f"s_lshl_b32 s{S_KW}, s{S_KB}, 12", f"s_add_u32 s{S_KW}, s{S_KW}, s{S_WC}"] if G % 2 == 0 else [f"s_add_u32 s{S_KW}, s{S_KW}, 262144"])
        sal += [f"s_add_u32 m0, s{S_WL}, {(G % 8) * 8192}"]
        return [(sal, f"buffer_load_dwordx4 v{V_WD}, {sr(R)}, s{S_KW} offen lds ; @{tag}"),
                ([], f"buffer_load_dwordx4 v{V_WD+1}, {sr(R)}, s{S_KW} offen offset:1024 lds ; @{tag}")]
    r = []
    for k in ((0, 1) if G % 2 == 0 else (2,)):
        r.append(((pre if k == 0 else []) + [f"s_add_u32 s{S_T3}, s{S_AG+k}, s{S_KB}", f"s_add_u32 m0, s{S_AL}, {((G // 2) % 4) * 16384 + k * 1024}"],
                  f"buffer_load_dwordx4 v{V_A3 + (k & 1)}, {sr(R_A0)}, s{S_T3} offen lds ; @{tag}"))
    return r

def AP(P): return P if P < 8 else P - 8
def vreads(G, e2):
    return [f"ds_read_b64_tr_b16 {vr(WFV(e2, T) + 2*e, 2)}, v{V_TV+T} offset:{(G % 8) * 8192 + e2 * 4096 + e * 512}" for T in range(4) for e in range(2)]
def reads(G):
    t = ptype(G); buf = G & 1; P = G // 2
    if t == 'A':
        r = [f"ds_read_b128 {ar(XF(buf, tb))}, v{V_AX + (G & 1)} offset:{(P % 4) * 16384 + tb * 2048}" for tb in range(5)]
        for f, sect in enumerate((1, 2, 0)):
            r += [f"ds_read_b64_tr_b16 {vr(WFA(buf, f) + 2*e, 2)}, v{V_TA + (G & 1)} offset:{(AP(P) % 3) * 8192 + sect * 2048 + e * 512}" for e in range(2)]
        return r
    if t == 'V': return vreads(G, 0)
    r = [f"ds_read_b128 {ar(XP(tb, G) if t == 'K' else XF(buf, tb))}, v{V_AR + (G & 1)} offset:{(AP(P) % 3) * 8192 + tb * 2048}" for tb in range(4)]
    for T in range(8):
        r += [f"ds_read_b64_tr_b16 {vr(WF(buf, T) + 2*e, 2)}, v{V_TR+T} offset:{(G % 8) * 8192 + e * 1024}" for e in range(2)]
    return r

def AACC(f, tb): return AAC + (f * 5 + tb - (1 if f == 2 else 0)) * 4
def mfmas(G):
    t = ptype(G); ks = G % 16; buf = G & 1; mf = []
    if t == 'A':
        for f in range(3):
            for tb in range(1 if f == 2 else 0, 5):
                d = vr(AACC(f, tb)); c = d if ks else '0'
                if f == 1: mf.append(mfma(d, ar(XF(buf, tb)), vr(WFA(buf, f)), c))
                else: mf.append(mfma(d, vr(WFA(buf, f)), ar(XF(buf, tb)), c))
        return mf
    if t == 'V':
        hf = ks >> 3
        for e2 in range(2):
            kk = 2 * (ks & 7) + e2
            for T in range(4):
                for tb in range(4):
                    d = vr(VAC(hf, T, tb)); mf.append(mfma(d, ar(XP(tb, kk)), vr(WFV(e2, T)), d if kk else '0'))
        return mf
    for T in range(8):
        for tb in range(4):
            d = (ar if t == 'Q' else vr)(ACCV + (T * 4 + tb) * 4); c = d if ks else '0'
            mf.append(mfma(d, vr(WF(buf, T)), ar(XP(tb, ks) if t == 'K' else XF(buf, tb)), c))
    return mf

def drain(dt, k):
    pk = V_PK
    if dt == 'Z': return [f"v_mov_b32 v{k+i}, 0" for i in range(4)]
    if dt == 'K':
        s, tb = k >> 2, k & 3
        lo = ACCV + ((2 * s) * 4 + tb) * 4; hi = lo + 16
        va = [f"v_mul_f32 v{r}, s{S_KS}, v{r}" for r in list(range(lo, lo + 4)) + list(range(hi, hi + 4))]
        src = [lo, lo + 2, hi, hi + 2]
        off = (tb >> 1) * CS + ((tb & 1) * 4 + s) * 1024
    elif dt == 'V':
        hf, T, p = k >> 3, (k >> 1) & 3, k & 1
        lo = VAC(hf, T, 2 * p); va = []
        src = [lo + 2 * r for r in range(4)]
        off = (p + 1) * CS + 8192 + (hf * 4 + T) * 1024
    else:
        tb, s = k >> 2, k & 3
        va = []
        for h in range(2):
            a = ACCV + ((2 * s + h) * 4 + tb) * 4
            va += [f"v_accvgpr_read_b32 v{pk+i}, a{a+i}" for i in range(4)] + [f"v_cvt_pk_bf16_f32 v{pk+2*i}, v{pk+2*i}, v{pk+2*i+1}" for i in range(2)]
            va += [f"v_accvgpr_write_b32 a{QF(tb, s)+2*h+i}, v{pk+2*i}" for i in range(2)]
        return va
    va += [f"v_cvt_pk_bf16_f32 v{pk+i}, v{x}, v{x+1}" for i, x in enumerate(src)]
    if opt('NOKVST'): return va
    return va + [f"s_add_u32 s{S_KVO}, s{S_KVS}, {off}", f"buffer_store_dwordx4 {vr(pk)}, v{V_L16}, {sr(R_WS)}, s{S_KVO} offen {opt('KVST', ST)} ; @ST{dt}"]

def drain_plan():
    d = {G: [] for G in range(NST)}
    if opt('DP', '2') == '2':
        for G in range(16, 24): d[G] = [('K', G - 16)]
        for G in range(24, 31): d[G] = [('V', G - 23)]
        d[24] = [('V', 0), ('V', 1)]; d[31] = [('K', 8)]
        for G in range(32, 40): d[G] = [('V', G - 24)]
        for G in range(40, 47): d[G] = [('K', G - 31)]
        for k in range(8, 16):
            lo = ACCV + 32 * (k >> 2) + 4 * (k & 3); G = 32 if k == 8 else k + 32
            d[G] += [('Z', lo), ('Z', lo + 16)]
        for G in range(40, 48): d[G] += [('Z', 128 + 8 * (G - 40)), ('Z', 132 + 8 * (G - 40))]
        for G in range(48, 64): d[G] = [('Q', G - 48)]
        for G in range(58, 62): d[G] += [('Z', ACCV + 32 * (G - 58)), ('Z', ACCV + 32 * (G - 58) + 16)]
        return d
    q = [('K', k) for k in range(12)]
    for G in range(16, 24): d[G] = [q.pop(0) for _ in range(1 + G % 2)]
    q = [('V', k) for k in range(8)] + [('K', k) for k in range(12, 16)]
    for G in range(24, 32): d[G] = [q.pop(0) for _ in range(2 - G % 2 if G < 30 else 1 + (G == 30) * 2 - (G == 31))]
    assert not q, q
    for G in range(32, 40): d[G] = [('V', 8 + G - 32), ('Z', 192 + 8 * (G - 32)), ('Z', 196 + 8 * (G - 32))]
    for G in range(40, 48): d[G] = [('Z', 128 + 8 * (G - 40)), ('Z', 132 + 8 * (G - 40))]
    for G in range(48, 64): d[G] = [('Q', G - 48)]
    for G in range(58, 62): d[G] += [('Z', ACCV + 32 * (G - 58)), ('Z', ACCV + 32 * (G - 58) + 16)]
    return d
DRAIN = drain_plan()

def dma_plan():
    plan = {0: [('A', 2, 0), ('A', 2, 1)], 1: [('W', 4), ('W', 5), ('A', 3, 0)], 2: [('A', 3, 1), ('W', 6), ('W', 7)], 3: [('A', 4, 0), ('A', 4, 1)],
            4: [('W', 8), ('W', 9), ('W', 10), ('W', 11)]}
    for G in range(5, NST):
        P = (G + 5) // 2
        if G % 2: plan[G] = [('A', P, h) for h in range(2)] if (P < 8 or 19 <= P < NST // 2) else []
        else: plan[G] = [('W', k) for k in (G + 6, G + 7) if k < NST]
    for k, G in enumerate(eval(opt('XBS', '(17, 19, 21, 23, 25, 27)'))): plan[G] = [('A', 16 + k // 2, k % 2)]
    return plan
PLAN = dma_plan()

def step(G, hooks):
    t = ptype(G)
    g = Gaps(mfmas(G)); n = len(g.mf)
    nxt = G + 1 < NST
    odd = G % 2 == 1
    rd = reads(G + 1) if nxt else []
    dl = []
    for it in PLAN[G]: dl += act_dma(it[1], it[2]) if it[0] == 'A' else w_dma(it[1])
    dl += hooks.get(('dma', G), [])
    tags = ([f"X{(G+1)//2}", f"W{(G+1)//2}"] if odd and nxt else []) + hooks.get(('wait', G), [])
    full = [f"@wait {','.join(tags)} lgkmcnt(0)" if tags else "s_waitcnt lgkmcnt(0)"] + (["s_barrier"] if odd and nxt else [])
    v0 = 0
    if t == 'V':
        g.put(-1, "s_waitcnt lgkmcnt(0)")
        dgap = [4, 10, 20, 26] if len(dl) <= 4 else [4, 7, 10, 13, 19, 22, 25, 28]
        fr = [x for x in range(32) if x not in dgap[:len(dl)]]
        for x, gp in zip(vreads(G, 1), [x for x in fr if x < 12]): g.put(gp, x)
        g.front(15, *full)
        late = [x for x in fr if x >= 16]
        for k, x in enumerate(rd): g.put(31 if k >= 18 else late[k * len(late) // max(len(rd), len(late))] if len(rd) > len(late) else late[k], x)
        v0 = 2
    elif t != 'A':
        g.put(-1, "s_waitcnt lgkmcnt(12)")
        dgap = [6, 10, 14, 18, 22, 26] if len(dl) <= 6 else [6, 9, 12, 15, 18, 21, 24, 27]
        early = not odd and len(rd) == 20
        if not early: g.front(3, *full)
        rgap = [x for x in range(0 if early else 4, 32) if x not in dgap[:len(dl)]]
        for x, gp in zip(rd, rgap): g.put(gp, x)
        if early:
            n7 = sum(1 for x in rgap[:20] if x < 7)
            g.front(7, *([f"@wait {','.join(tags)} lgkmcnt({n7})"] if tags else [f"s_waitcnt lgkmcnt({n7})"]))
        v0 = 2
    else:
        g.put(-1, "s_waitcnt lgkmcnt(4)")
        g.front(1, *full)
        dgap = [3, 5, 7, 9, 11, 13] if len(dl) <= 6 else [3, 4, 6, 7, 9, 10, 12, 13]
        for x, gp in zip(rd, range(2, 13)): g.put(gp, x)
    assert len(dl) <= len(dgap)
    for (sal, x), gp in zip(dl, dgap):
        for k, y in enumerate(sal):
            q = max(gp - len(sal) + k, 0)
            pos = max([i + 1 for i, z in enumerate(g.g[q]) if z.startswith('buffer_load') or z.startswith('s_') or z.startswith('@')] + [0])
            g.g[q].insert(pos, y)
        g.put(gp, x)
    load = lambda q: sum(1 for z in g.g[q] if not z.startswith('s_') and not z.startswith('@'))
    seq = [x for dt, k in DRAIN[G] for x in drain(dt, k)]
    cap = 2 if t != 'A' else max(2, -(-(len(seq) + 20) // n))
    gp = v0
    for k, x in enumerate(seq):
        if x.startswith('s_'): g.front(gp, x); continue
        if x.startswith('buffer'):
            q = gp + 1
            while q < n - 1 and load(q) > 0 and q < gp + 4: q += 1
            gp = min(q, n - 1); g.put(gp, x); gp = min(gp + 1, n - 1); continue
        while gp < n - 1 and load(gp) >= cap: gp += 1
        g.put(gp, x)
    for gp, x in hooks.get(('seq', G), []): g.front(gp, x) if x.startswith('s_') else g.put(gp, x)
    for gp, x in hooks.get(('misc', G), []): g.front(gp, x) if x.startswith('s_') and '\n' not in x else g.put(gp, x)
    return g.lines()

def setup():
    a = f"""v_and_b32 v1, 63, v0
    v_lshlrev_b32 v{V_L16}, 4, v1
    v_lshrrev_b32 v26, 3, v1
    v_lshrrev_b32 v24, 4, v1
    v_and_b32 v28, 7, v1
    v_xor_b32 v27, v24, v28
    v_lshlrev_b32 v27, 4, v27
    v_lshl_add_u32 v{V_AD}, v26, 10, v27
    v_xor_b32 v27, 64, v{V_AD}
    v_add_u32 v{V_AD+1}, {8192-1024}, v27
    v_add_u32 v{V_AD+2}, {2*(8192-1024)}, v{V_AD}
    v_add_u32 v{V_AD+3}, {3*(8192-1024)}, v27
    s_and_b32 s{S_T}, s{S_W}, 1
    s_lshl_b32 s{S_T}, s{S_T}, 2
    v_or_b32 v25, s{S_T}, v24
    v_lshlrev_b32 v25, 1, v25
    v_and_b32 v26, 15, v1
    v_xor_b32 v25, v25, v26
    v_lshlrev_b32 v25, 4, v25
    v_lshl_add_u32 v25, v24, 13, v25
    s_lshl_b32 s{S_T}, s{S_W}, 16
    v_add_u32 v{V_WD}, s{S_T}, v25
    v_add_u32 v{V_WD+1}, {4*8192-1024}, v{V_WD}
    s_lshl_b32 s{S_CK}, s{S_I}, 18
    s_add_u32 s{S_CK}, s{S_CK}, s{S_T}
    s_lshl_b32 s{S_WC}, s{S_H}, 8
    s_mul_i32 s{S_AR}, s{S_W}, 24576
    s_add_u32 s{S_AR}, s{S_AR}, 65536
    s_lshl_b32 s{S_WL}, s{S_W}, 11
    s_add_u32 s{S_KA}, s{S_I}, s{S_H}
    s_and_b32 s{S_KA}, s{S_KA}, {int(opt('ROTK', '3'))}
    s_lshl_b32 s{S_KA}, s{S_KA}, 7
    s_mov_b32 s{S_KB}, s{S_KA}""".split('\n')
    b = f"""v_and_b32 v24, 15, v1
    v_lshrrev_b32 v25, 4, v1
    v_lshrrev_b32 v26, 1, v24
    v_xor_b32 v26, v26, v25
    v_lshlrev_b32 v26, 4, v26
    v_lshl_add_u32 v26, v24, 7, v26
    v_add_u32 v{V_AR}, s{S_AR}, v26
    v_xor_b32 v{V_AR+1}, 64, v{V_AR}
    v_bfe_u32 v26, v1, 2, 2
    v_lshl_add_u32 v27, v25, 3, v26
    v_and_b32 v28, 1, v25
    v_lshl_or_b32 v29, v28, 2, v26
    v_lshlrev_b32 v29, 5, v29
    v_lshl_add_u32 v29, v27, 8, v29
    v_and_b32 v30, 3, v1
    v_lshl_add_u32 v{V_TR}, v30, 3, v29
    @split
    v_lshrrev_b32 v25, 4, v1
    v_bfe_u32 v26, v1, 2, 2
    v_lshl_add_u32 v27, v25, 3, v26
    v_lshlrev_b32 v27, 7, v27
    v_and_b32 v24, 3, v1
    v_lshl_add_u32 v27, v24, 3, v27
    v_and_b32 v25, 1, v25
    v_lshrrev_b32 v26, 1, v26
    v_lshl_or_b32 v26, v25, 1, v26
    v_lshl_add_u32 v{V_TV}, v26, 5, v27
    v_xor_b32 v{V_TV+1}, 32, v{V_TV}
    v_xor_b32 v{V_TV+2}, 64, v{V_TV}
    v_xor_b32 v{V_TV+3}, 96, v{V_TV}
    v_lshrrev_b32 v26, 3, v1
    v_and_b32 v27, 2, v26
    v_and_b32 v24, 7, v1
    v_xor_b32 v27, v27, v24
    v_lshlrev_b32 v27, 4, v27
    v_lshl_add_u32 v27, v26, 13, v27
    s_lshl_b32 s{S_T}, s{S_W}, 17
    v_add_u32 v{V_WV}, s{S_T}, v27
    v_xor_b32 v27, 64, v{V_WV}
    v_add_u32 v{V_WV+1}, {8*8192-1024}, v27
    s_lshl_b32 s{S_T}, s{S_I}, 2
    s_add_u32 s{S_QS}, s{S_T}, s{S_W}
    s_sub_u32 s{S_QL}, s{S_W}, s{S_T}
    s_add_u32 s{S_QL}, s{S_QL}, 60
    s_lshl_b32 s{S_QL}, s{S_QL}, 15
    s_lshl_b32 s{S_QS}, s{S_QS}, 15
    s_mul_i32 s{S_KVS}, s{S_H}, {HS}
    s_lshl2_add_u32 s{S_T}, s{S_I}, s{S_W}
    s_mul_i32 s{S_T}, s{S_T}, {2*CS}
    s_add_u32 s{S_KVS}, s{S_KVS}, s{S_T}
    s_mov_b32 s{S_KS}, {KSCALE}
    s_mov_b32 s{S_AC}, {ASC}
    s_lshr_b32 s{S_TT}, s{S_X}, 1
    s_lshl_b32 s{S_TT}, s{S_TT}, 3
    s_add_u32 s{S_TT}, s{S_TT}, s{S_I}
    s_and_b32 s{S_OA}, s{S_H}, 7
    s_lshl_b32 s{S_AW}, s{S_OA}, 7
    s_mul_i32 s{S_T}, s{S_W}, {16*3072}
    s_add_u32 s{S_AW}, s{S_AW}, s{S_T}
    s_mul_i32 s{S_AL}, s{S_W}, 3072
    s_lshl_b32 s{S_T}, s{S_TT}, 16
    s_lshl_b32 s{S_KVO}, s{S_AL}, 3
    s_add_u32 s{S_T}, s{S_T}, s{S_KVO}
    s_sub_u32 s{S_AG}, s{S_T}, 16384
    s_cselect_b32 s{S_AG}, {OOB}, s{S_AG}
    s_sub_u32 s{S_AG+1}, s{S_T}, 8192
    s_cselect_b32 s{S_AG+1}, {OOB}, s{S_AG+1}
    s_mov_b32 s{S_AG+2}, s{S_T}
    s_cmp_eq_u32 s{S_W}, 3
    s_cselect_b32 s{S_AG+1}, {OOB}, s{S_AG+1}
    s_cselect_b32 s{S_AG+2}, {OOB}, s{S_AG+2}
    s_lshl_b32 s{S_OA}, s{S_OA}, 11
    s_lshl_b32 s{S_T}, s{S_TT}, 16
    s_add_u32 s{S_OA}, s{S_OA}, s{S_T}
    s_lshr_b32 s{S_T}, s{S_W}, 1
    s_lshl_b32 s{S_T}, s{S_T}, 10
    s_add_u32 s{S_OA}, s{S_OA}, s{S_T}
    s_add_u32 s{S_OA}, s{S_OA}, {WS_OA}""".split('\n')
    b = [x.strip() for x in b]
    k = b.index('@split')
    b1 = b[:k] + [f"v_xor_b32 v{V_TR+T}, {32*T}, v{V_TR}" for T in range(1, 8)]
    b2 = [x.replace(f"s{S_T},", "s100,").replace(f"s{S_T}", "s100") for x in b[k+1:]]
    return [x.strip() for x in a], b1, b2

def a_setup():
    r = f"""v_subrev_u32 v{V_AX}, s{S_AR}, v{V_AR}
    v_xor_b32 v{V_AX+1}, 64, v{V_AX}
    v_lshrrev_b32 v124, 3, v1
    v_and_b32 v125, 2, v124
    v_and_b32 v126, 7, v1
    v_xor_b32 v125, v125, v126
    v_lshlrev_b32 v125, 4, v125
    v_mul_u32_u24 v124, 3072, v124
    v_add_u32 v{V_WA}, v124, v125
    v_xor_b32 v125, 64, v125
    v_add_u32 v124, v124, v125
    v_add_u32 v{V_WT}, {8*3072-1024}, v124
    s_and_b32 s100, s{S_W}, 1
    s_lshl_b32 s101, s100, 6
    v_xor_b32 v{V_A3}, s101, v{V_AD}
    v_xor_b32 v{V_A3+1}, 64, v{V_A3}
    s_lshl_b32 s101, s100, 3
    v_add_u32 v{V_OD}, s101, v{V_L16}
    v_and_b32 v124, 0x7ff, v{V_TV}
    s_lshl_b32 s101, s{S_W}, 5
    v_xor_b32 v124, s101, v124
    v_lshrrev_b32 v125, 5, v1
    v_mul_u32_u24 v125, 24576, v125
    v_add_u32 v124, v124, v125""".split('\n')
    return [x.strip() for x in r], [f"v_add_u32 v{V_TA}, 0x10000, v124", f"v_add_u32 v{V_TA+1}, {65536 + 49152}, v124"]

def a_masks():
    b = [f"v_and_b32 v124, 15, v1\nv_lshrrev_b32 v125, 4, v1\nv_lshlrev_b32 v125, 2, v125\nv_sub_u32 v124, v124, v125\nv_mov_b32 v125, {NEG_BIG:#x}\n" +
         "\n".join(f"v_mov_b32 v{V_ONE+r}, 0x3f803f80" for r in range(4))]
    for r in range(4):
        b.append(f"""v_subrev_u32 v126, {r}, v124
        v_and_b32 v127, -15, v126
        v_cmp_ne_u32 vcc, 0, v127
        v_add_u32 v126, 16, v126
        v_and_b32 v127, -15, v126
        v_cndmask_b32 v{V_MC+r}, 0, v125, vcc
        v_cmp_ne_u32 vcc, 0, v127
        s_nop 1
        v_cndmask_b32 v{V_MP+r}, 0, v125, vcc""")
    b.append(f"s_cmp_eq_u32 s{S_TT}, 0\ns_cselect_b32 s100, 0, {0x7f7fffff}\ns_cselect_b32 s100, {NEG_BIG}, s100\n" + "\n".join(f"v_min_f32 v{V_MP1+r}, s100, v{V_MP+r}" for r in range(4)))
    return b

def a_attention():
    r = ["s_nop 4"]
    pk = lambda f, tb: AAC + (AACC(f, tb) - AAC) // 2
    for i in range(28): r.append(f"v_cvt_pk_bf16_f32 v{AAC+i}, v{AAC+2*i}, v{AAC+2*i+1}")
    SS = lambda i: 88 + i * 8
    M = 32; U = 36; OO = lambda i: 40 + i * 4
    r.append("s_nop 0")
    for i in range(4):
        mp = V_MP1 if i == 0 else V_MP
        r.append(f"v_mfma_f32_16x16x16_bf16 {vr(SS(i))}, {vr(pk(0, i), 2)}, {vr(pk(2, i+1), 2)}, {vr(mp)}")
        r.append(f"v_mfma_f32_16x16x16_bf16 {vr(SS(i)+4)}, {vr(pk(0, i+1), 2)}, {vr(pk(2, i+1), 2)}, {vr(V_MC)}")
    r.append("s_nop 5")
    for i in range(4):
        s0 = SS(i)
        r += [f"v_max3_f32 v{M+i}, v{s0}, v{s0+1}, v{s0+2}", f"v_max3_f32 v{M+i}, v{M+i}, v{s0+3}, v{s0+4}",
              f"v_max3_f32 v{M+i}, v{M+i}, v{s0+5}, v{s0+6}", f"v_max_f32 v{M+i}, v{M+i}, v{s0+7}", f"v_mov_b32 v{U+i}, v{M+i}"]
    for sw in ('32', '16'):
        r.append("s_nop 1")
        r += [f"v_permlane{sw}_swap_b32 v{M+i}, v{U+i}" for i in range(4)]
        for i in range(4):
            r.append(f"v_max_f32 v{M+i}, v{M+i}, v{U+i}")
            if sw == '32': r.append(f"v_mov_b32 v{U+i}, v{M+i}")
    r += [f"v_mul_f32 v{M+i}, s{S_AC}, v{M+i}" for i in range(4)]
    for i in range(4):
        r += [f"v_fma_f32 v{SS(i)+k}, v{SS(i)+k}, s{S_AC}, -v{M+i}" for k in range(8)]
        r += [f"v_exp_f32 v{SS(i)+k}, v{SS(i)+k}" for k in range(8)]
    for i in range(4):
        r += [f"v_cvt_pk_bf16_f32 v{SS(i)+k}, v{SS(i)+2*k}, v{SS(i)+2*k+1}" for k in range(4)]
    r.append("s_nop 1")
    for i in range(4):
        r.append(mfma(vr(SS(i) + 4), vr(V_ONE), vr(SS(i)), '0'))
        r.append(mfma(vr(OO(i)), vr(pk(1, i)), vr(SS(i)), '0'))
    r.append("s_nop 5")
    r += [f"v_rcp_f32 v{M+i}, v{SS(i)+4}" for i in range(4)]
    for i in range(4): r += [f"v_mul_f32 v{OO(i)+k}, v{M+i}, v{OO(i)+k}" for k in range(4)]
    for i in range(4):
        d = 88 + i * 2
        r += [f"v_cvt_pk_bf16_f32 v{d}, v{OO(i)}, v{OO(i)+1}", f"v_cvt_pk_bf16_f32 v{d+1}, v{OO(i)+2}, v{OO(i)+3}", f"s_add_u32 s{S_KVO}, s{S_OA}, {i*16384}",
              f"buffer_store_dwordx2 {vr(d, 2)}, v{V_OD}, {sr(R_WS)}, s{S_KVO} offen {ST} ; @STO"]
    return r

def touch(kind, R, n=0):
    if kind == 'head':
        r = ["v_bfe_u32 v14, v1, 1, 4", "v_lshlrev_b32 v14, 13, v14", "v_and_b32 v15, 1, v1", "v_lshl_add_u32 v14, v15, 7, v14",
             f"s_lshl2_add_u32 s100, s{S_I}, s{S_W}", "s_lshl_b32 s100, s100, 17", f"s_add_u32 s100, s100, s{S_WC}"]
    else:
        r = [f"v_min_u32 v14, {n-1}, v1", "v_lshlrev_b32 v14, 7, v14", f"s_lshl2_add_u32 s100, s2, s{S_W}", f"s_mul_i32 s100, s100, {n * 128}"]
    return r + [f"buffer_load_dword v3, v14, {sr(R)}, s100 offen ; @PF"]

def publish_nonce():
    return ["s_lshl_b32 s100, s2, 2", f"s_or_b32 s100, s100, s{S_W}", "s_cmp_lg_u32 s100, 0", "s_cbranch_scc1 L_nononce", "s_memrealtime s[100:101]", "s_waitcnt lgkmcnt(0)",
            "s_or_b32 s100, s100, 1", "v_mov_b32 v14, s100", "v_mov_b32 v15, 0", "s_mov_b64 exec, 1",
            f"buffer_store_dword v14, v15, {sr(R_X)}, 0 offen sc1 ; @skip", "s_mov_b64 exec, -1", "L_nononce:"]

def engine(hooks):
    a, b, b2 = setup()
    r = list(a) + ["s_waitcnt lgkmcnt(0)"]
    r += srd(R_A0, P_CKV, 2 << 20) + srd(R_W0, P_WUK, 4 << 20)
    for G in range(4):
        for sal, x in act_dma(G // 2, G % 2): r += sal + (["s_nop 0"] if sal else []) + [x]
        for sal, x in w_dma(G): r += sal + (["s_nop 0"] if sal else []) + [x]
    r += b
    b2 += srd(R_A1, P_XB, 2 << 20) + srd(R_W1, P_WUV, 4 << 20) + srd(R_WS, P_WS, WS_END) + srd(R_X, P_DBG, 256)
    r += ["@wait X0,W0", "s_barrier"] + stamp('go') + reads(0)
    hk = dict(hooks)
    def add(G, gp, lines): hk[('misc', G)] = hk.get(('misc', G), []) + [(gp + i, x) for i, x in enumerate(lines)]
    m = []
    for x in b2:
        if x.startswith('s_cselect'): m[-1] += '\n' + x
        else: m.append(x)
    b2 = m
    slots = [(G, gp) for G in range(2, 9) for gp in range(0, 32) if gp not in (3, 6, 9, 10, 12, 14, 15, 18, 21, 22, 24, 26, 27)]
    for x, (G, gp) in zip(b2, slots): hk[('seq', G)] = hk.get(('seq', G), []) + [(gp, x)]
    assert len(b2) <= len(slots)
    add(9, 30, ['\n'.join(publish_nonce())])
    add(11, 28, srd(R_W0, P_WQ, 4 << 20)[:2])
    add(13, 28, srd(R_A0, P_XA, 2 << 20)[:2])
    add(25, 28, srd(R_W1, P_WQKV, 1536 * 1024)[:3])
    if not opt('NOPF'):
        J = '\n'.join
        add(9, 28, [J(touch('head', R_W1))]); add(10, 28, [J(touch('lin', R_A1, 16))]); add(12, 28, [J(touch('head', R_W0))])
        t1, t2 = eval(opt('TA', '(29, 30)'))
        add(t1, 13, [J(touch('lin', R_W1, 12))]); add(t2, 13, [J(touch('lin', R_A0, 16))])
        if not opt('NOTWO'):
            add(42, 28, [J(srd(R_W0, P_WO, 4 << 20)[:2] + ["v_and_b32 v126, 31, v1", "v_lshlrev_b32 v126, 10, v126", f"s_lshl2_add_u32 s100, s{S_H}, s{S_W}", "s_lshl_b32 s100, s100, 15",
                         f"s_lshl_b32 s101, s{S_I}, 7", "s_add_u32 s100, s100, s101", f"buffer_load_dword v3, v126, {sr(R_W0)}, s100 offen ; @PF"])])
    if opt('TLBW'):
        J = '\n'.join
        add(9, 20, [J(["v_min_u32 v126, 39, v1", "v_lshlrev_b32 v126, 21, v126", f"buffer_load_dword v3, v126, {sr(R_WS)}, 0 offen ; @PF"])])
    a1, a2 = a_setup()
    for k, x in enumerate(a1): hk[('seq', 36 + k // 6)] = hk.get(('seq', 36 + k // 6), []) + [(20 + 2 * (k % 6), x)]
    hk[('seq', 41)] = hk.get(('seq', 41), []) + [(20, a2[0]), (22, a2[1])]
    lp = eval(opt('LOOP', '(-1,-1)')); drop = tuple(x for x in opt('DROP').split(',') if x)
    for G in range(NST):
        if G == lp[0]: r += stamp('l0') + ["s_mov_b32 s1, 12", "L_mb:"]
        st = step(G, hk if not lp[0] <= G <= lp[1] else {})
        if lp[0] <= G <= lp[1] and drop: st = [x for x in st if not x.startswith(drop)]
        r += st
        if G == lp[1]: r += ["s_sub_u32 s1, s1, 1", "s_cmp_lg_u32 s1, 0", "s_cbranch_scc1 L_mb"] + stamp('l1') + stamp_end(0) + ["s_endpgm"]
        r += stamp(f'g{G}')
    return r
```

```python
from common import *
import eng
from eng import V_L16, V_AD, S_AR, ST
V_OUT = 15; V_RR = 16
def ACC(T, tb): return 64 + (T * 4 + tb) * 4
def ACA(T, tb): return 192 + (T * 4 + tb) * 4
NW = 12; NC = 8
def WB(kk, T): return (kk % NW) * 16 + T * 4
def CX(kk, tb): return 128 + (kk % NC) * 16 + tb * 4
S_CB = 34; S_WB = 35; S_T = 37; S_GC = 40; S_GW = 41; S_ROT = 44; S_OAB = 45; S_WAB = 46; S_OUT = 47
R_OUT = R_A0
LD = opt('LD_POL', 'sc1')

def RX(i): return 128 + 16 * i
def relayout_loads():
    r = srd(R_W0, P_WO_A, 512 * 1024)[:3] + [f"s_and_b32 s100, s{S_H}, 7", "s_cmp_lg_u32 s100, 0", "s_cbranch_scc1 RL_a",
         f"s_lshr_b32 s100, s{S_H}, 1", f"s_add_u32 s100, s100, s{S_W}", "s_lshl_b32 s100, s100, 15", f"s_lshl_b32 s101, s{S_I}, 7", "s_add_u32 s100, s100, s101",
         f"s_lshl_b32 s101, s{S_W}, 14", "s_add_u32 m0, s101, 12288", "s_nop 0"]
    r += [f"buffer_load_dwordx4 v{V_AD+k}, {sr(R_W0)}, s100 offen offset:{k*1024} lds ; @skip" for k in range(4)]
    r += ["RL_a:"] + srd(R_W0, P_WO, 4 << 20)[:3]
    r += [f"s_lshl2_add_u32 s100, s{S_H}, s{S_W}", "s_lshl_b32 s100, s100, 15", f"s_lshl_b32 s101, s{S_I}, 7", "s_add_u32 s100, s100, s101", f"s_add_u32 m0, s{S_AR}, 6144", "s_nop 0"]
    r += [f"buffer_load_dwordx4 v{V_AD+k}, {sr(R_W0)}, s100 offen offset:{k*1024} lds ; @WO" for k in range(2)]
    r += [f"s_add_u32 m0, s{S_AR}, {8192 + 6144 - 2048}", "s_nop 0"]
    r += [f"buffer_load_dwordx4 v{V_AD+k}, {sr(R_W0)}, s100 offen offset:{k*1024} lds ; @WO" for k in range(2, 4)]
    return r
def relayout_reads():
    a = 124; V_X = 126
    r = [f"v_lshrrev_b32 v{a}, 2, v1", f"v_lshrrev_b32 v{a+1}, 3, v1", f"v_and_b32 v{V_X}, 3, v1", f"v_xor_b32 v{a+1}, v{a+1}, v{V_X}", f"v_lshlrev_b32 v{a+1}, 4, v{a+1}",
         f"v_lshl_add_u32 v{a+1}, v{a}, 7, v{a+1}", f"s_and_b32 s100, s{S_H}, 7", "s_cmp_lg_u32 s100, 0", "s_cbranch_scc1 RL_b",
         f"s_lshl_b32 s101, s{S_W}, 14", f"v_add_u32 v{a}, s101, v{a+1}", f"v_xor_b32 v{V_X}, 64, v{a}"]
    for T in range(4):
        for e in range(2):
            r.append(f"ds_read_b64_tr_b16 {vr(RX(4 + T) + 2*e, 2)}, v{a if T < 2 else V_X} offset:{12288 + e * 2048 + (T & 1) * 8}")
    r += ["RL_b:", f"v_add_u32 v{a}, s{S_AR}, v{a+1}", f"v_xor_b32 v{a+1}, 64, v{a}"]
    for T in range(4):
        for e in range(2):
            r.append(f"ds_read_b64_tr_b16 {vr(RX(T) + 2*e, 2)}, v{a + (T >> 1)} offset:{6144 + e * 8192 + (T & 1) * 8}")
    return r
def relayout_stores():
    r = [f"s_lshr_b32 s100, s{S_H}, 3", "s_lshl_b32 s100, s100, 2", f"s_lshr_b32 s101, s{S_I}, 1", "s_add_u32 s100, s100, s101", "s_lshl_b32 s100, s100, 3", f"s_and_b32 s101, s{S_H}, 7",
         "s_add_u32 s100, s100, s101", f"s_lshl2_add_u32 s100, s100, s{S_W}", f"s_and_b32 s101, s{S_I}, 1", "s_lshl1_add_u32 s100, s100, s101", "s_lshl_b32 s100, s100, 12", f"s_add_u32 s100, s100, {WS_WO}"]
    r += [f"buffer_store_dwordx4 {vr(RX(T))}, v{V_L16}, {sr(R_WS)}, s100 offen offset:{T*1024} {ST} ; @STW" for T in range(4)]
    r += [f"s_and_b32 s100, s{S_H}, 7", "s_cmp_lg_u32 s100, 0", "s_cbranch_scc1 RL_c",
          f"s_lshl_b32 s100, s{S_I}, 4", f"s_lshr_b32 s101, s{S_H}, 1", "s_add_u32 s100, s100, s101", f"s_add_u32 s100, s100, s{S_W}", "s_lshl_b32 s100, s100, 12", f"s_add_u32 s100, s100, {WS_WA}"]
    r += [f"buffer_store_dwordx4 {vr(RX(4 + T))}, v{V_L16}, {sr(R_WS)}, s100 offen offset:{T*1024} {ST} ; @skip" for T in range(4)]
    return r + ["RL_c:"]

V_PP = 96
V_CD = 4; V_WD = 13; V_CR = 8; V_WR = 12; V_PC = 6
def WFR(buf, e, T): return 128 + buf * 32 + e * 16 + T * 4
def CFR(buf, e, u): return 192 + buf * 32 + e * 16 + u * 4
def AW(k, T): return 64 + k * 16 + T * 4
def AC(k, tb): return 128 + k * 16 + tb * 4
S_Q = 32; S_TL = 33; S_MW = 36; S_XS = 38; S_XR = 39; S_OB = 42; S_MC = 43; S_CR = [48, 49, 50, 54]; S_WR = 44; S_CD = 1; S_LC = 51; S_LW = 52
def polls(): return poll_issue('OA', V_PP, 'PA') + poll_issue('WO', V_PP + 2, 'PA') + poll_issue('WA', V_PP + 4, 'PA')
def w_dma(p):
    return [([f"s_xor_b32 s{S_GW}, s{S_LW}, {p * 16384}", f"s_add_u32 s{S_GW}, s{S_GW}, s{S_WB}", f"s_add_u32 m0, s{S_MW}, {(p % 4) * 16384}"] if k == 0 else [],
             f"buffer_load_dwordx4 v{V_WD}, {sr(R_WS)}, s{S_GW} offen offset:{k*1024} {LD} lds ; @W{p}") for k in range(4)]
def c_dma(p):
    return [([f"s_xor_b32 s{S_GC}, s{S_LC}, {p * 2048}", f"s_add_u32 s{S_GC}, s{S_GC}, s{S_CB}", f"s_add_u32 m0, s{S_MC}, {(p % 4) * 16384}"] if k == 0 else [],
             f"buffer_load_dwordx4 v{V_CD + (k >> 1)}, {sr(R_WS)}, s{S_GC} offen offset:{k*1024} {LD} lds ; @C{p}") for k in range(4)]
def flat(items):
    r = []
    for sal, x in items: r += sal + (["s_nop 0"] if sal else []) + [x]
    return r
def rds(p):
    b = p & 1; o = (p % 4) * 16384
    r = []
    for T in range(4):
        r += [f"ds_read_b128 {vr(WFR(b, e, T))}, v{V_WR} offset:{o + e * 8192 + T * 1024}" for e in range(2)]
        r += [f"ds_read_b128 {vr(CFR(b, e, T))}, v{V_CR + T} offset:{o + e * 1024}" for e in range(2)]
    return r
def a_loads():
    r = []
    for k in range(4):
        r += [([f"s_add_u32 s{S_T}, s{S_WAB}, {k * 4096}"] if T == 0 else [], f"buffer_load_dwordx4 {ar(AW(k, T))}, v{V_L16}, {sr(R_WS)}, s{S_T} offen offset:{T*1024} {LD} ; @A{k}") for T in range(4)]
        r += [([f"s_add_u32 s{S_T}, s{S_OAB}, {tb * 16384}"], f"buffer_load_dwordx4 {ar(AC(k, tb))}, v{V_L16}, {sr(R_WS)}, s{S_T} offen offset:{k*1024} {LD} ; @A{k}") for tb in range(4)]
    return r

def scalars():
    r = f"""s_lshr_b32 s{S_Q}, s{S_X}, 1
    s_sub_u32 s{S_TL}, 15, s{S_I}
    s_bitcmp1_b32 s{S_X}, 0
    s_cselect_b32 s{S_TL}, s{S_TL}, s{S_I}
    s_bitcmp1_b32 s{S_I}, 0
    s_cselect_b32 s{S_WR}, 5, 1
    s_cselect_b32 s{S_GC}, 1, 5
    s_lshl_b32 s{S_WR}, s{S_WR}, 14
    s_lshl_b32 s{S_GC}, s{S_GC}, 14
    s_add_u32 s{S_MW}, s{S_WR}, s0
    s_add_u32 s{S_MC}, s{S_GC}, s0
    s_lshr_b32 s{S_T}, s{S_W}, 1
    s_lshl_b32 s{S_OB}, s{S_T}, 17
    s_lshl_b32 s{S_T}, s{S_T}, 13
    s_add_u32 s{S_GC}, s{S_GC}, s{S_T}
    s_and_b32 s{S_GW}, s{S_W}, 1
    s_lshl_b32 s{S_T}, s{S_GW}, 7
    s_add_u32 s{S_OB}, s{S_OB}, s{S_T}
    s_lshl_b32 s{S_T}, s{S_GW}, 12
    s_add_u32 s{S_WR}, s{S_WR}, s{S_T}""".split('\n')
    for u in range(4):
        r += [f"s_add_u32 s{S_T}, s{S_Q}, {u}", f"s_and_b32 s{S_T}, s{S_T}, 3", f"s_lshl_b32 s{S_T}, s{S_T}, 11", f"s_add_u32 s{S_CR[u]}, s{S_T}, s{S_GC}"]
    r += f"""s_and_b32 s{S_T}, s{S_H}, 3
    s_lshl2_add_u32 s{S_WB}, s{S_Q}, s{S_T}
    s_lshl_b32 s{S_WB}, s{S_WB}, 18
    s_add_u32 s{S_WB}, s{S_WB}, {WS_WO}
    s_lshl2_add_u32 s{S_XS}, s{S_TL}, s{S_T}
    s_mul_i32 s{S_XS}, s{S_XS}, {XG}
    s_add_u32 s{S_XS}, s{S_XS}, s0
    s_add_u32 s{S_XS}, s{S_XS}, {WS_XB}
    s_lshl_b32 s{S_T}, s{S_T}, 8
    s_add_u32 s{S_OB}, s{S_OB}, s{S_T}
    s_lshl_b32 s{S_T}, s{S_Q}, 16
    s_add_u32 s{S_XR}, s{S_XS}, s{S_T}
    s_lshl_b32 s{S_T}, s{S_Q}, 15
    s_add_u32 s{S_OB}, s{S_OB}, s{S_T}
    s_mul_i32 s{S_CB}, s{S_TL}, {8*QS}
    s_add_u32 s{S_CB}, s{S_CB}, s{S_T}
    s_add_u32 s{S_CB}, s{S_CB}, {WS_C}
    s_lshl_b32 s{S_T}, s{S_TL}, 18
    s_add_u32 s{S_OB}, s{S_OB}, s{S_T}
    s_add_u32 s{S_OB}, s{S_OB}, 1024
    s_and_b32 s{S_LC}, s{S_H}, 7
    s_lshl_b32 s{S_LW}, s{S_LC}, 15
    s_lshl_b32 s{S_LC}, s{S_LC}, 12
    s_mul_i32 s{S_CD}, s{S_W}, {2*QS}
    s_lshl_b32 s{S_T}, s{S_W}, 14
    s_lshl_b32 s{S_WAB}, s{S_I}, 16
    s_add_u32 s{S_WAB}, s{S_WAB}, s{S_T}
    s_add_u32 s{S_WAB}, s{S_WAB}, {WS_WA}
    s_lshl_b32 s{S_OAB}, s{S_H}, 16
    s_add_u32 s{S_OAB}, s{S_OAB}, s0
    s_add_u32 s{S_OAB}, s{S_OAB}, {WS_OA}
    s_lshl_b32 s{S_OUT}, s{S_H}, 17
    s_lshl_b32 s{S_T}, s{S_W}, 15
    s_add_u32 s{S_OUT}, s{S_OUT}, s{S_T}
    s_lshl_b32 s{S_T}, s{S_I}, 7
    s_add_u32 s{S_OUT}, s{S_OUT}, s{S_T}""".split('\n')
    return [x.strip() for x in r] + srd(R_OUT, P_OUT, 0 if opt('NOOUT') else 4 << 20)
def checks():
    r = ["s_waitcnt vmcnt(4)"]
    for k in range(3): r += poll_check(V_PP + 2 * k, S_T)
    return r
def w_first(): return [x for p in range(4) for x in w_dma(p)]
def pre_join():
    r = [f"v_add_u32 v{V_CD}, s{S_CD}, v{V_L16}", f"v_add_u32 v{V_CD+1}, {QS - 2048}, v{V_CD}", f"v_add_u32 v{V_WR}, s{S_WR}, v{V_L16}"]
    r += [f"v_add_u32 v{V_CR+u}, s{S_CR[u]}, v{V_L16}" for u in range(4)]
    r += [f"s_lshl_b32 s{S_T}, s{S_W}, 14", f"v_add_u32 v{V_RR}, s{S_T}, v{V_L16}", f"v_and_b32 v{V_OUT}, 15, v1", f"v_lshlrev_b32 v{V_OUT}, 11, v{V_OUT}", "v_lshrrev_b32 v20, 4, v1",
          f"v_lshl_add_u32 v{V_OUT}, v20, 4, v{V_OUT}"]
    return r

def outproj():
    r = flat(c_dma(0) + c_dma(1)) + poll_issue('CTX1', V_PC, 'PC')
    r += stamp('a2') + ["@wait PC"] + poll_check(V_PC, S_T) + stamp('pc')
    r += flat(c_dma(2) + c_dma(3)) + ["s_barrier"] + stamp('op1') + rds(0)
    al = a_loads()
    for p in range(16):
        b = p & 1
        mf = []
        for T in range(4):
            for u in range(4):
                for e in range(2):
                    mf.append(mfma(vr(ACC(T, u)), vr(WFR(b, e, T)), vr(CFR(b, e, u)), vr(ACC(T, u)) if (p or e) else '0'))
        g = Gaps(mf)
        g.put(-1, "s_waitcnt lgkmcnt(0)")
        if p + 1 < 16:
            g.front(0, f"@wait C{p+1},W{p+1}", "s_barrier")
            rg = [1, 2, 3, 5, 6, 8, 9, 11, 12, 14, 15, 17, 18, 20, 21, 23]
            for x, gp in zip(rds(p + 1), rg): g.put(gp, x)
        dl = (c_dma(p + 4) + w_dma(p + 4)) if p + 4 < 16 else []
        na = eval(opt('NA', '{12: 9, 13: 9, 14: 9, 15: 5}')).get(p, 0)
        dl = dl + [al.pop(0) for _ in range(na)]
        for (sal, x), gp in zip(dl, [4, 7, 10, 13, 16, 19, 22, 25, 28, 30]):
            for k, y in enumerate(sal): g.front(gp - len(sal) + k, y)
            g.put(gp, x)
        if p == 2: g.put(28, *poll_issue('CTX2', V_PC, 'PC2'))
        if p == 4: g.put(0, "@wait PC2", *poll_check(V_PC, S_T))
        if p == 15: g.put(20, *poll_issue('XB', V_PC, 'PX'))
        r += g.lines() + stamp(f'p{p}')
    assert not al
    xs = []
    for d in range(1, 4):
        xs += [f"s_add_u32 s{S_T}, s{S_Q}, {d}", f"s_and_b32 s{S_T}, s{S_T}, 3", f"s_lshl_b32 s{S_T}, s{S_T}, 16", f"s_add_u32 s{S_T}, s{S_T}, s{S_XS}", f"s_add_u32 s{S_T}, s{S_T}, {d * 16384}"]
        for h in range(2):
            pk = 208 + d * 8 + h * 4
            xs += [f"v_cvt_pk_bf16_f32 v{pk + i}, v{ACC(2 * h + (i >> 1), d) + 2 * (i & 1)}, v{ACC(2 * h + (i >> 1), d) + 2 * (i & 1) + 1}" for i in range(4)]
            xs += [f"buffer_store_dwordx4 {vr(pk)}, v{V_L16}, {sr(R_WS)}, s{S_T} offen offset:{h*1024} {ST}"]
    xl = []
    for d in range(1, 4):
        xl += [f"s_add_u32 s{S_T}, s{S_XR}, {d * 16384}"]
        xl += [f"buffer_load_dwordx4 {vr(24 + d * 8 + h * 4)}, v{V_L16}, {sr(R_WS)}, s{S_T} offen offset:{h*1024} {LD}" for h in range(2)]
    g = Gaps([mfma(ar(ACA(T, tb)), ar(AW(k, T)), ar(AC(k, tb)), ar(ACA(T, tb)) if k else '0') for k in range(4) for T in range(4) for tb in range(4)])
    for k in range(16): g.put(k, f"v_mov_b32 v{192 + k}, v{ACC(k >> 2, 0) + (k & 3)}")
    g.put(16, "v_mov_b32 v30, 0x3f80", "v_mov_b32 v31, 0x3f800000")
    r += stamp('opl') + ["s_nop 4"] + xs + ["s_waitcnt vmcnt(6)", f"v_cmp_ne_u32 vcc, s{S_NON}, v{V_PC}", f"s_mov_b64 s[{S_GC}:{S_GC+1}], vcc", "s_cbranch_vccnz OP_wx"]
    gl = g.lines(); cut = [k for k, x in enumerate(gl) if 'mfma' in x][int(opt('A2CUT', '24'))]
    r += xl + ["OP_wx:"] + gl[:cut] + [f"s_cmp_eq_u64 s[{S_GC}:{S_GC+1}], 0 ; @opx", "s_cbranch_scc1 OP_w12", "s_waitcnt vmcnt(0)", "OP_w12:", "s_waitcnt vmcnt(6)"]
    r += stamp('xs') + signal('XB', 20) + gl[cut:] + ["s_barrier", "s_nop 4"]
    wr = [f"ds_write_b128 v{V_WD}, {ar(ACA(T, tb))} offset:{tb * 16384 + T * 1024}" for tb in range(4) for T in range(4)]
    r += wr[:8] + [f"buffer_load_dword v{V_PC}, v{V_PC+1}, {sr(R_WS)}, 0 offen sc1"] + wr[8:]
    r += ["s_waitcnt lgkmcnt(0)", "s_barrier"]
    r += [f"ds_read_b128 {vr(128 + (s * 4 + T) * 4)}, v{V_RR} offset:{s * 4096 + T * 1024}" for s in range(4) for T in range(4)]
    r += ["s_waitcnt vmcnt(0)", f"s_cmp_eq_u64 s[{S_GC}:{S_GC+1}], 0 ; @opx", "s_cbranch_scc1 OP_fin"]
    r += poll_check(V_PC, S_T) + stamp('px') + xl
    r += ["OP_fin:", "s_waitcnt lgkmcnt(0)"] + red(128, S_OUT) + stamp('ar') + ["s_waitcnt vmcnt(2)"] + stamp('xl')
    r += [f"v_dot2c_f32_bf16 v{192 + i}, v{24 + d * 8 + (i >> 1)}, v{30 + (i & 1)}" for d in range(1, 4) for i in range(16)] + ["s_nop 2"] + red(192, S_OB)[48:]
    return [x.strip() for x in r]
def tail_blocks(): return ["OP_l1:", "s_branch OP_wx"]

def red(b, so):
    r = []
    for i in range(16): r += [f"v_add_f32 v{b+i}, v{b+i}, v{b+16+i}", f"v_add_f32 v{b+32+i}, v{b+32+i}, v{b+48+i}"]
    r += [f"v_add_f32 v{b+i}, v{b+i}, v{b+32+i}" for i in range(16)]
    r += [f"v_cvt_pk_bf16_f32 v{b+i}, v{b+2*i}, v{b+2*i+1}" for i in range(8)]
    r += [f"buffer_store_dwordx4 {vr(b + 4*p)}, v{V_OUT}, {sr(R_OUT)}, s{so} offen offset:{p*64} {opt('OUTST')}" for p in range(2)]
    return r
```

```python
from common import *
KSCALE = f2u(math.log2(math.e) / math.sqrt(128.0))
ASC = f2u(0.25 * math.log2(math.e))
V_L16 = 2; V_AD = 4; V_WD = 8; V_WV = 10; V_AR = 12
V_TR = 16; V_PK = 24; V_TV = 28
def WF(buf, T): return 32 + buf * 32 + T * 4
def WFV(buf, T): return 32 + buf * 16 + T * 4
def WFA(buf, f): return 32 + buf * 12 + f * 4
AAC = 60
def XF(buf, tb): return buf * 20 + tb * 4
def XP(tb, ks): return (ks * 4 + tb) * 4
V_MP = 16; V_MC = 20; V_MP1 = 28; V_ONE = 56
V_WA = 116; V_WT = 117; V_AX = 118; V_A3 = 120; V_OD = 122; V_TA = 8
ACCV = 128
def VAC(hf, T, tb): return (64 if hf == 0 else 128) + (T * 4 + tb) * 4
def QF(b, s): return 64 + (b * 4 + s) * 4
S_CK = 32; S_QL = 33; S_QS = 34; S_KA = 35; S_KW = 36; S_WC = 37; S_AR = 38; S_WL = 39
S_AG = 40; S_AL = 43; S_AW = 44; S_KB = 45; S_KVS = 46; S_T = 47; S_T2 = 48; S_T3 = 49; S_KS = 50; S_AC = 51; S_OA = 52; S_TT = 53; S_KVO = 54
PASSES = [('K', None), ('V', None), ('Q', None), ('A', None)]
NST = 64
ST = 'sc1'
ROT = not opt('NOROT')
def ptype(G): return PASSES[G // 16][0]

S_TK = 1; S_TQ = 32
def adv(s, j, t):
    if t in 'KV' and j < 2: return [f"s_mov_b32 s{s}, {128 * j}"]
    return [f"s_bfe_u32 s{s}, s{S_TK if t in 'KV' else S_TQ}, {4 * j + (3 << 16)}", f"s_lshl_b32 s{s}, s{s}, 7"]

def act_dma(P, half):
    t = ptype(2 * P); base = (AP(P) % 3) * 8192
    pre = adv(S_KA, P % 8, t) if half == 0 else []
    if t == 'A':
        r = []
        for k in range(3 * half, 3 * half + 3):
            sect, j = k >> 1, k & 1
            sal = []
            if k == 0: sal += pre + [f"s_mul_i32 s{S_T2}, s{S_KA}, 1536", f"s_add_u32 s{S_T2}, s{S_T2}, s{S_AW}"]
            if j == 0 or k == 3: sal += [f"s_add_u32 s{S_T}, s{S_T2}, {sect * 1024}", f"s_add_u32 m0, s{S_AR}, {base + sect * 2048}"]
            r.append((sal, f"buffer_load_dwordx4 v{V_WA if j == 0 else V_WT}, {sr(R_W1)}, s{S_T} offen offset:{j*1024} lds ; @X{P}"))
        return r
    R = R_A1 if t == 'Q' else R_A0
    src = (S_QS if half else S_QL) if t == 'Q' else S_CK
    sal = pre + [f"s_add_u32 s{S_T}, s{src}, s{S_KA}"]
    if t != 'Q' and half: sal += [f"s_add_u32 s{S_T}, s{S_T}, 32768"]
    sal += [f"s_add_u32 m0, s{S_AR}, {base + half * 4096}"]
    return [(sal if k == 0 else [], f"buffer_load_dwordx4 v{V_AD+k}, {sr(R)}, s{S_T} offen offset:{k*1024} lds ; @X{P}") for k in range(4)]

def w_dma(G):
    t = ptype(G); tag = f"W{G//2}"
    pre = adv(S_KB, (G // 2) % 8, t) if G % 2 == 0 else []
    if t == 'V':
        sal = adv(S_KB, G % 8, t) + [f"s_lshl_b32 s{S_KW}, s{S_KB}, 12", f"s_add_u32 s{S_KW}, s{S_KW}, s{S_WC}"] + ([f"s_add_u32 s{S_KW}, s{S_KW}, 128"] if G >= 24 else [])
        sal += [f"s_add_u32 m0, s{S_WL}, {(G % 8) * 8192}"]
        return [(sal, f"buffer_load_dwordx4 v{V_WV}, {sr(R_W1)}, s{S_KW} offen lds ; @{tag}"),
                ([], f"buffer_load_dwordx4 v{V_WV+1}, {sr(R_W1)}, s{S_KW} offen offset:1024 lds ; @{tag}")]
    if t != 'A':
        R = R_W0
        sal = pre + ([f"s_lshl_b32 s{S_KW}, s{S_KB}, 12", f"s_add_u32 s{S_KW}, s{S_KW}, s{S_WC}"] if G % 2 == 0 else [f"s_add_u32 s{S_KW}, s{S_KW}, 262144"])
        sal += [f"s_add_u32 m0, s{S_WL}, {(G % 8) * 8192}"]
        return [(sal, f"buffer_load_dwordx4 v{V_WD}, {sr(R)}, s{S_KW} offen lds ; @{tag}"),
                ([], f"buffer_load_dwordx4 v{V_WD+1}, {sr(R)}, s{S_KW} offen offset:1024 lds ; @{tag}")]
    r = []
    for k in ((0, 1) if G % 2 == 0 else (2,)):
        r.append(((pre if k == 0 else []) + [f"s_add_u32 s{S_T3}, s{S_AG+k}, s{S_KB}", f"s_add_u32 m0, s{S_AL}, {((G // 2) % 4) * 16384 + k * 1024}"],
                  f"buffer_load_dwordx4 v{V_A3 + (k & 1)}, {sr(R_A0)}, s{S_T3} offen lds ; @{tag}"))
    return r

def AP(P): return P if P < 8 else P - 8
def vreads(G, e2):
    return [f"ds_read_b64_tr_b16 {vr(WFV(e2, T) + 2*e, 2)}, v{V_TV+T} offset:{(G % 8) * 8192 + e2 * 4096 + e * 512}" for T in range(4) for e in range(2)]
def reads(G):
    t = ptype(G); buf = G & 1; P = G // 2
    if t == 'A':
        r = [f"ds_read_b128 {ar(XF(buf, tb))}, v{V_AX + (G & 1)} offset:{(P % 4) * 16384 + tb * 2048}" for tb in range(5)]
        for f, sect in enumerate((1, 2, 0)):
            r += [f"ds_read_b64_tr_b16 {vr(WFA(buf, f) + 2*e, 2)}, v{V_TA + (G & 1)} offset:{(AP(P) % 3) * 8192 + sect * 2048 + e * 512}" for e in range(2)]
        return r
    if t == 'V': return vreads(G, 0)
    r = [f"ds_read_b128 {ar(XP(tb, G) if t == 'K' else XF(buf, tb))}, v{V_AR + (G & 1)} offset:{(AP(P) % 3) * 8192 + tb * 2048}" for tb in range(4)]
    for T in range(8):
        r += [f"ds_read_b64_tr_b16 {vr(WF(buf, T) + 2*e, 2)}, v{V_TR+T} offset:{(G % 8) * 8192 + e * 1024}" for e in range(2)]
    return r

def AACC(f, tb): return AAC + (f * 5 + tb - (1 if f == 2 else 0)) * 4
def mfmas(G):
    t = ptype(G); ks = G % 16; buf = G & 1; mf = []
    if t == 'A':
        for f in range(3):
            for tb in range(1 if f == 2 else 0, 5):
                d = vr(AACC(f, tb)); c = d if ks else '0'
                if f == 1: mf.append(mfma(d, ar(XF(buf, tb)), vr(WFA(buf, f)), c))
                else: mf.append(mfma(d, vr(WFA(buf, f)), ar(XF(buf, tb)), c))
        return mf
    if t == 'V':
        hf = ks >> 3
        for e2 in range(2):
            kk = 2 * (ks & 7) + e2
            for T in range(4):
                for tb in range(4):
                    d = vr(VAC(hf, T, tb)); mf.append(mfma(d, ar(XP(tb, kk)), vr(WFV(e2, T)), d if kk else '0'))
        return mf
    for T in range(8):
        for tb in range(4):
            d = (ar if t == 'Q' else vr)(ACCV + (T * 4 + tb) * 4); c = d if ks else '0'
            mf.append(mfma(d, vr(WF(buf, T)), ar(XP(tb, ks) if t == 'K' else XF(buf, tb)), c))
    return mf

def drain(dt, k):
    pk = V_PK
    if dt == 'Z': return [f"v_mov_b32 v{k+i}, 0" for i in range(4)]
    if dt == 'K':
        s, tb = k >> 2, k & 3
        lo = ACCV + ((2 * s) * 4 + tb) * 4; hi = lo + 16
        va = [f"v_mul_f32 v{r}, s{S_KS}, v{r}" for r in list(range(lo, lo + 4)) + list(range(hi, hi + 4))]
        src = [lo, lo + 2, hi, hi + 2]
        off = (tb >> 1) * CS + ((tb & 1) * 4 + s) * 1024
    elif dt == 'V':
        hf, T, p = k >> 3, (k >> 1) & 3, k & 1
        lo = VAC(hf, T, 2 * p); va = []
        src = [lo + 2 * r for r in range(4)]
        off = (p + 1) * CS + 8192 + (hf * 4 + T) * 1024
    else:
        tb, s = k >> 2, k & 3
        va = []
        for h in range(2):
            a = ACCV + ((2 * s + h) * 4 + tb) * 4
            va += [f"v_accvgpr_read_b32 v{pk+i}, a{a+i}" for i in range(4)] + [f"v_cvt_pk_bf16_f32 v{pk+2*i}, v{pk+2*i}, v{pk+2*i+1}" for i in range(2)]
            va += [f"v_accvgpr_write_b32 a{QF(tb, s)+2*h+i}, v{pk+2*i}" for i in range(2)]
        return va
    va += [f"v_cvt_pk_bf16_f32 v{pk+i}, v{x}, v{x+1}" for i, x in enumerate(src)]
    if opt('NOKVST'): return va
    return va + [f"s_add_u32 s{S_KVO}, s{S_KVS}, {off}", f"buffer_store_dwordx4 {vr(pk)}, v{V_L16}, {sr(R_WS)}, s{S_KVO} offen {opt('KVST', ST)} ; @ST{dt}"]

def drain_plan():
    d = {G: [] for G in range(NST)}
    if opt('DP', '2') == '2':
        for G in range(16, 24): d[G] = [('K', G - 16)]
        for G in range(24, 31): d[G] = [('V', G - 23)]
        d[24] = [('V', 0), ('V', 1)]; d[31] = [('K', 8)]
        for G in range(32, 40): d[G] = [('V', G - 24)]
        for G in range(40, 47): d[G] = [('K', G - 31)]
        for k in range(8, 16):
            lo = ACCV + 32 * (k >> 2) + 4 * (k & 3); G = 32 if k == 8 else k + 32
            d[G] += [('Z', lo), ('Z', lo + 16)]
        for G in range(40, 48): d[G] += [('Z', 128 + 8 * (G - 40)), ('Z', 132 + 8 * (G - 40))]
        for G in range(48, 64): d[G] = [('Q', G - 48)]
        for G in range(58, 62): d[G] += [('Z', ACCV + 32 * (G - 58)), ('Z', ACCV + 32 * (G - 58) + 16)]
        return d
    q = [('K', k) for k in range(12)]
    for G in range(16, 24): d[G] = [q.pop(0) for _ in range(1 + G % 2)]
    q = [('V', k) for k in range(8)] + [('K', k) for k in range(12, 16)]
    for G in range(24, 32): d[G] = [q.pop(0) for _ in range(2 - G % 2 if G < 30 else 1 + (G == 30) * 2 - (G == 31))]
    assert not q, q
    for G in range(32, 40): d[G] = [('V', 8 + G - 32), ('Z', 192 + 8 * (G - 32)), ('Z', 196 + 8 * (G - 32))]
    for G in range(40, 48): d[G] = [('Z', 128 + 8 * (G - 40)), ('Z', 132 + 8 * (G - 40))]
    for G in range(48, 64): d[G] = [('Q', G - 48)]
    for G in range(58, 62): d[G] += [('Z', ACCV + 32 * (G - 58)), ('Z', ACCV + 32 * (G - 58) + 16)]
    return d
DRAIN = drain_plan()

def dma_plan():
    plan = {0: [('A', 2, 0), ('A', 2, 1)], 1: [('W', 4), ('W', 5), ('A', 3, 0)], 2: [('A', 3, 1), ('W', 6), ('W', 7)], 3: [('A', 4, 0), ('A', 4, 1)],
            4: [('W', 8), ('W', 9), ('W', 10), ('W', 11)]}
    for G in range(5, NST):
        P = (G + 5) // 2
        if G % 2: plan[G] = [('A', P, h) for h in range(2)] if (P < 8 or 19 <= P < NST // 2) else []
        else: plan[G] = [('W', k) for k in (G + 6, G + 7) if k < NST]
    for k, G in enumerate(eval(opt('XBS', '(17, 19, 21, 23, 25, 27)'))): plan[G] = [('A', 16 + k // 2, k % 2)]
    return plan
PLAN = dma_plan()

def step(G, hooks):
    t = ptype(G)
    g = Gaps(mfmas(G)); n = len(g.mf)
    nxt = G + 1 < NST
    odd = G % 2 == 1
    rd = reads(G + 1) if nxt else []
    dl = []
    for it in PLAN[G]: dl += act_dma(it[1], it[2]) if it[0] == 'A' else w_dma(it[1])
    dl += hooks.get(('dma', G), [])
    tags = ([f"X{(G+1)//2}", f"W{(G+1)//2}"] if odd and nxt else []) + hooks.get(('wait', G), [])
    full = [f"@wait {','.join(tags)} lgkmcnt(0)" if tags else "s_waitcnt lgkmcnt(0)"] + (["s_barrier"] if odd and nxt else [])
    v0 = 0
    if t == 'V':
        g.put(-1, "s_waitcnt lgkmcnt(0)")
        dgap = [4, 10, 20, 26] if len(dl) <= 4 else [4, 7, 10, 13, 19, 22, 25, 28]
        fr = [x for x in range(32) if x not in dgap[:len(dl)]]
        for x, gp in zip(vreads(G, 1), [x for x in fr if x < 12]): g.put(gp, x)
        g.front(15, *full)
        late = [x for x in fr if x >= 16]
        for k, x in enumerate(rd): g.put(31 if k >= 18 else late[k * len(late) // max(len(rd), len(late))] if len(rd) > len(late) else late[k], x)
        v0 = 2
    elif t != 'A':
        g.put(-1, "s_waitcnt lgkmcnt(12)")
        dgap = [6, 10, 14, 18, 22, 26] if len(dl) <= 6 else [6, 9, 12, 15, 18, 21, 24, 27]
        early = not odd and len(rd) == 20
        if not early: g.front(3, *full)
        rgap = [x for x in range(0 if early else 4, 32) if x not in dgap[:len(dl)]]
        for x, gp in zip(rd, rgap): g.put(gp, x)
        if early:
            n7 = sum(1 for x in rgap[:20] if x < 7)
            g.front(7, *([f"@wait {','.join(tags)} lgkmcnt({n7})"] if tags else [f"s_waitcnt lgkmcnt({n7})"]))
        v0 = 2
    else:
        g.put(-1, "s_waitcnt lgkmcnt(4)")
        g.front(1, *full)
        dgap = [3, 5, 7, 9, 11, 13] if len(dl) <= 6 else [3, 4, 6, 7, 9, 10, 12, 13]
        for x, gp in zip(rd, range(2, 13)): g.put(gp, x)
    assert len(dl) <= len(dgap)
    for (sal, x), gp in zip(dl, dgap):
        for k, y in enumerate(sal):
            q = max(gp - len(sal) + k, 0)
            pos = max([i + 1 for i, z in enumerate(g.g[q]) if z.startswith('buffer_load') or z.startswith('s_') or z.startswith('@')] + [0])
            g.g[q].insert(pos, y)
        g.put(gp, x)
    load = lambda q: sum(1 for z in g.g[q] if not z.startswith('s_') and not z.startswith('@'))
    seq = [x for dt, k in DRAIN[G] for x in drain(dt, k)]
    cap = 2 if t != 'A' else max(2, -(-(len(seq) + 20) // n))
    gp = v0
    for k, x in enumerate(seq):
        if x.startswith('s_'): g.front(gp, x); continue
        if x.startswith('buffer'):
            q = gp + 1
            while q < n - 1 and load(q) > 0 and q < gp + 4: q += 1
            gp = min(q, n - 1); g.put(gp, x); gp = min(gp + 1, n - 1); continue
        while gp < n - 1 and load(gp) >= cap: gp += 1
        g.put(gp, x)
    for gp, x in hooks.get(('seq', G), []): g.front(gp, x) if x.startswith('s_') else g.put(gp, x)
    for gp, x in hooks.get(('misc', G), []): g.front(gp, x) if x.startswith('s_') and '\n' not in x else g.put(gp, x)
    return g.lines()

def setup():
    a = f"""v_and_b32 v1, 63, v0
    v_lshlrev_b32 v{V_L16}, 4, v1
    v_lshrrev_b32 v26, 3, v1
    v_lshrrev_b32 v24, 4, v1
    v_and_b32 v28, 7, v1
    v_xor_b32 v27, v24, v28
    v_lshlrev_b32 v27, 4, v27
    v_lshl_add_u32 v{V_AD}, v26, 10, v27
    v_xor_b32 v27, 64, v{V_AD}
    v_add_u32 v{V_AD+1}, {8192-1024}, v27
    v_add_u32 v{V_AD+2}, {2*(8192-1024)}, v{V_AD}
    v_add_u32 v{V_AD+3}, {3*(8192-1024)}, v27
    s_and_b32 s{S_T}, s{S_W}, 1
    s_lshl_b32 s{S_T}, s{S_T}, 2
    v_or_b32 v25, s{S_T}, v24
    v_lshlrev_b32 v25, 1, v25
    v_and_b32 v26, 15, v1
    v_xor_b32 v25, v25, v26
    v_lshlrev_b32 v25, 4, v25
    v_lshl_add_u32 v25, v24, 13, v25
    s_lshl_b32 s{S_T}, s{S_W}, 16
    v_add_u32 v{V_WD}, s{S_T}, v25
    v_add_u32 v{V_WD+1}, {4*8192-1024}, v{V_WD}
    s_lshl_b32 s{S_CK}, s{S_I}, 18
    s_add_u32 s{S_CK}, s{S_CK}, s{S_T}
    s_lshl_b32 s{S_WC}, s{S_H}, 8
    s_mul_i32 s{S_AR}, s{S_W}, 24576
    s_add_u32 s{S_AR}, s{S_AR}, 65536
    s_lshl_b32 s{S_WL}, s{S_W}, 11""".split('\n')
    b = f"""s_add_u32 s{S_T}, s{S_I}, s{S_H}
    s_and_b32 s{S_T2}, s{S_T}, {int(opt('ROTK', '3'))}
    s_lshl_b32 s{S_T2}, s{S_T2}, 2
    s_lshr_b32 s{S_TK}, 0x765432, s{S_T2}
    s_sub_u32 s{S_T2}, 24, s{S_T2}
    s_lshl_b32 s{S_T2}, 0x765432, s{S_T2}
    s_or_b32 s{S_TK}, s{S_TK}, s{S_T2}
    s_lshl_b32 s{S_TK}, s{S_TK}, 8
    v_and_b32 v24, 15, v1
    v_lshrrev_b32 v25, 4, v1
    v_lshrrev_b32 v26, 1, v24
    v_xor_b32 v26, v26, v25
    v_lshlrev_b32 v26, 4, v26
    v_lshl_add_u32 v26, v24, 7, v26
    v_add_u32 v{V_AR}, s{S_AR}, v26
    v_xor_b32 v{V_AR+1}, 64, v{V_AR}
    v_bfe_u32 v26, v1, 2, 2
    v_lshl_add_u32 v27, v25, 3, v26
    v_and_b32 v28, 1, v25
    v_lshl_or_b32 v29, v28, 2, v26
    v_lshlrev_b32 v29, 5, v29
    v_lshl_add_u32 v29, v27, 8, v29
    v_and_b32 v30, 3, v1
    v_lshl_add_u32 v{V_TR}, v30, 3, v29
    @split
    v_lshrrev_b32 v25, 4, v1
    v_bfe_u32 v26, v1, 2, 2
    v_lshl_add_u32 v27, v25, 3, v26
    v_lshlrev_b32 v27, 7, v27
    v_and_b32 v24, 3, v1
    v_lshl_add_u32 v27, v24, 3, v27
    v_and_b32 v25, 1, v25
    v_lshrrev_b32 v26, 1, v26
    v_lshl_or_b32 v26, v25, 1, v26
    v_lshl_add_u32 v{V_TV}, v26, 5, v27
    v_xor_b32 v{V_TV+1}, 32, v{V_TV}
    v_xor_b32 v{V_TV+2}, 64, v{V_TV}
    v_xor_b32 v{V_TV+3}, 96, v{V_TV}
    v_lshrrev_b32 v26, 3, v1
    v_and_b32 v27, 2, v26
    v_and_b32 v24, 7, v1
    v_xor_b32 v27, v27, v24
    v_lshlrev_b32 v27, 4, v27
    v_lshl_add_u32 v27, v26, 13, v27
    s_lshl_b32 s{S_T}, s{S_W}, 17
    v_add_u32 v{V_WV}, s{S_T}, v27
    v_xor_b32 v27, 64, v{V_WV}
    v_add_u32 v{V_WV+1}, {8*8192-1024}, v27
    s_lshl_b32 s{S_T}, s{S_I}, 2
    s_add_u32 s{S_QS}, s{S_T}, s{S_W}
    s_sub_u32 s{S_QL}, s{S_W}, s{S_T}
    s_add_u32 s{S_QL}, s{S_QL}, 60
    s_lshl_b32 s{S_QL}, s{S_QL}, 15
    s_lshl_b32 s{S_QS}, s{S_QS}, 15
    s_mul_i32 s{S_KVS}, s{S_H}, {HS}
    s_lshl2_add_u32 s{S_T}, s{S_I}, s{S_W}
    s_mul_i32 s{S_T}, s{S_T}, {2*CS}
    s_add_u32 s{S_KVS}, s{S_KVS}, s{S_T}
    s_mov_b32 s{S_KS}, {KSCALE}
    s_mov_b32 s{S_AC}, {ASC}
    s_lshr_b32 s{S_TT}, s{S_X}, 1
    s_lshl_b32 s{S_TT}, s{S_TT}, 3
    s_add_u32 s{S_TT}, s{S_TT}, s{S_I}
    s_and_b32 s{S_OA}, s{S_H}, 7
    s_lshl_b32 s{S_AW}, s{S_OA}, 7
    s_mul_i32 s{S_T}, s{S_W}, {16*3072}
    s_add_u32 s{S_AW}, s{S_AW}, s{S_T}
    s_mul_i32 s{S_AL}, s{S_W}, 3072
    s_lshl_b32 s{S_T}, s{S_TT}, 16
    s_lshl_b32 s{S_KVO}, s{S_AL}, 3
    s_add_u32 s{S_T}, s{S_T}, s{S_KVO}
    s_sub_u32 s{S_AG}, s{S_T}, 16384
    s_cselect_b32 s{S_AG}, {OOB}, s{S_AG}
    s_sub_u32 s{S_AG+1}, s{S_T}, 8192
    s_cselect_b32 s{S_AG+1}, {OOB}, s{S_AG+1}
    s_mov_b32 s{S_AG+2}, s{S_T}
    s_cmp_eq_u32 s{S_W}, 3
    s_cselect_b32 s{S_AG+1}, {OOB}, s{S_AG+1}
    s_cselect_b32 s{S_AG+2}, {OOB}, s{S_AG+2}
    s_lshl_b32 s{S_OA}, s{S_OA}, 11
    s_lshl_b32 s{S_T}, s{S_TT}, 16
    s_add_u32 s{S_OA}, s{S_OA}, s{S_T}
    s_lshr_b32 s{S_T}, s{S_W}, 1
    s_lshl_b32 s{S_T}, s{S_T}, 10
    s_add_u32 s{S_OA}, s{S_OA}, s{S_T}
    s_add_u32 s{S_OA}, s{S_OA}, {WS_OA}""".split('\n')
    b = [x.strip() for x in b]
    k = b.index('@split')
    b1 = b[:k] + [f"v_xor_b32 v{V_TR+T}, {32*T}, v{V_TR}" for T in range(1, 8)]
    b2 = [x.replace(f"s{S_T},", "s100,").replace(f"s{S_T}", "s100") for x in b[k+1:]]
    return [x.strip() for x in a], b1, b2

def a_setup():
    r = f"""v_subrev_u32 v{V_AX}, s{S_AR}, v{V_AR}
    v_xor_b32 v{V_AX+1}, 64, v{V_AX}
    v_lshrrev_b32 v124, 3, v1
    v_and_b32 v125, 2, v124
    v_and_b32 v126, 7, v1
    v_xor_b32 v125, v125, v126
    v_lshlrev_b32 v125, 4, v125
    v_mul_u32_u24 v124, 3072, v124
    v_add_u32 v{V_WA}, v124, v125
    v_xor_b32 v125, 64, v125
    v_add_u32 v124, v124, v125
    v_add_u32 v{V_WT}, {8*3072-1024}, v124
    s_and_b32 s100, s{S_W}, 1
    s_lshl_b32 s101, s100, 6
    v_xor_b32 v{V_A3}, s101, v{V_AD}
    v_xor_b32 v{V_A3+1}, 64, v{V_A3}
    s_lshl_b32 s101, s100, 3
    v_add_u32 v{V_OD}, s101, v{V_L16}
    v_and_b32 v124, 0x7ff, v{V_TV}
    s_lshl_b32 s101, s{S_W}, 5
    v_xor_b32 v124, s101, v124
    v_lshrrev_b32 v125, 5, v1
    v_mul_u32_u24 v125, 24576, v125
    v_add_u32 v124, v124, v125""".split('\n')
    return [x.strip() for x in r], [f"v_add_u32 v{V_TA}, 0x10000, v124", f"v_add_u32 v{V_TA+1}, {65536 + 49152}, v124"]

def a_masks():
    b = [f"v_and_b32 v124, 15, v1\nv_lshrrev_b32 v125, 4, v1\nv_lshlrev_b32 v125, 2, v125\nv_sub_u32 v124, v124, v125\nv_mov_b32 v125, {NEG_BIG:#x}\n" +
         "\n".join(f"v_mov_b32 v{V_ONE+r}, 0x3f803f80" for r in range(4))]
    for r in range(4):
        b.append(f"""v_subrev_u32 v126, {r}, v124
        v_and_b32 v127, -15, v126
        v_cmp_ne_u32 vcc, 0, v127
        v_add_u32 v126, 16, v126
        v_and_b32 v127, -15, v126
        v_cndmask_b32 v{V_MC+r}, 0, v125, vcc
        v_cmp_ne_u32 vcc, 0, v127
        s_nop 1
        v_cndmask_b32 v{V_MP+r}, 0, v125, vcc""")
    b.append(f"s_cmp_eq_u32 s{S_TT}, 0\ns_cselect_b32 s100, 0, {0x7f7fffff}\ns_cselect_b32 s100, {NEG_BIG}, s100\n" + "\n".join(f"v_min_f32 v{V_MP1+r}, s100, v{V_MP+r}" for r in range(4)))
    return b

def a_attention():
    r = ["s_nop 4"]
    pk = lambda f, tb: AAC + (AACC(f, tb) - AAC) // 2
    for i in range(28): r.append(f"v_cvt_pk_bf16_f32 v{AAC+i}, v{AAC+2*i}, v{AAC+2*i+1}")
    SS = lambda i: 88 + i * 8
    M = 32; U = 36; OO = lambda i: 40 + i * 4
    r.append("s_nop 0")
    for i in range(4):
        mp = V_MP1 if i == 0 else V_MP
        r.append(f"v_mfma_f32_16x16x16_bf16 {vr(SS(i))}, {vr(pk(0, i), 2)}, {vr(pk(2, i+1), 2)}, {vr(mp)}")
        r.append(f"v_mfma_f32_16x16x16_bf16 {vr(SS(i)+4)}, {vr(pk(0, i+1), 2)}, {vr(pk(2, i+1), 2)}, {vr(V_MC)}")
    r.append("s_nop 5")
    for i in range(4):
        s0 = SS(i)
        r += [f"v_max3_f32 v{M+i}, v{s0}, v{s0+1}, v{s0+2}", f"v_max3_f32 v{M+i}, v{M+i}, v{s0+3}, v{s0+4}",
              f"v_max3_f32 v{M+i}, v{M+i}, v{s0+5}, v{s0+6}", f"v_max_f32 v{M+i}, v{M+i}, v{s0+7}", f"v_mov_b32 v{U+i}, v{M+i}"]
    for sw in ('32', '16'):
        r.append("s_nop 1")
        r += [f"v_permlane{sw}_swap_b32 v{M+i}, v{U+i}" for i in range(4)]
        for i in range(4):
            r.append(f"v_max_f32 v{M+i}, v{M+i}, v{U+i}")
            if sw == '32': r.append(f"v_mov_b32 v{U+i}, v{M+i}")
    r += [f"v_mul_f32 v{M+i}, s{S_AC}, v{M+i}" for i in range(4)]
    for i in range(4):
        r += [f"v_fma_f32 v{SS(i)+k}, v{SS(i)+k}, s{S_AC}, -v{M+i}" for k in range(8)]
        r += [f"v_exp_f32 v{SS(i)+k}, v{SS(i)+k}" for k in range(8)]
    for i in range(4):
        r += [f"v_cvt_pk_bf16_f32 v{SS(i)+k}, v{SS(i)+2*k}, v{SS(i)+2*k+1}" for k in range(4)]
    r.append("s_nop 1")
    for i in range(4):
        r.append(mfma(vr(SS(i) + 4), vr(V_ONE), vr(SS(i)), '0'))
        r.append(mfma(vr(OO(i)), vr(pk(1, i)), vr(SS(i)), '0'))
    r.append("s_nop 5")
    r += [f"v_rcp_f32 v{M+i}, v{SS(i)+4}" for i in range(4)]
    for i in range(4): r += [f"v_mul_f32 v{OO(i)+k}, v{M+i}, v{OO(i)+k}" for k in range(4)]
    for i in range(4):
        d = 88 + i * 2
        r += [f"v_cvt_pk_bf16_f32 v{d}, v{OO(i)}, v{OO(i)+1}", f"v_cvt_pk_bf16_f32 v{d+1}, v{OO(i)+2}, v{OO(i)+3}", f"s_add_u32 s{S_KVO}, s{S_OA}, {i*16384}",
              f"buffer_store_dwordx2 {vr(d, 2)}, v{V_OD}, {sr(R_WS)}, s{S_KVO} offen {ST} ; @STO"]
    return r

def touch(kind, R, n=0):
    if kind == 'head':
        r = ["v_bfe_u32 v14, v1, 1, 4", "v_lshlrev_b32 v14, 13, v14", "v_and_b32 v15, 1, v1", "v_lshl_add_u32 v14, v15, 7, v14",
             f"s_lshl2_add_u32 s100, s{S_I}, s{S_W}", "s_lshl_b32 s100, s100, 17", f"s_add_u32 s100, s100, s{S_WC}"]
    else:
        r = [f"v_min_u32 v14, {n-1}, v1", "v_lshlrev_b32 v14, 7, v14", f"s_lshl2_add_u32 s100, s2, s{S_W}", f"s_mul_i32 s100, s100, {n * 128}"]
    return r + [f"buffer_load_dword v3, v14, {sr(R)}, s100 offen ; @PF"]

def publish_nonce():
    return ["s_lshl_b32 s100, s2, 2", f"s_or_b32 s100, s100, s{S_W}", "s_cmp_lg_u32 s100, 0", "s_cbranch_scc1 L_nononce", "s_memrealtime s[100:101]", "s_waitcnt lgkmcnt(0)",
            "s_or_b32 s100, s100, 1", "v_mov_b32 v14, s100", "v_mov_b32 v15, 0", "s_mov_b64 exec, 1",
            f"buffer_store_dword v14, v15, {sr(R_X)}, 0 offen sc1 ; @skip", "s_mov_b64 exec, -1", "L_nononce:"]

def engine(hooks):
    a, b, b2 = setup()
    r = stamp('s0') + list(a) + ["s_waitcnt lgkmcnt(0)"] + stamp('ka')
    r += srd(R_A0, P_CKV, 2 << 20) + srd(R_W0, P_WUK, 4 << 20)
    for G in range(4):
        for sal, x in act_dma(G // 2, G % 2): r += sal + (["s_nop 0"] if sal else []) + [x]
        for sal, x in w_dma(G): r += sal + (["s_nop 0"] if sal else []) + [x]
    r += stamp('di') + b + stamp('b1')
    b2 += srd(R_A1, P_XB, 2 << 20) + srd(R_W1, P_WUV, 4 << 20) + srd(R_WS, P_WS, WS_END) + srd(R_X, P_DBG, 256)
    r += ["@wait X0,W0"] + stamp('w0') + ["s_barrier"] + stamp('go') + reads(0)
    hk = dict(hooks)
    def add(G, gp, lines): hk[('misc', G)] = hk.get(('misc', G), []) + [(gp + i, x) for i, x in enumerate(lines)]
    m = []
    for x in b2:
        if x.startswith('s_cselect'): m[-1] += '\n' + x
        else: m.append(x)
    b2 = m
    slots = [(G, gp) for G in range(2, 9) for gp in range(0, 32) if gp not in (3, 6, 9, 10, 12, 14, 15, 18, 21, 22, 24, 26, 27)]
    for x, (G, gp) in zip(b2, slots): hk[('seq', G)] = hk.get(('seq', G), []) + [(gp, x)]
    assert len(b2) <= len(slots)
    add(9, 30, ['\n'.join(publish_nonce())])
    add(11, 28, srd(R_W0, P_WQ, 4 << 20)[:2])
    add(14, 26, [f"s_add_u32 s{S_TQ}, s{S_I}, s{S_H}", f"s_and_b32 s{S_TQ}, s{S_TQ}, {int(opt('ROTQ', '7'))}", f"s_mul_i32 s{S_TQ}, s{S_TQ}, 0x11111111", f"s_add_u32 s{S_TQ}, s{S_TQ}, 0x76543210"])
    add(13, 28, srd(R_A0, P_XA, 2 << 20)[:2])
    add(25, 28, srd(R_W1, P_WQKV, 1536 * 1024)[:3])
    if not opt('NOPF'):
        J = '\n'.join
        add(9, 28, [J(touch('head', R_W1))]); add(10, 28, [J(touch('lin', R_A1, 16))]); add(12, 28, [J(touch('head', R_W0))])
        t1, t2 = eval(opt('TA', '(29, 30)'))
        add(t1, 13, [J(touch('lin', R_W1, 12))]); add(t2, 13, [J(touch('lin', R_A0, 16))])
        if not opt('NOTWO'):
            add(42, 28, [J(srd(R_W0, P_WO, 4 << 20)[:2] + ["v_and_b32 v126, 31, v1", "v_lshlrev_b32 v126, 10, v126", f"s_lshl2_add_u32 s100, s{S_H}, s{S_W}", "s_lshl_b32 s100, s100, 15",
                         f"s_lshl_b32 s101, s{S_I}, 7", "s_add_u32 s100, s100, s101", f"buffer_load_dword v3, v126, {sr(R_W0)}, s100 offen ; @PF"])])
    if opt('TLBW'):
        J = '\n'.join
        add(9, 20, [J(["v_min_u32 v126, 39, v1", "v_lshlrev_b32 v126, 21, v126", f"buffer_load_dword v3, v126, {sr(R_WS)}, 0 offen ; @PF"])])
    a1, a2 = a_setup()
    for k, x in enumerate(a1): hk[('seq', 36 + k // 6)] = hk.get(('seq', 36 + k // 6), []) + [(20 + 2 * (k % 6), x)]
    hk[('seq', 41)] = hk.get(('seq', 41), []) + [(20, a2[0]), (22, a2[1])]
    lp = eval(opt('LOOP', '(-1,-1)')); drop = tuple(x for x in opt('DROP').split(',') if x)
    for G in range(NST):
        if G == lp[0]: r += stamp('l0') + ["s_mov_b32 s1, 12", "L_mb:"]
        st = step(G, hk if not lp[0] <= G <= lp[1] else {})
        if lp[0] <= G <= lp[1] and drop: st = [x for x in st if not x.startswith(drop)]
        r += st
        if G == lp[1]: r += ["s_sub_u32 s1, s1, 1", "s_cmp_lg_u32 s1, 0", "s_cbranch_scc1 L_mb"] + stamp('l1') + stamp_end(0) + ["s_endpgm"]
        r += stamp(f'g{G}')
    return r
```

```python
from common import *
KSCALE = f2u(math.log2(math.e) / math.sqrt(128.0))
ASC = f2u(0.25 * math.log2(math.e))
V_L16 = 2; V_AD = 4; V_WD = 8; V_WV = 10; V_AR = 12
V_TR = 16; V_PK = 24; V_TV = 28
def WF(buf, T): return 32 + buf * 32 + T * 4
def WFV(buf, T): return 32 + buf * 16 + T * 4
def WFA(buf, f): return 32 + buf * 12 + f * 4
AAC = 60
def XF(buf, tb): return buf * 20 + tb * 4
def XP(tb, ks): return (ks * 4 + tb) * 4
V_MP = 16; V_MC = 20; V_MP1 = 28; V_ONE = 56
V_WA = 116; V_WT = 117; V_AX = 118; V_A3 = 120; V_OD = 122; V_TA = 8
ACCV = 128
def VAC(hf, T, tb): return (64 if hf == 0 else 128) + (T * 4 + tb) * 4
def QF(b, s): return 64 + (b * 4 + s) * 4
S_CK = 32; S_QL = 33; S_QS = 34; S_KA = 35; S_KW = 36; S_WC = 37; S_AR = 38; S_WL = 39
S_AG = 40; S_AL = 43; S_AW = 44; S_KB = 45; S_KVS = 46; S_T = 47; S_T2 = 48; S_T3 = 49; S_KS = 50; S_AC = 51; S_OA = 52; S_TT = 53; S_KVO = 54
PASSES = [('K', None), ('V', None), ('Q', None), ('A', None)]
NST = 64
ST = 'sc1'
ROT = not opt('NOROT')
def ptype(G): return PASSES[G // 16][0]

S_TK = 1; S_TQ = 32
def adv(s, j, t):
    if t in 'KV' and j < 2: return [f"s_mov_b32 s{s}, {128 * j}"]
    return [f"s_bfe_u32 s{s}, s{S_TK if t in 'KV' else S_TQ}, {4 * j + (3 << 16)}", f"s_lshl_b32 s{s}, s{s}, 7"]

def act_dma(P, half):
    t = ptype(2 * P); base = (AP(P) % 3) * 8192
    pre = adv(S_KA, P % 8, t) if half == 0 else []
    if t == 'A':
        r = []
        for k in range(3 * half, 3 * half + 3):
            sect, j = k >> 1, k & 1
            sal = []
            if k == 0: sal += pre + [f"s_mul_i32 s{S_T2}, s{S_KA}, 1536", f"s_add_u32 s{S_T2}, s{S_T2}, s{S_AW}"]
            if j == 0 or k == 3: sal += [f"s_add_u32 s{S_T}, s{S_T2}, {sect * 1024}", f"s_add_u32 m0, s{S_AR}, {base + sect * 2048}"]
            r.append((sal, f"buffer_load_dwordx4 v{V_WA if j == 0 else V_WT}, {sr(R_W1)}, s{S_T} offen offset:{j*1024} lds ; @X{P}"))
        return r
    R = R_A1 if t == 'Q' else R_A0
    src = (S_QS if half else S_QL) if t == 'Q' else S_CK
    sal = pre + [f"s_add_u32 s{S_T}, s{src}, s{S_KA}"]
    if t != 'Q' and half: sal += [f"s_add_u32 s{S_T}, s{S_T}, 32768"]
    sal += [f"s_add_u32 m0, s{S_AR}, {base + half * 4096}"]
    return [(sal if k == 0 else [], f"buffer_load_dwordx4 v{V_AD+k}, {sr(R)}, s{S_T} offen offset:{k*1024} lds ; @X{P}") for k in range(4)]

def w_dma(G):
    t = ptype(G); tag = f"W{G//2}"
    pre = adv(S_KB, (G // 2) % 8, t) if G % 2 == 0 else []
    if t == 'V':
        sal = adv(S_KB, G % 8, t) + [f"s_lshl_b32 s{S_KW}, s{S_KB}, 12", f"s_add_u32 s{S_KW}, s{S_KW}, s{S_WC}"] + ([f"s_add_u32 s{S_KW}, s{S_KW}, 128"] if G >= 24 else [])
        sal += [f"s_add_u32 m0, s{S_WL}, {(G % 8) * 8192}"]
        return [(sal, f"buffer_load_dwordx4 v{V_WV}, {sr(R_W1)}, s{S_KW} offen lds ; @{tag}"),
                ([], f"buffer_load_dwordx4 v{V_WV+1}, {sr(R_W1)}, s{S_KW} offen offset:1024 lds ; @{tag}")]
    if t != 'A':
        R = R_W0
        sal = pre + ([f"s_lshl_b32 s{S_KW}, s{S_KB}, 12", f"s_add_u32 s{S_KW}, s{S_KW}, s{S_WC}"] if G % 2 == 0 else [f"s_add_u32 s{S_KW}, s{S_KW}, 262144"])
        sal += [f"s_add_u32 m0, s{S_WL}, {(G % 8) * 8192}"]
        return [(sal, f"buffer_load_dwordx4 v{V_WD}, {sr(R)}, s{S_KW} offen lds ; @{tag}"),
                ([], f"buffer_load_dwordx4 v{V_WD+1}, {sr(R)}, s{S_KW} offen offset:1024 lds ; @{tag}")]
    r = []
    for k in ((0, 1) if G % 2 == 0 else (2,)):
        r.append(((pre if k == 0 else []) + [f"s_add_u32 s{S_T3}, s{S_AG+k}, s{S_KB}", f"s_add_u32 m0, s{S_AL}, {((G // 2) % 4) * 16384 + k * 1024}"],
                  f"buffer_load_dwordx4 v{V_A3 + (k & 1)}, {sr(R_A0)}, s{S_T3} offen lds ; @{tag}"))
    return r

def AP(P): return P if P < 8 else P - 8
def vreads(G, e2):
    return [f"ds_read_b64_tr_b16 {vr(WFV(e2, T) + 2*e, 2)}, v{V_TV+T} offset:{(G % 8) * 8192 + e2 * 4096 + e * 512}" for T in range(4) for e in range(2)]
def reads(G):
    t = ptype(G); buf = G & 1; P = G // 2
    if t == 'A':
        r = [f"ds_read_b128 {ar(XF(buf, tb))}, v{V_AX + (G & 1)} offset:{(P % 4) * 16384 + tb * 2048}" for tb in range(5)]
        for f, sect in enumerate((1, 2, 0)):
            r += [f"ds_read_b64_tr_b16 {vr(WFA(buf, f) + 2*e, 2)}, v{V_TA + (G & 1)} offset:{(AP(P) % 3) * 8192 + sect * 2048 + e * 512}" for e in range(2)]
        return r
    if t == 'V': return vreads(G, 0)
    r = [f"ds_read_b128 {ar(XP(tb, G) if t == 'K' else XF(buf, tb))}, v{V_AR + (G & 1)} offset:{(AP(P) % 3) * 8192 + tb * 2048}" for tb in range(4)]
    for T in range(8):
        r += [f"ds_read_b64_tr_b16 {vr(WF(buf, T) + 2*e, 2)}, v{V_TR+T} offset:{(G % 8) * 8192 + e * 1024}" for e in range(2)]
    return r

def AACC(f, tb): return AAC + (f * 5 + tb - (1 if f == 2 else 0)) * 4
def mfmas(G):
    t = ptype(G); ks = G % 16; buf = G & 1; mf = []
    if t == 'A':
        for f in range(3):
            for tb in range(1 if f == 2 else 0, 5):
                d = vr(AACC(f, tb)); c = d if ks else '0'
                if f == 1: mf.append(mfma(d, ar(XF(buf, tb)), vr(WFA(buf, f)), c))
                else: mf.append(mfma(d, vr(WFA(buf, f)), ar(XF(buf, tb)), c))
        return mf
    if t == 'V':
        hf = ks >> 3
        for e2 in range(2):
            kk = 2 * (ks & 7) + e2
            for T in range(4):
                for tb in range(4):
                    d = vr(VAC(hf, T, tb)); mf.append(mfma(d, ar(XP(tb, kk)), vr(WFV(e2, T)), d if kk else '0'))
        return mf
    for T in range(8):
        for tb in range(4):
            d = (ar if t == 'Q' else vr)(ACCV + (T * 4 + tb) * 4); c = d if ks else '0'
            mf.append(mfma(d, vr(WF(buf, T)), ar(XP(tb, ks) if t == 'K' else XF(buf, tb)), c))
    return mf

def drain(dt, k):
    pk = V_PK
    if dt == 'Z': return [f"v_mov_b32 v{k+i}, 0" for i in range(4)]
    if dt == 'K':
        s, tb = k >> 2, k & 3
        lo = ACCV + ((2 * s) * 4 + tb) * 4; hi = lo + 16
        va = [f"v_mul_f32 v{r}, s{S_KS}, v{r}" for r in list(range(lo, lo + 4)) + list(range(hi, hi + 4))]
        src = [lo, lo + 2, hi, hi + 2]
        off = (tb >> 1) * CS + ((tb & 1) * 4 + s) * 1024
    elif dt == 'V':
        hf, T, p = k >> 3, (k >> 1) & 3, k & 1
        lo = VAC(hf, T, 2 * p); va = []
        src = [lo + 2 * r for r in range(4)]
        off = (p + 1) * CS + 8192 + (hf * 4 + T) * 1024
    else:
        tb, s = k >> 2, k & 3
        va = []
        for h in range(2):
            a = ACCV + ((2 * s + h) * 4 + tb) * 4
            va += [f"v_accvgpr_read_b32 v{pk+i}, a{a+i}" for i in range(4)] + [f"v_cvt_pk_bf16_f32 v{pk+2*i}, v{pk+2*i}, v{pk+2*i+1}" for i in range(2)]
            va += [f"v_accvgpr_write_b32 a{QF(tb, s)+2*h+i}, v{pk+2*i}" for i in range(2)]
        return va
    va += [f"v_cvt_pk_bf16_f32 v{pk+i}, v{x}, v{x+1}" for i, x in enumerate(src)]
    if opt('NOKVST'): return va
    return va + [f"s_add_u32 s{S_KVO}, s{S_KVS}, {off}", f"buffer_store_dwordx4 {vr(pk)}, v{V_L16}, {sr(R_WS)}, s{S_KVO} offen {opt('KVST', ST)} ; @ST{dt}"]

def drain_plan():
    d = {G: [] for G in range(NST)}
    if opt('DP', '2') == '2':
        for G in range(16, 24): d[G] = [('K', G - 16)]
        for G in range(24, 31): d[G] = [('V', G - 23)]
        d[24] = [('V', 0), ('V', 1)]; d[31] = [('K', 8)]
        for G in range(32, 40): d[G] = [('V', G - 24)]
        for G in range(40, 47): d[G] = [('K', G - 31)]
        for k in range(8, 16):
            lo = ACCV + 32 * (k >> 2) + 4 * (k & 3); G = 32 if k == 8 else k + 32
            d[G] += [('Z', lo), ('Z', lo + 16)]
        for G in range(40, 48): d[G] += [('Z', 128 + 8 * (G - 40)), ('Z', 132 + 8 * (G - 40))]
        for G in range(48, 64): d[G] = [('Q', G - 48)]
        for G in range(58, 62): d[G] += [('Z', ACCV + 32 * (G - 58)), ('Z', ACCV + 32 * (G - 58) + 16)]
        return d
    q = [('K', k) for k in range(12)]
    for G in range(16, 24): d[G] = [q.pop(0) for _ in range(1 + G % 2)]
    q = [('V', k) for k in range(8)] + [('K', k) for k in range(12, 16)]
    for G in range(24, 32): d[G] = [q.pop(0) for _ in range(2 - G % 2 if G < 30 else 1 + (G == 30) * 2 - (G == 31))]
    assert not q, q
    for G in range(32, 40): d[G] = [('V', 8 + G - 32), ('Z', 192 + 8 * (G - 32)), ('Z', 196 + 8 * (G - 32))]
    for G in range(40, 48): d[G] = [('Z', 128 + 8 * (G - 40)), ('Z', 132 + 8 * (G - 40))]
    for G in range(48, 64): d[G] = [('Q', G - 48)]
    for G in range(58, 62): d[G] += [('Z', ACCV + 32 * (G - 58)), ('Z', ACCV + 32 * (G - 58) + 16)]
    return d
DRAIN = drain_plan()

def dma_plan():
    plan = {0: [('A', 2, 0), ('A', 2, 1)], 1: [('W', 4), ('W', 5), ('A', 3, 0)], 2: [('A', 3, 1), ('W', 6), ('W', 7)], 3: [('A', 4, 0), ('A', 4, 1)],
            4: [('W', 8), ('W', 9), ('W', 10), ('W', 11)]}
    if opt('PRO1'):
        plan = {0: [('A', 1, 0), ('A', 1, 1)], 1: [('A', 2, 0), ('A', 2, 1)], 2: [('W', 4), ('W', 5), ('A', 3, 0)], 3: [('A', 3, 1), ('W', 6), ('W', 7)],
                4: [('A', 4, 0), ('A', 4, 1)], 5: [('W', 8), ('W', 9), ('A', 5, 0)], 6: [('A', 5, 1), ('W', 10), ('W', 11)], 7: [('A', 6, 0), ('A', 6, 1)],
                8: [('W', 12), ('W', 13), ('W', 14), ('W', 15)]}
    for G in range(len(plan), NST):
        P = (G + 5) // 2
        if G % 2: plan[G] = [('A', P, h) for h in range(2)] if (P < 8 or 19 <= P < NST // 2) else []
        else: plan[G] = [('W', k) for k in (G + 6, G + 7) if k < NST]
    for k, G in enumerate(eval(opt('XBS', '(17, 19, 21, 23, 25, 27)'))): plan[G] = [('A', 16 + k // 2, k % 2)]
    return plan
PLAN = dma_plan()

def step(G, hooks):
    t = ptype(G)
    g = Gaps(mfmas(G)); n = len(g.mf)
    nxt = G + 1 < NST
    odd = G % 2 == 1
    rd = reads(G + 1) if nxt else []
    dl = []
    for it in PLAN[G]: dl += act_dma(it[1], it[2]) if it[0] == 'A' else w_dma(it[1])
    dl += hooks.get(('dma', G), [])
    tags = ([f"X{(G+1)//2}", f"W{(G+1)//2}"] if odd and nxt else []) + hooks.get(('wait', G), [])
    full = [f"@wait {','.join(tags)} lgkmcnt(0)" if tags else "s_waitcnt lgkmcnt(0)"] + (["s_barrier"] if odd and nxt else [])
    v0 = 0
    if t == 'V':
        g.put(-1, "s_waitcnt lgkmcnt(0)")
        dgap = [4, 10, 20, 26] if len(dl) <= 4 else [4, 7, 10, 13, 19, 22, 25, 28]
        fr = [x for x in range(32) if x not in dgap[:len(dl)]]
        for x, gp in zip(vreads(G, 1), [x for x in fr if x < 12]): g.put(gp, x)
        g.front(15, *full)
        late = [x for x in fr if x >= 16]
        for k, x in enumerate(rd): g.put(31 if k >= 18 else late[k * len(late) // max(len(rd), len(late))] if len(rd) > len(late) else late[k], x)
        v0 = 2
    elif t != 'A':
        g.put(-1, "s_waitcnt lgkmcnt(12)")
        dgap = [6, 10, 14, 18, 22, 26] if len(dl) <= 6 else [6, 9, 12, 15, 18, 21, 24, 27] if G else [2, 4, 6, 8, 10, 12, 14, 16]
        early = not odd and len(rd) == 20
        if not early: g.front(3, *full)
        rgap = [x for x in range(0 if early else 4, 32) if x not in dgap[:len(dl)]]
        for x, gp in zip(rd, rgap): g.put(gp, x)
        if early:
            n7 = sum(1 for x in rgap[:20] if x < 7)
            g.front(7, *([f"@wait {','.join(tags)} lgkmcnt({n7})"] if tags else [f"s_waitcnt lgkmcnt({n7})"]))
        v0 = 2
    else:
        g.put(-1, "s_waitcnt lgkmcnt(4)")
        g.front(1, *full)
        dgap = [3, 5, 7, 9, 11, 13] if len(dl) <= 6 else [3, 4, 6, 7, 9, 10, 12, 13]
        for x, gp in zip(rd, range(2, 13)): g.put(gp, x)
    assert len(dl) <= len(dgap)
    for (sal, x), gp in zip(dl, dgap):
        for k, y in enumerate(sal):
            q = max(gp - len(sal) + k, 0)
            pos = max([i + 1 for i, z in enumerate(g.g[q]) if z.startswith('buffer_load') or z.startswith('s_') or z.startswith('@')] + [0])
            g.g[q].insert(pos, y)
        g.put(gp, x)
    load = lambda q: sum(1 for z in g.g[q] if not z.startswith('s_') and not z.startswith('@'))
    seq = [x for dt, k in DRAIN[G] for x in drain(dt, k)]
    cap = 2 if t != 'A' else max(2, -(-(len(seq) + 20) // n))
    gp = v0
    for k, x in enumerate(seq):
        if x.startswith('s_'): g.front(gp, x); continue
        if x.startswith('buffer'):
            q = gp + 1
            while q < n - 1 and load(q) > 0 and q < gp + 4: q += 1
            gp = min(q, n - 1); g.put(gp, x); gp = min(gp + 1, n - 1); continue
        while gp < n - 1 and load(gp) >= cap: gp += 1
        g.put(gp, x)
    for gp, x in hooks.get(('seq', G), []): g.front(gp, x) if x.startswith('s_') else g.put(gp, x)
    for gp, x in hooks.get(('misc', G), []): g.front(gp, x) if x.startswith('s_') and '\n' not in x else g.put(gp, x)
    return g.lines()

def setup():
    a = f"""v_and_b32 v1, 63, v0
    v_lshlrev_b32 v{V_L16}, 4, v1
    v_lshrrev_b32 v26, 3, v1
    v_lshrrev_b32 v24, 4, v1
    v_and_b32 v28, 7, v1
    v_xor_b32 v27, v24, v28
    v_lshlrev_b32 v27, 4, v27
    v_lshl_add_u32 v{V_AD}, v26, 10, v27
    v_xor_b32 v27, 64, v{V_AD}
    v_add_u32 v{V_AD+1}, {8192-1024}, v27
    v_add_u32 v{V_AD+2}, {2*(8192-1024)}, v{V_AD}
    v_add_u32 v{V_AD+3}, {3*(8192-1024)}, v27
    s_and_b32 s{S_T}, s{S_W}, 1
    s_lshl_b32 s{S_T}, s{S_T}, 2
    v_or_b32 v25, s{S_T}, v24
    v_lshlrev_b32 v25, 1, v25
    v_and_b32 v26, 15, v1
    v_xor_b32 v25, v25, v26
    v_lshlrev_b32 v25, 4, v25
    v_lshl_add_u32 v25, v24, 13, v25
    s_lshl_b32 s{S_T}, s{S_W}, 16
    v_add_u32 v{V_WD}, s{S_T}, v25
    v_add_u32 v{V_WD+1}, {4*8192-1024}, v{V_WD}
    s_lshl_b32 s{S_CK}, s{S_I}, 18
    s_add_u32 s{S_CK}, s{S_CK}, s{S_T}
    s_lshl_b32 s{S_WC}, s{S_H}, 8
    s_mul_i32 s{S_AR}, s{S_W}, 24576
    s_add_u32 s{S_AR}, s{S_AR}, 65536
    s_lshl_b32 s{S_WL}, s{S_W}, 11""".split('\n')
    b = f"""s_add_u32 s{S_T}, s{S_I}, s{S_H}
    s_and_b32 s{S_T2}, s{S_T}, {int(opt('ROTK', '3'))}
    s_lshl_b32 s{S_T2}, s{S_T2}, 2
    s_lshr_b32 s{S_TK}, 0x765432, s{S_T2}
    s_sub_u32 s{S_T2}, 24, s{S_T2}
    s_lshl_b32 s{S_T2}, 0x765432, s{S_T2}
    s_or_b32 s{S_TK}, s{S_TK}, s{S_T2}
    s_lshl_b32 s{S_TK}, s{S_TK}, 8
    v_and_b32 v24, 15, v1
    v_lshrrev_b32 v25, 4, v1
    v_lshrrev_b32 v26, 1, v24
    v_xor_b32 v26, v26, v25
    v_lshlrev_b32 v26, 4, v26
    v_lshl_add_u32 v26, v24, 7, v26
    v_add_u32 v{V_AR}, s{S_AR}, v26
    v_xor_b32 v{V_AR+1}, 64, v{V_AR}
    v_bfe_u32 v26, v1, 2, 2
    v_lshl_add_u32 v27, v25, 3, v26
    v_and_b32 v28, 1, v25
    v_lshl_or_b32 v29, v28, 2, v26
    v_lshlrev_b32 v29, 5, v29
    v_lshl_add_u32 v29, v27, 8, v29
    v_and_b32 v30, 3, v1
    v_lshl_add_u32 v{V_TR}, v30, 3, v29
    @split
    v_lshrrev_b32 v25, 4, v1
    v_bfe_u32 v26, v1, 2, 2
    v_lshl_add_u32 v27, v25, 3, v26
    v_lshlrev_b32 v27, 7, v27
    v_and_b32 v24, 3, v1
    v_lshl_add_u32 v27, v24, 3, v27
    v_and_b32 v25, 1, v25
    v_lshrrev_b32 v26, 1, v26
    v_lshl_or_b32 v26, v25, 1, v26
    v_lshl_add_u32 v{V_TV}, v26, 5, v27
    v_xor_b32 v{V_TV+1}, 32, v{V_TV}
    v_xor_b32 v{V_TV+2}, 64, v{V_TV}
    v_xor_b32 v{V_TV+3}, 96, v{V_TV}
    v_lshrrev_b32 v26, 3, v1
    v_and_b32 v27, 2, v26
    v_and_b32 v24, 7, v1
    v_xor_b32 v27, v27, v24
    v_lshlrev_b32 v27, 4, v27
    v_lshl_add_u32 v27, v26, 13, v27
    s_lshl_b32 s{S_T}, s{S_W}, 17
    v_add_u32 v{V_WV}, s{S_T}, v27
    v_xor_b32 v27, 64, v{V_WV}
    v_add_u32 v{V_WV+1}, {8*8192-1024}, v27
    s_lshl_b32 s{S_T}, s{S_I}, 2
    s_add_u32 s{S_QS}, s{S_T}, s{S_W}
    s_sub_u32 s{S_QL}, s{S_W}, s{S_T}
    s_add_u32 s{S_QL}, s{S_QL}, 60
    s_lshl_b32 s{S_QL}, s{S_QL}, 15
    s_lshl_b32 s{S_QS}, s{S_QS}, 15
    s_mul_i32 s{S_KVS}, s{S_H}, {HS}
    s_lshl2_add_u32 s{S_T}, s{S_I}, s{S_W}
    s_mul_i32 s{S_T}, s{S_T}, {2*CS}
    s_add_u32 s{S_KVS}, s{S_KVS}, s{S_T}
    s_mov_b32 s{S_KS}, {KSCALE}
    s_mov_b32 s{S_AC}, {ASC}
    s_lshr_b32 s{S_TT}, s{S_X}, 1
    s_lshl_b32 s{S_TT}, s{S_TT}, 3
    s_add_u32 s{S_TT}, s{S_TT}, s{S_I}
    s_and_b32 s{S_OA}, s{S_H}, 7
    s_lshl_b32 s{S_AW}, s{S_OA}, 7
    s_mul_i32 s{S_T}, s{S_W}, {16*3072}
    s_add_u32 s{S_AW}, s{S_AW}, s{S_T}
    s_mul_i32 s{S_AL}, s{S_W}, 3072
    s_lshl_b32 s{S_T}, s{S_TT}, 16
    s_lshl_b32 s{S_KVO}, s{S_AL}, 3
    s_add_u32 s{S_T}, s{S_T}, s{S_KVO}
    s_sub_u32 s{S_AG}, s{S_T}, 16384
    s_cselect_b32 s{S_AG}, {OOB}, s{S_AG}
    s_sub_u32 s{S_AG+1}, s{S_T}, 8192
    s_cselect_b32 s{S_AG+1}, {OOB}, s{S_AG+1}
    s_mov_b32 s{S_AG+2}, s{S_T}
    s_cmp_eq_u32 s{S_W}, 3
    s_cselect_b32 s{S_AG+1}, {OOB}, s{S_AG+1}
    s_cselect_b32 s{S_AG+2}, {OOB}, s{S_AG+2}
    s_lshl_b32 s{S_OA}, s{S_OA}, 11
    s_lshl_b32 s{S_T}, s{S_TT}, 16
    s_add_u32 s{S_OA}, s{S_OA}, s{S_T}
    s_lshr_b32 s{S_T}, s{S_W}, 1
    s_lshl_b32 s{S_T}, s{S_T}, 10
    s_add_u32 s{S_OA}, s{S_OA}, s{S_T}
    s_add_u32 s{S_OA}, s{S_OA}, {WS_OA}""".split('\n')
    b = [x.strip() for x in b]
    k = b.index('@split')
    b1 = b[:k] + [f"v_xor_b32 v{V_TR+T}, {32*T}, v{V_TR}" for T in range(1, 8)]
    b2 = [x.replace(f"s{S_T},", "s100,").replace(f"s{S_T}", "s100") for x in b[k+1:]]
    return [x.strip() for x in a], b1, b2

def a_setup():
    r = f"""v_subrev_u32 v{V_AX}, s{S_AR}, v{V_AR}
    v_xor_b32 v{V_AX+1}, 64, v{V_AX}
    v_lshrrev_b32 v124, 3, v1
    v_and_b32 v125, 2, v124
    v_and_b32 v126, 7, v1
    v_xor_b32 v125, v125, v126
    v_lshlrev_b32 v125, 4, v125
    v_mul_u32_u24 v124, 3072, v124
    v_add_u32 v{V_WA}, v124, v125
    v_xor_b32 v125, 64, v125
    v_add_u32 v124, v124, v125
    v_add_u32 v{V_WT}, {8*3072-1024}, v124
    s_and_b32 s100, s{S_W}, 1
    s_lshl_b32 s101, s100, 6
    v_xor_b32 v{V_A3}, s101, v{V_AD}
    v_xor_b32 v{V_A3+1}, 64, v{V_A3}
    s_lshl_b32 s101, s100, 3
    v_add_u32 v{V_OD}, s101, v{V_L16}
    v_and_b32 v124, 0x7ff, v{V_TV}
    s_lshl_b32 s101, s{S_W}, 5
    v_xor_b32 v124, s101, v124
    v_lshrrev_b32 v125, 5, v1
    v_mul_u32_u24 v125, 24576, v125
    v_add_u32 v124, v124, v125""".split('\n')
    return [x.strip() for x in r], [f"v_add_u32 v{V_TA}, 0x10000, v124", f"v_add_u32 v{V_TA+1}, {65536 + 49152}, v124"]

def a_masks():
    b = [f"v_and_b32 v124, 15, v1\nv_lshrrev_b32 v125, 4, v1\nv_lshlrev_b32 v125, 2, v125\nv_sub_u32 v124, v124, v125\nv_mov_b32 v125, {NEG_BIG:#x}\n" +
         "\n".join(f"v_mov_b32 v{V_ONE+r}, 0x3f803f80" for r in range(4))]
    for r in range(4):
        b.append(f"""v_subrev_u32 v126, {r}, v124
        v_and_b32 v127, -15, v126
        v_cmp_ne_u32 vcc, 0, v127
        v_add_u32 v126, 16, v126
        v_and_b32 v127, -15, v126
        v_cndmask_b32 v{V_MC+r}, 0, v125, vcc
        v_cmp_ne_u32 vcc, 0, v127
        s_nop 1
        v_cndmask_b32 v{V_MP+r}, 0, v125, vcc""")
    b.append(f"s_cmp_eq_u32 s{S_TT}, 0\ns_cselect_b32 s100, 0, {0x7f7fffff}\ns_cselect_b32 s100, {NEG_BIG}, s100\n" + "\n".join(f"v_min_f32 v{V_MP1+r}, s100, v{V_MP+r}" for r in range(4)))
    return b

def a_attention():
    r = ["s_nop 4"]
    pk = lambda f, tb: AAC + (AACC(f, tb) - AAC) // 2
    for i in range(28): r.append(f"v_cvt_pk_bf16_f32 v{AAC+i}, v{AAC+2*i}, v{AAC+2*i+1}")
    SS = lambda i: 88 + i * 8
    M = 32; U = 36; OO = lambda i: 40 + i * 4
    r.append("s_nop 0")
    for i in range(4):
        mp = V_MP1 if i == 0 else V_MP
        r.append(f"v_mfma_f32_16x16x16_bf16 {vr(SS(i))}, {vr(pk(0, i), 2)}, {vr(pk(2, i+1), 2)}, {vr(mp)}")
        r.append(f"v_mfma_f32_16x16x16_bf16 {vr(SS(i)+4)}, {vr(pk(0, i+1), 2)}, {vr(pk(2, i+1), 2)}, {vr(V_MC)}")
    r.append("s_nop 5")
    for i in range(4):
        s0 = SS(i)
        r += [f"v_max3_f32 v{M+i}, v{s0}, v{s0+1}, v{s0+2}", f"v_max3_f32 v{M+i}, v{M+i}, v{s0+3}, v{s0+4}",
              f"v_max3_f32 v{M+i}, v{M+i}, v{s0+5}, v{s0+6}", f"v_max_f32 v{M+i}, v{M+i}, v{s0+7}", f"v_mov_b32 v{U+i}, v{M+i}"]
    for sw in ('32', '16'):
        r.append("s_nop 1")
        r += [f"v_permlane{sw}_swap_b32 v{M+i}, v{U+i}" for i in range(4)]
        for i in range(4):
            r.append(f"v_max_f32 v{M+i}, v{M+i}, v{U+i}")
            if sw == '32': r.append(f"v_mov_b32 v{U+i}, v{M+i}")
    r += [f"v_mul_f32 v{M+i}, s{S_AC}, v{M+i}" for i in range(4)]
    for i in range(4):
        r += [f"v_fma_f32 v{SS(i)+k}, v{SS(i)+k}, s{S_AC}, -v{M+i}" for k in range(8)]
        r += [f"v_exp_f32 v{SS(i)+k}, v{SS(i)+k}" for k in range(8)]
    for i in range(4):
        r += [f"v_cvt_pk_bf16_f32 v{SS(i)+k}, v{SS(i)+2*k}, v{SS(i)+2*k+1}" for k in range(4)]
    r.append("s_nop 1")
    for i in range(4):
        r.append(mfma(vr(SS(i) + 4), vr(V_ONE), vr(SS(i)), '0'))
        r.append(mfma(vr(OO(i)), vr(pk(1, i)), vr(SS(i)), '0'))
    r.append("s_nop 5")
    r += [f"v_rcp_f32 v{M+i}, v{SS(i)+4}" for i in range(4)]
    for i in range(4): r += [f"v_mul_f32 v{OO(i)+k}, v{M+i}, v{OO(i)+k}" for k in range(4)]
    for i in range(4):
        d = 88 + i * 2
        r += [f"v_cvt_pk_bf16_f32 v{d}, v{OO(i)}, v{OO(i)+1}", f"v_cvt_pk_bf16_f32 v{d+1}, v{OO(i)+2}, v{OO(i)+3}", f"s_add_u32 s{S_KVO}, s{S_OA}, {i*16384}",
              f"buffer_store_dwordx2 {vr(d, 2)}, v{V_OD}, {sr(R_WS)}, s{S_KVO} offen {ST} ; @STO"]
    return r

def touch(kind, R, n=0):
    if kind == 'head':
        r = ["v_bfe_u32 v14, v1, 1, 4", "v_lshlrev_b32 v14, 13, v14", "v_and_b32 v15, 1, v1", "v_lshl_add_u32 v14, v15, 7, v14",
             f"s_lshl2_add_u32 s100, s{S_I}, s{S_W}", "s_lshl_b32 s100, s100, 17", f"s_add_u32 s100, s100, s{S_WC}"]
    else:
        r = [f"v_min_u32 v14, {n-1}, v1", "v_lshlrev_b32 v14, 7, v14", f"s_lshl2_add_u32 s100, s2, s{S_W}", f"s_mul_i32 s100, s100, {n * 128}"]
    return r + [f"buffer_load_dword v3, v14, {sr(R)}, s100 offen ; @PF"]

def publish_nonce():
    return ["s_lshl_b32 s100, s2, 2", f"s_or_b32 s100, s100, s{S_W}", "s_cmp_lg_u32 s100, 0", "s_cbranch_scc1 L_nononce", "s_memrealtime s[100:101]", "s_waitcnt lgkmcnt(0)",
            "s_or_b32 s100, s100, 1", "v_mov_b32 v14, s100", "v_mov_b32 v15, 0", "s_mov_b64 exec, 1",
            f"buffer_store_dword v14, v15, {sr(R_X)}, 0 offen sc1 ; @skip", "s_mov_b64 exec, -1", "L_nononce:"]

def engine(hooks):
    a, b, b2 = setup()
    r = stamp('s0') + list(a) + ["s_waitcnt lgkmcnt(0)"] + stamp('ka')
    r += srd(R_A0, P_CKV, 2 << 20) + srd(R_W0, P_WUK, 4 << 20)
    for G in range(4):
        if G < 2 or not opt('PRO1'):
            for sal, x in act_dma(G // 2, G % 2): r += sal + (["s_nop 0"] if sal else []) + [x]
        for sal, x in w_dma(G): r += sal + (["s_nop 0"] if sal else []) + [x]
    r += stamp('di') + b + stamp('b1')
    b2 += srd(R_A1, P_XB, 2 << 20) + srd(R_W1, P_WUV, 4 << 20) + srd(R_WS, P_WS, WS_END) + srd(R_X, P_DBG, 256)
    r += ["@wait X0,W0"] + stamp('w0') + ["s_barrier"] + stamp('go') + reads(0)
    hk = dict(hooks)
    def add(G, gp, lines): hk[('misc', G)] = hk.get(('misc', G), []) + [(gp + i, x) for i, x in enumerate(lines)]
    m = []
    for x in b2:
        if x.startswith('s_cselect'): m[-1] += '\n' + x
        else: m.append(x)
    b2 = m
    slots = [(G, gp) for G in range(2, 9) for gp in range(0, 32) if gp not in (3, 6, 9, 10, 12, 14, 15, 18, 21, 22, 24, 26, 27)]
    for x, (G, gp) in zip(b2, slots): hk[('seq', G)] = hk.get(('seq', G), []) + [(gp, x)]
    assert len(b2) <= len(slots)
    add(9, 30, ['\n'.join(publish_nonce())])
    add(11, 28, srd(R_W0, P_WQ, 4 << 20)[:2])
    add(14, 26, [f"s_add_u32 s{S_TQ}, s{S_I}, s{S_H}", f"s_and_b32 s{S_TQ}, s{S_TQ}, {int(opt('ROTQ', '7'))}", f"s_mul_i32 s{S_TQ}, s{S_TQ}, 0x11111111", f"s_add_u32 s{S_TQ}, s{S_TQ}, 0x76543210"])
    add(13, 28, srd(R_A0, P_XA, 2 << 20)[:2])
    add(25, 28, srd(R_W1, P_WQKV, 1536 * 1024)[:3])
    if not opt('NOPF'):
        J = '\n'.join
        u1, u2, u3 = eval(opt('TK', '(9, 10, 12)'))
        add(u1, 29, [J(touch('head', R_W1))]); add(u2, 29, [J(touch('lin', R_A1, 16))]); add(u3, 30, [J(touch('head', R_W0))])
        t1, t2 = eval(opt('TA', '(29, 30)'))
        add(t1, 13, [J(touch('lin', R_W1, 12))]); add(t2, 13, [J(touch('lin', R_A0, 16))])
        if not opt('NOTWO'):
            add(42, 28, [J(srd(R_W0, P_WO, 4 << 20)[:2] + ["v_and_b32 v126, 31, v1", "v_lshlrev_b32 v126, 10, v126", f"s_lshl2_add_u32 s100, s{S_H}, s{S_W}", "s_lshl_b32 s100, s100, 15",
                         f"s_lshl_b32 s101, s{S_I}, 7", "s_add_u32 s100, s100, s101", f"buffer_load_dword v3, v126, {sr(R_W0)}, s100 offen ; @PF"])])
    if opt('TLBW'):
        J = '\n'.join
        add(9, 20, [J(["v_min_u32 v126, 39, v1", "v_lshlrev_b32 v126, 21, v126", f"buffer_load_dword v3, v126, {sr(R_WS)}, 0 offen ; @PF"])])
    a1, a2 = a_setup()
    for k, x in enumerate(a1): hk[('seq', 36 + k // 6)] = hk.get(('seq', 36 + k // 6), []) + [(20 + 2 * (k % 6), x)]
    hk[('seq', 41)] = hk.get(('seq', 41), []) + [(20, a2[0]), (22, a2[1])]
    lp = eval(opt('LOOP', '(-1,-1)')); drop = tuple(x for x in opt('DROP').split(',') if x)
    for G in range(NST):
        if G == lp[0]: r += stamp('l0') + ["s_mov_b32 s1, 12", "L_mb:"]
        st = step(G, hk if not lp[0] <= G <= lp[1] else {})
        if lp[0] <= G <= lp[1] and drop: st = [x for x in st if not x.startswith(drop)]
        r += st
        if G == lp[1]: r += ["s_sub_u32 s1, s1, 1", "s_cmp_lg_u32 s1, 0", "s_cbranch_scc1 L_mb"] + stamp('l1') + stamp_end(0) + ["s_endpgm"]
        r += stamp(f'g{G}')
    return r
```

```python
import sys
import common
from common import *
NAME = "concat_heads__sliding_local_dilated__compressed_kv_cla__prompt"
KN = NAME + "_kernel"
def build():
    import eng, att, op
    o = Out()
    hdr = open(f"cdna_kernels/{NAME}.s.ref").read().split('\n')
    o.l += [l for l in hdr if l.startswith(';') and '@launch' not in l]
    o("; @launch grid=(256,1,1) block=(256,1,1) lds=163840")
    o('.amdgcn_target "amdgcn-amd-amdhsa--gfx950"\n.text')
    o(head(KN))
    cpf = ["s_getpc_b64 s[100:101]", "L_pc:", "s_lshr_b32 s3, s2, 3", "s_lshl_b32 s3, s3, 4", "v_lshrrev_b32 v4, 4, v0", "v_add_lshl_u32 v4, v4, s3, 7", "v_min_u32 v4, CODE_LEN, v4",
           "v_mov_b32 v5, 0", "v_lshl_add_u64 v[4:5], v[4:5], 0, s[100:101]", "global_load_dword v3, v[4:5], off"]
    r = ["s_load_dwordx16 s[56:71], s[0:1], 0", "s_load_dwordx8 s[72:79], s[0:1], 64"] + (cpf if opt('CPF', '1') == '1' else []) + [ "s_cmp_ge_u32 s2, 256", "s_cbranch_scc1 L_end"] + stamp_init()
    r += f"""v_lshrrev_b32 v1, 6, v0
    s_and_b32 s{S_X}, s2, 7
    v_readfirstlane_b32 s{S_W}, v1
    s_lshr_b32 s{S_I}, s2, 3
    s_and_b32 s{S_H}, s{S_I}, 3
    s_lshl2_add_u32 s{S_H}, s{S_X}, s{S_H}
    s_lshr_b32 s{S_I}, s{S_I}, 2""".split('\n')
    if opt('CPF', '1') == '0':
        r += ["s_getpc_b64 s[100:101]", "L_pc:", "s_lshr_b32 s3, s2, 3", f"s_lshl2_add_u32 s3, s3, s{S_W}", "s_lshl_b32 s3, s3, 9", "v_and_b32 v4, 3, v0", "v_lshlrev_b32 v4, 7, v4",
              "v_add_u32 v4, s3, v4", "v_min_u32 v4, CODE_LEN, v4", "v_mov_b32 v5, s101", "v_add_co_u32 v4, vcc, s100, v4", "s_nop 1", "v_addc_co_u32 v5, vcc, 0, v5, vcc",
              "s_mov_b64 exec, 15", "global_load_dword v3, v[4:5], off", "s_mov_b64 exec, -1"]
    SG = 49 if opt('DP', '2') == '2' else 43
    hooks = {('wait', SG): ['STV', 'STK'], ('wait', 41): ['NON']}
    J = '\n'.join
    hooks[('misc', 36)] = [(12, J(["v_mov_b32 v15, 0", f"buffer_load_dword v14, v15, {sr(R_X)}, 0 offen sc1 ; @NON"]))]
    hooks[('misc', 41)] = [(30, J(poll_check(14, 100, R_X, "v_cmp_eq_u32 vcc, 0, v14") + [f"v_readfirstlane_b32 s{S_NON}, v14"]))]
    hooks[('misc', SG)] = [(4, J(signal('KV', 124)))]
    hooks[('misc', 50)] = [(1, x) for x in reversed(att.early_setup()[:6])] + [(3, att.early_setup()[6])]
    hooks[('misc', 52)] = [(3, J(poll_issue('KV', 14, 'PKV')))]
    hooks[('wait', 56)] = ['PKV']
    hooks[('misc', 56)] = [(3, J(poll_check(14, 100))), (10, J(op.relayout_stores()))]
    hooks[('misc', 48)] = [(1, J(op.relayout_loads()))]
    hooks[('wait', 55)] = ['WO']
    hooks[('misc', 55)] = [(1, J(op.relayout_reads()))]
    p1 = att.prologue1()
    sl = [(G, gp) for G in range(51, 57) for gp in (2, 4, 6, 8, 10, 12)]
    assert len(p1) <= len(sl)
    for x, (G, gp) in zip(p1, sl): hooks[('seq', G)] = hooks.get(('seq', G), []) + [(gp, x)]
    for k, x in enumerate(eng.a_masks()): hooks[('misc', 57 + k)] = [(1, x)]
    for c, G in enumerate((58, 59, 61)): hooks[('dma', G)] = att.chunk_dma(c)
    r += eng.engine(hooks) + stamp('eng')
    stop = opt('STOP')
    mix = att.prologue_mix(eng.a_attention(), [x for c in range(3, 7) for x in att.chunk_dma(c)], [])
    r += ["@wait C1", "s_barrier"] + att.k0reads() + stamp('j1') + mix + stamp('aa') + att.prologue2() + ["@wait STO"] + stamp('att')
    r += att.main_loop(op.scalars(), signal('OA', 116) + signal('WO', 116) + signal('WA', 116, [f"s_and_b32 s100, s{S_H}, 7", "s_cmp_lg_u32 s100, 0"]), op.polls(), op.checks(), op.w_first())
    r += stamp('epi') + op.pre_join() + ["@wait CST"] + stamp('vm0') + ["s_barrier"] + signal('CTX', 20) + stamp('op0')
    r += op.outproj()
    r += stamp_end(0) + ["s_endpgm"] + att.fallback()
    lines = []
    for x in r: lines += [y.strip() for y in x.split('\n')]
    lines = VmQ().scan(lines)
    import align
    clen = sum(align.size(x.replace('CODE_LEN', '1000')) for x in lines) - 256
    o.ext([x.replace('CODE_LEN', str(clen)) for x in lines])
    o("L_end:\ns_endpgm")
    o(kd(KN, 512, 256))
    return o.text()
if __name__ == '__main__':
    common.INSTR = len(sys.argv) > 2 and sys.argv[2] == 'instr'
    t = build()
    open(sys.argv[1], 'w').write(t)
    import sim
    ins, labels = sim.parse(t)
    bad = 0
    for wg in ([0, 37, 131, 250, 255] if not opt('QUICK') else [0]):
        ws, errs = sim.check_wg(ins, labels, KN, wg, 4, 163840, verbose=True, policy={'AT_fb': wg in (37, 255), 'OP_wx': wg in (0, 37)})
        for e in errs[:12]: print("  ERR", e)
        bad += len(errs)
    print("errors:", bad)
```

```python
from common import *
from eng import QF, V_L16, ST
A_, B_, C_, D_ = 0, 1, 2, 3
def Q(b, s): return ar(QF(b, s))
def K(t, s): return ar((t * 4 + s) * 4)
def V(dt): return ar(32 + dt * 4)
def S(b, t): return 16 + b * 8 + t * 4
V_E = 48
def P(b): return 64 + b * 4
def CI(b, t): return 80 + b * 8 + t * 4
V_M = 112; V_T = 116; V_L = 124
def O(b, dt): return 128 + b * 32 + dt * 4
V_DMA = 13; V_RA = 14; V_THR = 15
S_N = 64; S_US = 65; S_UL = 66; S_USM = 67; S_ULM = 68; S_RA = 69; S_SOFF = 55; S_BM = 56
S_T = 62; S_CL = 70; S_CS = 71; S_FL = 58
R_KV = R_A1

def exps(b, e0): return [f"v_exp_f32 v{e0+i}, v{S(b,0)+i}" for i in range(8)]
def cvts(b, e0): return [f"v_cvt_pk_bf16_f32 v{P(b)+i}, v{e0+2*i}, v{e0+2*i+1}" for i in range(4)]
V_L2 = 120
def adds(b, e0):
    if opt('X_NOADD'): return []
    if opt('X_ACC2'): return [f"v_add_f32 v{(V_L2 if i & 1 else V_L)+b}, v{(V_L2 if i & 1 else V_L)+b}, v{e0+i}" for i in range(8)]
    return [f"v_add_f32 v{V_L+b}, v{V_L+b}, v{e0+i}" for i in range(8)]
def qk(b, first=False):
    return [mfma(vr(S(b, t)), K(t, s), Q(b, s), ('0' if first else vr(CI(b, t))) if s == 0 else vr(S(b, t))) for t in range(2) for s in range(4)]
def pv(b): return [mfma(vr(O(b, dt)), V(dt), vr(P(b)), vr(O(b, dt))) for dt in range(8)]
def vreads(): return [f"ds_read_b128 {V(dt)}, v{V_RA} offset:{8192 + dt*1024}" for dt in range(8)]
def kreads(): return [f"ds_read_b128 {K(i>>2, i&3)}, v{V_RA} offset:{i*1024}" for i in range(8)]
def dmas(tag='KV'): return [f"buffer_load_dwordx4 v{V_L16}, {sr(R_KV)}, s{S_GO} offen offset:{j*1024} {opt('LD_POL','sc1')} lds ; @{tag}" for j in range(4)]
uid = [0]
def barblk(mode, vm=8, lg=0):
    if mode == 'odd': return [f"s_waitcnt lgkmcnt({lg})"] if lg == 0 else []
    if mode == 'even': return [f"s_waitcnt vmcnt({vm}) lgkmcnt({lg})", "s_barrier"]
    uid[0] += 1; l = f"AT_nb{uid[0]}"
    return [f"s_waitcnt lgkmcnt({lg})", *barbit(), f"s_cbranch_scc0 {l}", f"s_waitcnt vmcnt({vm})", "s_barrier", f"{l}:"]
S_DM = 72; S_DX = 73; S_LS = 69; S_EV = 76
V_XC = 12
S_GO = S_SOFF if CS == 16384 else 77
UPD = [f"s_add_u32 s{S_SOFF}, s{S_SOFF}, 16384" + ("" if CS == 16384 else f"\ns_add_u32 s{S_GO}, s{S_GO}, {CS}"), f"s_and_b32 s{S_DM}, s{S_SOFF}, 0x1ffff", f"s_cmp_lt_u32 s{S_GO}, s{R_KV+2}", f"s_cselect_b32 m0, s{S_DM}, s{S_DX}"]
RADDR = f"v_xor_b32 v{V_RA}, s{S_DM}, v{V_XC}"
def barbit(): return [f"s_lshr_b32 s{S_N}, s{S_SOFF}, 14", f"s_sub_u32 s{S_N}, s{S_N}, 6", f"s_bitcmp1_b64 s[{S_BM}:{S_BM+1}], s{S_N}"]

def spread(g, lst, gaps):
    gaps = list(gaps)
    assert len(lst) <= len(gaps), (len(lst), len(gaps))
    for x, gp in zip(lst, gaps): g.put(gp, x)

V_EB = 8
def ex(b, t, e): return [f"v_exp_f32 v{e+i}, v{S(b,t)+i}" for i in range(4)]
def cv(b, t, e): return [f"v_cvt_pk_bf16_f32 v{P(b)+2*t+i}, v{e+2*i}, v{e+2*i+1}" for i in range(2)]
def ad(b, e, n=4): return [] if opt('X_NOADD') else [f"v_add_f32 v{V_L+b}, v{V_L+b}, v{e+i}" for i in range(n)]

def place(g, items, cap):
    used = {k: 0 for k in cap}
    for x, lo, hi in items:
        win = [k for k in cap if lo <= k <= hi]
        free = [k for k in win if used[k] < cap[k]]
        k = free[0] if free else min(win, key=lambda q: (used[q] - cap[q], q))
        used[k] += 1; g.put(k, x)

ONES = ar(128)
def LM(b): return 132 + 4 * b
def msum(b): return mfma(ar(LM(b)), ONES, vr(P(b)), ar(LM(b)))
def MS(): return {'abcd'.index(c) for c in opt('MSUM', 'ab')}

def period(typ, mode, extra=()):
    E0, E1, EB = V_E, V_E + 8, V_EB
    ms = MS()
    dm = dmas(); kr = kreads(); vr_ = vreads()
    W = lambda lst, lo, hi: [(x, lo, hi) for x in lst]
    AD = lambda b, e, lo, hi, n=4: [] if b in ms else W(ad(b, e, n), lo, hi)
    if typ == 'F':
        g = Gaps(pv(A_) + ([msum(A_)] if A_ in ms else []) + pv(B_) + ([msum(B_)] if B_ in ms else []))
        g.put(-1, *vr_[4:]); g.put(-1, *ex(B_, 1, E0 + 4)); g.put(-1, *barblk(mode, 0))
        for i, (sal, x) in enumerate(extra):
            for k, y in enumerate(sal): g.put(i - 1, y)
            g.put(i, x)
        spread(g, cv(B_, 0, EB) + cv(B_, 1, E0 + 4) + ([] if B_ in ms else ad(B_, EB) + ad(B_, E0 + 4)), range(12))
        return g.lines()
    if typ == 'D':
        order = [A_, C_, B_, D_]; nq = 32; kb = 24
        g = Gaps(qk(A_) + qk(C_) + qk(B_) + qk(D_) + pv(A_) + pv(C_) + pv(B_) + pv(D_))
        e = ex(B_, 1, E0 + 4) + ex(D_, 0, E1) + ex(D_, 1, E1 + 4) + ex(A_, 0, E0) + ex(A_, 1, E0 + 4) + ex(C_, 0, E1) + ex(C_, 1, E1 + 4) + ex(B_, 0, EB)
        dg = [43, 51, 41, 49]
        it = W(cv(B_, 0, EB), 1, 23) + AD(B_, EB, 1, 23) + W(cv(B_, 1, E0 + 4), 9, 23) + AD(B_, E0 + 4, 9, 23) + AD(D_, E1, 15, 39) + W(cv(D_, 0, E1), 15, 39)
        it += W(cv(D_, 1, E1 + 4), 23, 39) + AD(D_, E1 + 4, 23, 39) + AD(A_, E0, 31, 63) + W(cv(A_, 0, E0) + cv(A_, 1, E0 + 4), 41, 63) + AD(A_, E0 + 4, 39, 63)
        it += AD(C_, E1, 47, 63) + W(cv(C_, 0, E1), 49, 63) + W(cv(C_, 1, E1 + 4), 55, 63) + AD(C_, E1 + 4, 55, 63)
        lp = 'AT_D'; lim = S_USM
    elif typ == 'S':
        order = [A_, B_]; nq = 16; kb = 8
        g = Gaps(qk(A_) + qk(B_) + pv(A_) + pv(B_))
        e = ex(B_, 1, E0 + 4) + ex(A_, 0, E1) + ex(A_, 1, E1 + 4) + ex(B_, 0, EB)
        dg = eval(opt('SDG', '[15, 19, 27, 13]'))
        it = W(cv(B_, 0, EB), 1, 21) + AD(B_, EB, 1, 21) + W(cv(B_, 1, E0 + 4), 5, 21)[:1] + W(cv(B_, 1, E0 + 4), 7, 21)[1:] + AD(B_, E0 + 4, 7, 31) + AD(A_, E1, 15, 31)
        it += W(cv(A_, 0, E1) + cv(A_, 1, E1 + 4), 25, 31) + AD(A_, E1 + 4, 23, 31)
        lp = 'AT_S'; lim = S_LS
    else:
        order = [A_, C_, B_, D_]; nq = 16; kb = 8
        g = Gaps(qk(A_) + qk(B_) + pv(A_) + pv(C_) + pv(B_) + pv(D_))
        e = ex(B_, 1, E0 + 4) + ex(D_, 0, E1) + ex(D_, 1, E1 + 4) + ex(A_, 0, E0) + ex(A_, 1, E0 + 4) + ex(B_, 0, EB)
        dg = [27, 35, 25, 33]
        it = W(cv(B_, 0, EB), 1, 23) + AD(B_, EB, 1, 23) + W(cv(B_, 1, E0 + 4), 7, 23) + AD(B_, E0 + 4, 7, 23) + W(cv(D_, 0, E1), 15, 37) + W(cv(D_, 1, E1 + 4), 23, 37)
        it += AD(D_, E1, 23, 47, 8) + W(cv(A_, 0, E0), 31, 47) + AD(A_, E0, 31, 47) + W(cv(A_, 1, E0 + 4), 39, 47) + AD(A_, E0 + 4, 39, 47)
    n = len(g.mf)
    if typ == 'D': g.front(n - 8 if typ != 'S' else n - 7, "s_waitcnt lgkmcnt(0)" if typ != 'S' else "s_waitcnt lgkmcnt(0)")
    else: g.put(-1, "s_waitcnt lgkmcnt(4)")
    spread(g, e, range(0, n, 2))
    ds = list(zip(vr_[4:], (1, 3, 5, 7))) + list(zip(kr, range(kb + 1, kb + 17, 2))) + list(zip(vr_[:4], range(n - 7, n, 2)))
    for x, gp in ds: g.put(gp, x)
    g.put(7, RADDR)
    sums = [(nq + 8 * k + 7, b) for k, b in enumerate(order) if b in ms]
    tail = [z for z in sums if z[0] == n - 1 and not opt('TAILDMA')]
    sums = [z for z in sums if z not in tail]
    dg = sorted(dg[:4 - min(len(sums), 4)])
    cap = {k: 2 for k in range(1, n, 2)}
    for _, gp in ds: cap[gp] -= 1
    for gp in dg: cap[gp] -= 1
    cap[7] -= 1
    if typ == 'D' and opt('DLAST', '1') == '1': cap[n - 1] = -9
    ev = sorted([(gp, None) for gp in dg] + sums, key=lambda z: z[0])
    late = []
    for (gp, b), x in zip(ev, dm):
        if b is None: g.put(gp, x)
        else: late.append((gp, [msum(b), x]))
    place(g, it, cap)
    for gp, x in late: g.put(gp, *x)
    for gp, b in tail: g.put(gp, msum(b))
    g.front(kb, *barblk(mode, lg=0 if typ == 'D' else 4))
    for i, x in enumerate(UPD): g.front(kb + 1 + i, x)
    if typ != 'D': g.front(15, "s_waitcnt lgkmcnt(3)")
    if typ == 'T':
        fr = [k for k in range(16, n) if not any(z.startswith('s_') for z in g.g[k])]
        per = -(-len(extra) // len(fr))
        for i, k in enumerate(fr): g.front(k, *extra[i * per:(i + 1) * per])
        return g.lines()
    g.front(kb + 6, f"s_cmp_lt_u32 s{S_SOFF}, s{lim}")
    if mode == 'even': g.put(n - 1, f"s_cbranch_scc0 {lp}x")
    else: g.put(n - 1, f"s_cbranch_scc1 {lp}e")
    return g.lines()

def epilogue(blks):
    ms = MS(); r = []
    vb = [b for b in blks if b not in ms]
    for sw in ('32', '16'):
        if not vb: break
        r += [f"v_mov_b32 v{V_T+b}, v{V_L+b}" for b in vb] + ["s_nop 1"]
        r += [f"v_permlane{sw}_swap_b32 v{V_L+b}, v{V_T+b}" for b in vb]
        r += [f"v_add_f32 v{V_L+b}, v{V_L+b}, v{V_T+b}" for b in vb]
    if not vb: r += ["s_nop 6"]
    r += [f"v_accvgpr_read_b32 v{V_L+b}, a{LM(b)}" for b in blks if b in ms]
    for b in blks:
        fl = S_FL + (2 if b >= 2 else 0)
        r += [f"v_cmp_nle_f32 vcc, v{V_L+b}, v{V_THR}", f"v_rcp_f32 v{RC(b)}, v{V_L+b}", f"s_or_b64 s[{fl}:{fl+1}], s[{fl}:{fl+1}], vcc"]
    for b in blks:
        sc = S_CS if b >= 2 else S_CL
        if b & 1: r.append(f"s_add_u32 s{S_T}, s{sc}, {QS}")
        r += norm_store(b, S_T if b & 1 else sc, 'CST')
    return r
def RC(b): return V_T + 2 * (b & 1)

def norm_store(b, so, tag):
    r = []
    for s in range(4):
        base = O(b, 2 * s)
        r += [f"v_pk_mul_f32 {vr(base+2*i, 2)}, {vr(base+2*i, 2)}, {vr(RC(b), 2)} op_sel_hi:[1,0]" for i in range(4)]
        r += [f"v_cvt_pk_bf16_f32 v{base+i}, v{base+2*i}, v{base+2*i+1}" for i in range(4)]
        r.append(f"buffer_store_dwordx4 {vr(base)}, v{V_L16}, {sr(R_WS)}, s{so} offen offset:{s*1024} {ST} ; @{tag}")
    return r

def fallback():
    S_U = S_N; S_K = S_LS; S_LIM = S_USM; S_DST = S_ULM
    M = V_T; AL = V_T + 2; TM = CI(0, 0)
    r = ["AT_fb:", "s_waitcnt vmcnt(0) lgkmcnt(0)", f"s_cmp_eq_u64 s[{S_FL}:{S_FL+1}], 0 ; @fb", "s_cbranch_scc1 AT_fb2",
         f"s_mov_b64 s[{S_FL}:{S_FL+1}], 0", f"s_mov_b32 s{S_LIM}, s{S_UL}", f"s_mov_b32 s{S_DST}, s{S_CL}", "s_branch AT_fbgo",
         "AT_fb2:", f"s_cmp_eq_u64 s[{S_FL+2}:{S_FL+3}], 0 ; @fb2", "s_cbranch_scc1 AT_fbx",
         f"s_mov_b64 s[{S_FL+2}:{S_FL+3}], 0", f"s_mov_b32 s{S_LIM}, s{S_US}", f"s_mov_b32 s{S_DST}, s{S_CS}"]
    r += [f"v_accvgpr_mov_b32 a{QF(0,0)+i}, a{QF(2,0)+i}" for i in range(32)]
    r += ["AT_fbgo:", f"s_lshr_b32 s{S_LIM}, s{S_LIM}, 14", f"s_sub_u32 s{S_LIM}, s{S_LIM}, 6", f"s_mov_b32 s{S_U}, 0", f"s_mov_b32 s{S_K}, 0"]
    r += [f"v_mov_b32 v{O(0,0)+i}, 0" for i in range(64)]
    r += [f"v_mov_b32 v{M+b}, {NEG_BIG:#x}" for b in range(2)] + [f"v_mov_b32 v{V_L+b}, 0" for b in range(2)]
    r += ["AT_fbl:"]
    for i in range(16):
        if i % 4 == 0: r.append(f"s_add_u32 s{S_T}, s{S_K}, {i * 1024 + (CS if i >= 8 else 0)}")
        r.append(f"buffer_load_dwordx4 {ar(i * 4)}, v{V_L16}, {sr(R_KV)}, s{S_T} offen offset:{(i & 3) * 1024} sc1 ; @skip")
    r += ["s_waitcnt vmcnt(0)"] + qk(A_, 1) + qk(B_, 1) + ["s_nop 7", f"s_cmp_lg_u32 s{S_U}, s{S_LIM}", "s_cbranch_scc1 AT_fbn"] + maskblk(A_, S) + ["AT_fbn:"]
    for b in range(2):
        s0 = S(b, 0); t = TM + b
        r += [f"v_max3_f32 v{t}, v{s0}, v{s0+1}, v{s0+2}", f"v_max3_f32 v{t}, v{t}, v{s0+3}, v{s0+4}", f"v_max3_f32 v{t}, v{t}, v{s0+5}, v{s0+6}",
              f"v_max3_f32 v{t}, v{t}, v{s0+7}, v{M+b}"]
    for sw in ('32', '16'):
        r += [f"v_mov_b32 v{TM+2+b}, v{TM+b}" for b in range(2)] + ["s_nop 1"]
        r += [f"v_permlane{sw}_swap_b32 v{TM+b}, v{TM+2+b}" for b in range(2)]
        r += [f"v_max_f32 v{TM+b}, v{TM+b}, v{TM+2+b}" for b in range(2)]
    for b in range(2):
        r += [f"v_sub_f32 v{AL+b}, v{M+b}, v{TM+b}", f"v_exp_f32 v{AL+b}, v{AL+b}", f"v_mov_b32 v{M+b}, v{TM+b}"]
        r += [f"v_sub_f32 v{S(b,0)+i}, v{S(b,0)+i}, v{M+b}" for i in range(8)] + exps(b, V_E + 8 * b)
        r += [f"v_mul_f32 v{V_L+b}, v{V_L+b}, v{AL+b}"] + [f"v_mul_f32 v{O(b,0)+i}, v{O(b,0)+i}, v{AL+b}" for i in range(32)]
        r += cvts(b, V_E + 8 * b) + [f"v_add_f32 v{V_L+b}, v{V_L+b}, v{V_E+8*b+i}" for i in range(8)]
    r += ["s_nop 1"] + pv(A_) + pv(B_)
    r += [f"s_add_u32 s{S_K}, s{S_K}, {CS}", f"s_add_u32 s{S_U}, s{S_U}, 1", f"s_cmp_le_u32 s{S_U}, s{S_LIM}", "s_cbranch_scc1 AT_fbl"]
    for sw in ('32', '16'):
        r += [f"v_mov_b32 v{TM+b}, v{V_L+b}" for b in range(2)] + ["s_nop 1"]
        r += [f"v_permlane{sw}_swap_b32 v{V_L+b}, v{TM+b}" for b in range(2)]
        r += [f"v_add_f32 v{V_L+b}, v{V_L+b}, v{TM+b}" for b in range(2)]
    r += [f"v_rcp_f32 v{RC(b)}, v{V_L+b}" for b in range(2)] + [f"s_add_u32 s{S_T}, s{S_DST}, {QS}"]
    for b in range(2): r += norm_store(b, S_T if b else S_DST, 'skip')
    return r + ["s_branch AT_fb"]

def maskblk(b0, CI=CI):
    r = []
    for i in range(4):
        r += [f"v_min_f32 v{CI(b0,0)+i}, v{CI(b0,0)+i}, v{V_M+i}", f"v_mov_b32 v{CI(b0,1)+i}, {NEG_BIG:#x}",
              f"v_min_f32 v{CI(b0+1,1)+i}, v{CI(b0+1,1)+i}, v{V_M+i}"]
    return r

def early_setup():
    return [f"s_mul_i32 s{S_SOFF}, s{S_H}, {HS}", f"s_add_u32 s{R_KV}, s{P_WS}, s{S_SOFF}", f"s_addc_u32 s{R_KV+1}, s{P_WS+1}, 0",
            f"s_mul_i32 s{S_SOFF}, s{S_I}, {4*CS}", f"s_sub_u32 s{R_KV+2}, {HL}, s{S_SOFF}", f"s_lshl_b32 s0, s{S_W}, 12",
            f"v_add_u32 v{V_DMA}, s0, v{V_L16}"]
def chunk_dma(c):
    d = dmas(f"C{c}")
    return [([f"s_add_u32 s{S_GO}, s0, {c*CS}", f"s_add_u32 m0, s0, {c*16384}"] + ([f"s_add_u32 s{S_SOFF}, s0, {c*16384}"] if c == 6 and CS != 16384 else []), d[0])] + [([], x) for x in d[1:]]

def chunks(c0, c1):
    r = []
    for c in range(c0, c1):
        for sal, x in chunk_dma(c): r += sal + (["s_nop 0"] if sal else []) + [x]
    return r
def prologue1():
    r = f"""
    s_lshl_b32 s{S_T}, s{S_I}, 2
    s_add_u32 s{S_US}, s{S_T}, s{S_W}
    s_sub_u32 s{S_UL}, s{S_W}, s{S_T}
    s_add_u32 s{S_UL}, s{S_UL}, 60
    s_sub_u32 s{S_T}, 61, s{S_T}
    s_bfm_b64 s[{S_BM}:{S_BM+1}], s{S_T}, 0
    s_and_b32 s{S_BM}, s{S_BM}, 0x55555555
    s_and_b32 s{S_BM+1}, s{S_BM+1}, 0x55555555
    s_lshl_b32 s{S_T}, s{S_H}, 12
    s_add_u32 s{S_T}, s{S_T}, {WS_C}
    s_mul_i32 s{S_CL}, s{S_UL}, {2*QS}
    s_add_u32 s{S_CL}, s{S_CL}, s{S_T}
    s_mul_i32 s{S_CS}, s{S_US}, {2*QS}
    s_add_u32 s{S_CS}, s{S_CS}, s{S_T}
    s_mov_b64 s[{S_FL}:{S_FL+1}], 0
    s_mov_b64 s[{S_FL+2}:{S_FL+3}], 0
    s_add_u32 s{S_DM}, s0, {6*16384}
    s_lshl_b32 s{S_US}, s{S_US}, 14
    s_add_u32 s{S_US}, s{S_US}, s{S_DM}
    s_lshl_b32 s{S_UL}, s{S_UL}, 14
    s_add_u32 s{S_UL}, s{S_UL}, s{S_DM}
    s_sub_u32 s{S_USM}, s{S_US}, 16384
    s_sub_u32 s{S_ULM}, s{S_UL}, 16384
    s_lshl_b32 s{S_EV}, s{S_I}, 16
    s_add_u32 s{S_EV}, s{S_EV}, s{S_DM}
    s_add_u32 s{S_EV}, s{S_EV}, 65536
    s_min_u32 s{S_LS}, s{S_EV}, s{S_ULM}
    s_add_u32 s{S_DX}, s0, {9*16384}""".split('\n')
    return [x.strip() for x in r if x.strip()]

def k0reads(): return [x.replace(f"v{V_RA} ", f"v{V_L16} ") for x in kreads()]
def S0(b, t): return 128 + b * 8 + t * 4
def prologue_mix(aa, dm, sal):
    mf = [mfma(vr(S0(b, t)), K(t, s), Q(b, s), '0' if s == 0 else vr(S0(b, t))) for b in (C_, D_, A_, B_) for t in range(2) for s in range(4)]
    kr = kreads(); per = -(-len(sal) // 32)
    r = [f"v_add_u32 v{V_RA}, 16384, v{V_L16}"]; k = 0; nxt = 12; dpos = 30
    for i, x in enumerate(aa):
        r.append(x)
        plain = x.startswith('v_') and not x.startswith('v_mfma') and i + 1 < len(aa) and not aa[i + 1].startswith('v_permlane')
        if i >= nxt and plain and k < 32:
            if k == 0: r.append("s_waitcnt lgkmcnt(0)")
            r += [mf[k]] + sal[k * per:(k + 1) * per] + ([kr[k - 24]] if k >= 24 else [])
            k += 1; nxt = i + 4
        elif i >= dpos and plain and dm:
            sl, d = dm.pop(0); r = r[:-1] + sl + [x, d]; dpos = i + 8
    assert k == 32 and not dm, (k, len(dm))
    return r + vreads()[:4]

def prologue2():
    r = f"""v_mov_b32 v{V_THR}, {f2u(2.0**32):#x}
    v_xor_b32 v{V_XC}, 0x10000, v{V_DMA}
    v_and_b32 v7, 15, v1
    v_lshrrev_b32 v8, 4, v1
    v_lshlrev_b32 v8, 2, v8
    v_mov_b32 v9, 0x7f7fffff
    v_mov_b32 v10, {NEG_BIG:#x}""".split('\n')
    for i in range(4):
        r += [f"v_add_u32 v11, {i}, v8", "v_cmp_gt_u32 vcc, v11, v7", f"v_mov_b32 v{V_L+i}, 0", f"v_accvgpr_write_b32 a{128+i}, v{56+i}", f"v_cndmask_b32 v{V_M+i}, v9, v10, vcc"]
    r += [f"s_cmp_lg_u32 s{S_US}, s{S_SOFF}", "s_cbranch_scc1 AT_nm0"] + maskblk(C_, S0) + ["AT_nm0:"]
    for b in (C_, D_, A_, B_):
        s0 = S0(b, 0); t = V_T + b; u = V_E + b
        r += [f"v_max3_f32 v{t}, v{s0}, v{s0+1}, v{s0+2}", f"v_max3_f32 v{t}, v{t}, v{s0+3}, v{s0+4}",
              f"v_max3_f32 v{t}, v{t}, v{s0+5}, v{s0+6}", f"v_max_f32 v{t}, v{t}, v{s0+7}", f"v_mov_b32 v{u}, v{t}"]
    r += [f"v_accvgpr_write_b32 a{LM(0)+i}, 0" for i in range(2)]
    r += [f"v_permlane32_swap_b32 v{V_T+b}, v{V_E+b}" for b in range(4)]
    for b in range(4): r += [f"v_max_f32 v{V_T+b}, v{V_T+b}, v{V_E+b}", f"v_mov_b32 v{V_E+b}, v{V_T+b}"]
    r += [f"v_accvgpr_write_b32 a{LM(0)+i}, 0" for i in range(2, 4 * len(MS()))]
    r += [f"v_permlane16_swap_b32 v{V_T+b}, v{V_E+b}" for b in range(4)]
    r += [f"v_max_f32 v{V_T+b}, v{V_T+b}, v{V_E+b}" for b in range(4)]
    sel = lambda b: (vr(V_T + (b & 2), 2), f"op_sel:[0,{b & 1}] op_sel_hi:[1,{b & 1}]", f"op_sel:[{b & 1},0] op_sel_hi:[{b & 1},0]")
    for b in (A_, C_, B_, D_): r += [f"v_pk_add_f32 {vr(S(b,0)+2*i, 2)}, {vr(S0(b,0)+2*i, 2)}, {sel(b)[0]} {sel(b)[1]} neg_lo:[0,1] neg_hi:[0,1]" for i in range(4)]
    r += exps(A_, V_E) + exps(C_, V_E + 8) + ex(B_, 0, V_EB)
    for b in range(4): r += [f"v_pk_add_f32 {vr(CI(b,0)+2*i, 2)}, {vr(192, 2)}, {sel(b)[0]} {sel(b)[1]} neg_lo:[0,1] neg_hi:[0,1]" for i in range(4)]
    r += [f"v_pk_mul_f32 {vr(128 + 2 * i, 2)}, {vr(192, 2)}, {vr(192, 2)}" for i in range(16)]
    r += cvts(A_, V_E) + cvts(C_, V_E + 8) + ([] if A_ in MS() else adds(A_, V_E)) + ([] if C_ in MS() else adds(C_, V_E + 8))
    return [x.strip() for x in r] + ["s_waitcnt lgkmcnt(4)"]

def main_loop(in_t, after_t, at_ma, at_f, in_f):
    par = lambda l: barbit() + [f"s_cbranch_scc1 {l}e", f"s_branch {l}o"]
    r = [f"s_cmp_lt_u32 s{S_SOFF}, s{S_USM}", "s_cbranch_scc1 AT_De", f"s_cmp_eq_u32 s{S_SOFF}, s{S_US}", "s_cbranch_scc1 AT_T"]
    r += ["AT_mc:"] + maskblk(C_) + barbit() + ["s_cbranch_scc0 AT_Do", ".p2align 3", "AT_De:"]
    r += period('D', 'even') + ["AT_Do:"] + period('D', 'odd')
    r += ["AT_Dx:", f"s_cmp_lg_u32 s{S_SOFF}, s{S_US}", "s_cbranch_scc1 AT_mc", "AT_T:"]
    r += period('T', 'dyn', in_t) + after_t
    r += ["AT_Sx:", f"s_cmp_lg_u32 s{S_SOFF}, s{S_EV}", "s_cbranch_scc1 AT_Sy"]
    r += epilogue([C_, D_]) + [f"s_mov_b32 s{S_LS}, s{S_ULM}"]
    r += ["AT_Sy:", f"s_cmp_eq_u32 s{S_SOFF}, s{S_UL}", "s_cbranch_scc1 AT_F", f"s_cmp_lg_u32 s{S_SOFF}, s{S_ULM}", "s_cbranch_scc1 AT_mp"] + maskblk(A_) + at_ma
    r += ["AT_mp:"] + barbit() + ["s_cbranch_scc0 AT_So", ".p2align 3", "AT_Se:"] + period('S', 'even') + ["AT_So:"] + period('S', 'odd') + ["s_branch AT_Sx", "AT_F:"]
    r += at_f + period('F', 'dyn', in_f) + stamp('f') + epilogue([A_, B_])
    r += [f"s_or_b64 vcc, s[{S_FL}:{S_FL+1}], s[{S_FL+2}:{S_FL+3}]", "s_cbranch_vccnz AT_fb", "AT_fbx:"]
    return [x.strip() for x in r]
```
